```python
import torch

def _softmax(x, axis=-1):
    return torch.softmax(x, dim=axis)
def _gelu(x):
    return torch.nn.functional.gelu(x, approximate="tanh")
def _silu(x):
    return torch.nn.functional.silu(x)
def _sigmoid(x):
    return torch.sigmoid(x)
def _layernorm(x, axis=-1, eps=1e-5):
    m = x.mean(dim=axis, keepdim=True)
    v = x.var(dim=axis, keepdim=True, unbiased=False)
    return (x - m) / torch.sqrt(v + eps)
def _scatter_add(tgt, idx, src, axis=0):
    return tgt.clone().index_add_(axis, idx, src)
def _segment_sum(src, seg, n):
    out = torch.zeros((n,) + src.shape[1:], dtype=src.dtype)
    return out.index_add_(0, seg, src)
def _pad(x, pw):
    flat = tuple(v for pair in reversed(pw) for v in pair)
    return torch.nn.functional.pad(x, flat)

kernel_name = 'parallel_sum__sliding_local_dilated__glu_gated_swiglu__prompt'

def setup_inputs():

    _w = (lambda a: (lambda t: t.to(torch.bfloat16) if t.is_floating_point() else t)(torch.as_tensor(a)))
    def _A_setup():
        B, S, D = 1, 2048, 512
        return {
            "x": _w((lambda *s: torch.randn(*s, dtype=torch.bfloat16) * 0.05)(B, S, D)),
            "wqkv": _w((lambda *s: torch.randn(*s, dtype=torch.bfloat16) * 0.05)(D, 3 * D)),
            "wo": _w((lambda *s: torch.randn(*s, dtype=torch.bfloat16) * 0.05)(D, D)),
        }
    _A_in = _A_setup()

    def _B_setup():
        B, S, D, F = 1, 2048, 512, 1376
        return {
            "x": _w((lambda *s: torch.randn(*s, dtype=torch.bfloat16) * 0.05)(B, S, D)),
            "w1": _w((lambda *s: torch.randn(*s, dtype=torch.bfloat16) * 0.8)(D, F) * (2.0 / D) ** 0.5),
            "w3": _w((lambda *s: torch.randn(*s, dtype=torch.bfloat16) * 0.8)(D, F) * (2.0 / D) ** 0.5),
            "w2": _w((lambda *s: torch.randn(*s, dtype=torch.bfloat16) * 0.8)(F, D) * (2.0 / F) ** 0.5),
        }
    _B_in = _B_setup()

    return {
        "A_x": _A_in["x"],
        "A_wqkv": _A_in["wqkv"],
        "A_wo": _A_in["wo"],
        "B_x": _B_in["x"],
        "B_w1": _B_in["w1"],
        "B_w3": _B_in["w3"],
        "B_w2": _B_in["w2"],
    }

def reference(A_x, A_wqkv, A_wo, B_x, B_w1, B_w3, B_w2):
    def _A_ref(x, wqkv, wo):
        B, S, D = x.shape
        H = 32; Dh = D // H
        W, dil = 8, 2
        qkv = (lambda x, *d: x.permute(*d))((x @ wqkv).reshape(B, S, 3, H, Dh), 2, 0, 3, 1, 4)
        q, k, v = qkv[0], qkv[1], qkv[2]
        scale = Dh ** -0.5
        pos = torch.arange(S)
        off = torch.arange(W) * dil
        idx = pos[:, None] - off[None, :]
        mask = idx >= 0
        idx_c = torch.where(mask, idx, 0).reshape(-1)
        kg = k[:, :, idx_c, :].reshape(B, H, S, W, Dh)
        vg = v[:, :, idx_c, :].reshape(B, H, S, W, Dh)
        logits = torch.einsum("bhsd,bhswd->bhsw", q, kg) * scale
        logits = torch.where(mask[None, None, :, :], logits, -1e9)
        attn = _softmax(logits, axis=-1)
        o = torch.einsum("bhsw,bhswd->bhsd", attn, vg)
        return (lambda x, *d: x.permute(*d))(o, 0, 2, 1, 3).reshape(B, S, D) @ wo

    def _B_ref(x, w1, w3, w2):
        gate = torch.einsum("bsd,df->bsf", x, w1)
        up = torch.einsum("bsd,df->bsf", x, w3)
        h = _silu(gate) * up
        out = torch.einsum("bsf,fd->bsd", h, w2)
        return out

    x = A_x
    xn = _layernorm(x, axis=-1)
    return x + _A_ref(xn, A_wqkv, A_wo) + _B_ref(xn, B_w1, B_w3, B_w2)
```

```python
import sys
OUT = sys.argv[1] if len(sys.argv) > 1 else "parallel_sum__sliding_local_dilated__glu_gated_swiglu__prompt.s"
L = []
def e(s): L.append("    " + s)
def lab(s): L.append(s + ":")
def vr(b, n): return f"v[{b}:{b+n-1}]"
def ar(b, n): return f"a[{b}:{b+n-1}]"
def sr(b, n): return f"s[{b}:{b+n-1}]"

WSLOT = 18496; NW = 5
W1OFF = 0; QKVOFF = 6144; W3OFF = 12320
XBASE = 92544; XSLOT = 18432; NX = 3
MISC = XBASE + NX * XSLOT
ONES = MISC
TS = MISC + 4096
CS = MISC + 12288
SQ = CS + 1152
HS = SQ + 512
HQ = HS + 64
RS = HQ + 64
assert RS + 512 <= 163840
STG = 0; SPITCH = 272
HF_BYTES = 118 * 64 * 1024
W2F_OFF = 0x800000; W2F_BYTES = 118 * 16 * 1024
LOG2E = 1.4426950408889634
import struct
def f2u(x): return struct.unpack("<I", struct.pack("<f", x))[0]

HEADER = open("parallel_sum__sliding_local_dilated__glu_gated_swiglu__prompt.s.ref").read().split("; Override launch")[0]

def srd(d, base, nbytes):
    e(f"s_mov_b32 s{d}, s{base}")
    e(f"s_and_b32 s{d+1}, s{base+1}, 0xffff")
    e(f"s_mov_b32 s{d+2}, {nbytes}")
    e(f"s_mov_b32 s{d+3}, 0x00020000")

def weave(mf, va):
    out = []
    n = len(mf);
    per = [len(va) * (i + 1) // n - len(va) * i // n for i in range(n)]
    k = 0
    for i, m in enumerate(mf):
        out.append(m)
        out.extend(va[k:k + per[i]]); k += per[i]
    return out

def kernel1():
    S_X, S_W1, S_W3, S_QKV, S_WT, S_HF, S_W2F = 8, 12, 16, 20, 24, 28, 32
    sW, sG, sMH, sRB, sCG, sM0, sTF, sTH, sFW, sOF, sOH, sHSEL, sHAS = 52, 53, 54, 55, 56, 57, 58, 59, 60, 61, 62, 63, 64
    sRWA, sRWB, sRX, sDW, sDX, sKO1, sKOQ, sKOX, sIT, sT0, sT1, sT2, sT3 = 65, 66, 67, 68, 69, 70, 71, 72, 73, 74, 75, 76, 77
    sDMA, sMT0, sMT1, sID, sSEL9 = 78, 79, 80, 81, 82
    sDWs, sDXs = 83, 84
    sMK = 86
    sWPW, sWPX = 88, 89
    ACC = 0
    ACC9 = 64
    FX = [80, 88]
    FW = [96, 108]
    FHX, FHW, FHS = 120, 124, 128
    FSQ = 132
    F9C = 140
    vLane, vTid = 144, 145
    vDW13, vDQKV, vDX = 146, 147, 148
    vXa0, vXa1, vXs0, vXs1 = 151, 152, 153, 154
    vWA, vWB, vB9, vM9 = 155, 156, 157, 158
    vHXa, vHWa = 159, 160
    aX = 161
    aWA, aWB, a9 = 169, 170, 171
    aHX, aHW, aS0, aS1, a9c = 172, 173, 174, 175, 176
    csA, csB = 177, 178
    cs9a, cs9b = 179, 180
    sq0, sq1 = 181, 182
    hs, hq = 183, 184
    T = 186
    WT = 200
    vTA1, vTA2 = 204, 205
    vTMP = 206

    L.append(".globl k1_kernel\n.p2align 8\n.type k1_kernel,@function\nk1_kernel:")
    e("s_cmp_ge_u32 s2, 256")
    e("s_cbranch_scc1 K1_END")
    e("s_load_dwordx4 s[36:39], s[0:1], 0")
    e("s_load_dwordx2 s[40:41], s[0:1], 16")
    e("s_load_dwordx4 s[44:47], s[0:1], 32")
    e("s_load_dwordx2 s[48:49], s[0:1], 48")
    e("s_load_dwordx2 s[50:51], s[0:1], 72")
    e(f"v_mov_b32 v{vTid}, v0")
    e(f"v_and_b32 v{vLane}, 63, v0")
    e(f"v_lshrrev_b32 v{T}, 6, v0")
    e("s_and_b32 s3, s2, 7")
    e(f"v_readfirstlane_b32 s{sW}, v{T}")
    e("s_lshr_b32 s4, s2, 3")
    e("s_and_b32 s5, s3, 1")
    e("s_lshl_b32 s5, s5, 3")
    e("s_and_b32 s6, s4, 7")
    e(f"s_add_u32 s{sRB}, s5, s6")
    e("s_lshr_b32 s5, s3, 1")
    e("s_lshl_b32 s5, s5, 2")
    e("s_lshr_b32 s6, s4, 3")
    e(f"s_add_u32 s{sCG}, s5, s6")
    e(f"s_lshl_b32 s{sM0}, s{sRB}, 7")
    e(f"s_and_b32 s{sG}, s{sW}, 3")
    e(f"s_lshr_b32 s{sMH}, s{sW}, 2")
    e(f"s_lshr_b32 s3, s{sCG}, 1")
    e("s_mul_i32 s3, s3, 11")
    e(f"s_and_b32 s4, s{sCG}, 1")
    e(f"s_mul_i32 s5, s{sCG}, 5")
    e("s_add_u32 s5, s5, 6")
    e(f"s_cmp_lt_u32 s{sCG}, 12")
    e("s_cselect_b32 s3, s3, s5")
    e(f"s_cselect_b32 s{sHSEL}, s4, 0")
    e(f"s_cselect_b32 s{sHAS}, 1, 0")
    e(f"s_add_u32 s{sTH}, s3, 5")
    e(f"s_mul_i32 s4, s{sHSEL}, 6")
    e(f"s_add_u32 s{sTF}, s3, s4")
    e(f"s_lshl_b32 s5, s3, 5")
    e(f"s_mul_i32 s4, s{sHSEL}, 176")
    e(f"s_add_u32 s{sFW}, s5, s4")
    e(f"s_lshl_b32 s{sOF}, s{sHSEL}, 4")
    e(f"s_mul_i32 s4, s{sHSEL}, 160")
    e(f"s_sub_u32 s{sOH}, 160, s4")
    e(f"v_mul_u32_u24 v{T}, 43691, v{vTid}")
    e(f"v_lshrrev_b32 v{T}, 19, v{T}")
    e(f"v_mul_u32_u24 v{T+1}, 12, v{T}")
    e(f"v_sub_u32 v{T+1}, v{vTid}, v{T+1}")
    e(f"v_mul_u32_u24 v{vDW13}, 2752, v{T}")
    e(f"v_lshl_add_u32 v{vDW13}, v{T+1}, 4, v{vDW13}")
    e(f"v_add_u32 v{vDW13}, s{sFW}, v{vDW13}")
    e(f"v_mul_u32_u24 v{vDQKV}, 3072, v{T}")
    e(f"v_lshrrev_b32 v{T+2}, 2, v{T+1}")
    e(f"v_lshl_add_u32 v{vDQKV}, v{T+2}, 10, v{vDQKV}")
    e(f"v_and_b32 v{T+2}, 3, v{T+1}")
    e(f"v_lshl_add_u32 v{vDQKV}, v{T+2}, 4, v{vDQKV}")
    e(f"s_lshl_b32 s3, s{sCG}, 6")
    e(f"v_add_u32 v{vDQKV}, s3, v{vDQKV}")
    e(f"s_mul_i32 s3, s{sW}, 24")
    e(f"v_lshrrev_b32 v{T}, 3, v{vLane}")
    e(f"v_add_u32 v{T}, s3, v{T}")
    e(f"v_and_b32 v{T+1}, 7, v{vLane}")
    e(f"s_sub_u32 s4, s{sM0}, 16")
    e(f"v_mov_b32 v{T+5}, 0x80000000")
    for j in range(3):
        e(f"v_add_u32 v{T+2}, {8*j}, v{T}")
        e(f"v_bfe_u32 v{T+3}, v{T+2}, 1, 3")
        e(f"v_xor_b32 v{T+3}, v{T+3}, v{T+1}")
        e(f"v_add_u32 v{T+2}, s4, v{T+2}")
        e(f"v_lshlrev_b32 v{T+4}, 10, v{T+2}")
        e(f"v_lshl_add_u32 v{T+4}, v{T+3}, 4, v{T+4}")
        e(f"v_cmp_gt_i32 vcc, 0, v{T+2}")
        e("s_nop 1")
        e(f"v_cndmask_b32 v{vDX+j}, v{T+4}, v{T+5}, vcc")
    e(f"s_lshl_b32 s{sID}, s2, 3")
    e(f"s_add_u32 s{sID}, s{sID}, s{sW}")
    e(f"s_lshr_b32 s3, s{sID}, 4")
    e(f"s_and_b32 s4, s{sID}, 15")
    e("s_sub_u32 s5, s3, 32")
    e("s_cmp_lt_u32 s3, 32")
    e("s_cselect_b32 s5, s3, s5")
    e(f"s_cselect_b32 s{sT0}, 1, 0")
    e("s_lshl_b32 s5, s5, 14")
    e("s_lshl_b32 s4, s4, 6")
    e("s_add_u32 s5, s5, s4")
    e(f"v_lshrrev_b32 v{T}, 2, v{vLane}")
    e(f"v_lshlrev_b32 v{T}, 10, v{T}")
    e(f"v_and_b32 v{T+1}, 3, v{vLane}")
    e(f"v_lshl_add_u32 v{T}, v{T+1}, 4, v{T}")
    e(f"v_add_u32 v{T+6}, s5, v{T}")
    e("s_waitcnt lgkmcnt(0)")
    srd(S_X, 36, 2048 * 1024)
    srd(S_QKV, 38, 512 * 3072)
    srd(S_W1, 44, 512 * 2752)
    srd(S_W3, 46, 512 * 2752)
    e(f"s_cmp_eq_u32 s{sT0}, 1")
    e(f"s_cselect_b32 s{S_WT}, s40, s48")
    e(f"s_cselect_b32 s{S_WT+1}, s41, s49")
    e(f"s_and_b32 s{S_WT+1}, s{S_WT+1}, 0xffff")
    e(f"s_mov_b32 s3, {1376*1024}")
    e(f"s_cmp_eq_u32 s{sT0}, 1")
    e(f"s_cselect_b32 s{S_WT+2}, {512*1024}, s3")
    e(f"s_mov_b32 s{S_WT+3}, 0x00020000")
    e(f"buffer_load_dwordx4 {vr(WT,4)}, v{T+6}, {sr(S_WT,4)}, 0 offen")
    e(f"s_lshl_b32 s{sWPW}, s{sW}, 10")
    e(f"s_mul_i32 s{sWPX}, s{sW}, 3072")
    e(f"s_add_u32 s{sWPX}, s{sWPX}, {XBASE}")
    e(f"s_cmp_lt_u32 s{sW}, 6")
    e(f"s_cselect_b32 s{sDMA}, 1, 0")
    e("s_cbranch_scc0 K1_PRO_NODMA")
    def dmaW_imm(c):
        base = (c % NW) * WSLOT
        e(f"s_mov_b32 s3, {c*32*2752}")
        e(f"s_mov_b32 s4, {c*32*3072}")
        e(f"s_add_u32 m0, s{sWPW}, {base+W1OFF}")
        e("s_nop 0")
        e(f"buffer_load_dwordx4 v{vDW13}, {sr(S_W1,4)}, s3 offen lds")
        e(f"s_add_u32 m0, s{sWPW}, {base+QKVOFF}")
        e("s_nop 0")
        e(f"buffer_load_dwordx4 v{vDQKV}, {sr(S_QKV,4)}, s4 offen lds")
        e(f"s_add_u32 m0, s{sWPW}, {base+W3OFF}")
        e("s_nop 0")
        e(f"buffer_load_dwordx4 v{vDW13}, {sr(S_W3,4)}, s3 offen lds")
    def dmaX_imm(d):
        base = (d % NX) * XSLOT
        e(f"s_mov_b32 s3, {d*128}")
        for j in range(3):
            e(f"s_add_u32 m0, s{sWPX}, {base+1024*j}")
            e("s_nop 0")
            e(f"buffer_load_dwordx4 v{vDX+j}, {sr(S_X,4)}, s3 offen lds")
    dmaW_imm(0); dmaX_imm(0); dmaW_imm(1); dmaW_imm(2); dmaX_imm(1); dmaW_imm(3); dmaW_imm(4); dmaX_imm(2)
    lab("K1_PRO_NODMA")
    e(f"s_add_u32 s4, s50, 0")
    e(f"s_mov_b32 s{S_HF}, s50")
    e(f"s_and_b32 s{S_HF+1}, s51, 0xffff")
    e(f"s_mov_b32 s{S_HF+2}, {HF_BYTES}")
    e(f"s_mov_b32 s{S_HF+3}, 0x00020000")
    e(f"s_add_u32 s{S_W2F}, s50, {W2F_OFF}")
    e(f"s_addc_u32 s{S_W2F+1}, s51, 0")
    e(f"s_and_b32 s{S_W2F+1}, s{S_W2F+1}, 0xffff")
    e(f"s_mov_b32 s{S_W2F+2}, {W2F_BYTES}")
    e(f"s_mov_b32 s{S_W2F+3}, 0x00020000")
    e(f"v_mov_b32 v{T}, 0")
    e(f"v_lshlrev_b32 v{T+1}, 2, v{vTid}")
    e(f"v_add_u32 v{T+1}, {CS}, v{T+1}")
    e(f"ds_write_b32 v{T+1}, v{T}")
    e(f"v_mov_b32 v{T+2}, 0x3f803f80")
    e(f"v_mov_b32 v{T+3}, 0x3f803f80")
    e(f"v_mov_b32 v{T+4}, {ONES}")
    for o in (0, 768, 3072, 3840):
        e(f"ds_write_b64 v{T+4}, {vr(T+2,2)} offset:{o}")
    e(f"v_and_b32 v{T}, 31, v{vLane}")
    e(f"v_lshrrev_b32 v{T+1}, 5, v{vLane}")
    e(f"v_bfe_u32 v{T+2}, v{vLane}, 1, 3")
    e(f"v_xor_b32 v{T+2}, v{T+2}, v{T+1}")
    e(f"v_lshlrev_b32 v{T+2}, 4, v{T+2}")
    e(f"v_lshl_add_u32 v{T+2}, v{T}, 7, v{T+2}")
    e(f"s_and_b32 s3, s{sG}, 1")
    e(f"s_lshl_b32 s4, s{sMH}, 1")
    e(f"s_add_u32 s{sMT0}, s4, s3")
    e(f"s_xor_b32 s{sMT1}, s{sMT0}, 1")
    e(f"s_lshl_b32 s3, s{sMT0}, 12")
    e(f"s_add_u32 s3, s3, {16*128}")
    e(f"v_add_u32 v{vXa0}, s3, v{T+2}")
    e(f"s_lshl_b32 s3, s{sMT1}, 12")
    e(f"s_add_u32 s3, s3, {16*128}")
    e(f"v_add_u32 v{vXa1}, s3, v{T+2}")
    e(f"s_lshl_b32 s3, s{sG}, 5")
    e(f"v_xor_b32 v{vXs0}, s3, v{vXa0}")
    e(f"v_xor_b32 v{vXs1}, s3, v{vXa1}")
    e(f"v_bfe_u32 v{T}, v{vLane}, 4, 1")
    e(f"v_bfe_u32 v{T+2}, v{vLane}, 2, 2")
    e(f"v_lshl_add_u32 v{T+2}, v{T+1}, 3, v{T+2}")
    e(f"v_mul_u32_u24 v{T+2}, 192, v{T+2}")
    e(f"v_and_b32 v{T+3}, 3, v{vLane}")
    e(f"v_lshl_add_u32 v{T+4}, v{T+3}, 3, v{T+2}")
    e(f"v_lshl_add_u32 v{T+5}, v{T}, 5, v{T+4}")
    e(f"v_add_u32 v{T+5}, {QKVOFF}, v{T+5}")
    e(f"v_mul_u32_u24 v{T+7}, {W3OFF}, v{T}")
    e(f"v_add_u32 v{T+7}, v{T+7}, v{T+4}")
    e(f"v_add_u32 v{T+7}, s{sOF}, v{T+7}")
    for slot, dst in ((0, vWA), (1, vWB)):
        e(f"s_lshl_b32 s3, s{sG}, 1")
        e(f"s_add_u32 s3, s3, {slot}")
        e("s_lshl_b32 s4, s3, 6")
        e("s_sub_u32 s5, s3, 3")
        e("s_lshl_b32 s5, s5, 5")
        e("s_cmp_lt_u32 s3, 3")
        e("s_cselect_b32 s4, s4, s5")
        e(f"s_cselect_b64 {sr(sMK,2)}, -1, 0")
        e(f"v_cndmask_b32 v{dst}, v{T+7}, v{T+5}, {sr(sMK,2)}")
        e(f"v_add_u32 v{dst}, s4, v{dst}")
    e(f"v_lshrrev_b32 v{T+8}, 1, v{T+3}")
    e(f"v_mul_u32_u24 v{T+8}, {W3OFF}, v{T+8}")
    e(f"v_and_b32 v{T+9}, 1, v{T+3}")
    e(f"v_lshl_add_u32 v{T+8}, v{T+9}, 3, v{T+8}")
    e(f"v_add_u32 v{T+8}, v{T+8}, v{T+2}")
    e(f"v_add_u32 v{T+8}, s{sOH}, v{T+8}")
    e(f"v_mov_b32 v{T+9}, {ONES}")
    e(f"v_cmp_eq_u32 vcc, 1, v{T}")
    e(f"v_xor_b32 v{vM9}, 1, v{T}")
    e("s_nop 0")
    e(f"v_cndmask_b32 v{vB9}, v{T+8}, v{T+9}, vcc")
    e(f"v_and_b32 v{T}, 15, v{vLane}")
    e(f"v_lshrrev_b32 v{T+1}, 4, v{vLane}")
    e(f"v_bfe_u32 v{T+2}, v{vLane}, 1, 3")
    e(f"v_xor_b32 v{T+2}, v{T+2}, v{T+1}")
    e(f"v_lshlrev_b32 v{T+2}, 4, v{T+2}")
    e(f"v_lshl_add_u32 v{vHXa}, v{T}, 7, v{T+2}")
    e(f"v_bfe_u32 v{T+2}, v{vLane}, 2, 2")
    e(f"v_lshl_add_u32 v{T+2}, v{T+1}, 3, v{T+2}")
    e(f"v_mul_u32_u24 v{T+2}, 192, v{T+2}")
    e(f"v_lshl_add_u32 v{T+2}, v{T+3}, 3, v{T+2}")
    e(f"s_lshl_b32 s3, s{sG}, 5")
    e(f"s_add_u32 s3, s3, {QKVOFF+64}")
    e(f"v_add_u32 v{vHWa}, s3, v{T+2}")
    e(f"v_bfe_u32 v{T}, v{vLane}, 4, 1")
    e(f"v_lshrrev_b32 v{T+1}, 5, v{vLane}")
    e(f"v_bfe_u32 v{T+2}, v{vLane}, 2, 2")
    e(f"s_cmp_eq_u32 s{sT0}, 1")
    e("s_cselect_b32 s3, 3, 2")
    e("s_movk_i32 s4, 512")
    e("s_cselect_b32 s4, 256, s4")
    e(f"v_lshlrev_b32 v{T+1}, s3, v{T+1}")
    e(f"v_add_u32 v{T+1}, v{T+1}, v{T+2}")
    e(f"v_lshlrev_b32 v{T+1}, 6, v{T+1}")
    e(f"v_lshl_add_u32 v{T+1}, v{T}, 5, v{T+1}")
    e(f"v_lshl_add_u32 v{T+1}, v{T+3}, 3, v{T+1}")
    e(f"s_add_u32 s5, s{sWPW}, {TS}")
    e(f"v_add_u32 v{vTA1}, s5, v{T+1}")
    e(f"v_add_u32 v{vTA2}, s4, v{vTA1}")
    for r in (csA, csB, cs9a, cs9b, sq0, sq1, hs, hq):
        e(f"v_mov_b32 v{r}, 0")
    e(f"s_mov_b32 s{sRWA}, 0")
    e(f"s_mov_b32 s{sRWB}, {WSLOT}")
    e(f"s_mov_b32 s{sRX}, {XBASE}")
    e(f"s_mov_b32 s{sDWs}, 0")
    e(f"s_mov_b32 s{sDXs}, 0")
    e(f"s_mov_b32 s{sKO1}, {5*32*2752}")
    e(f"s_mov_b32 s{sKOQ}, {5*32*3072}")
    e(f"s_mov_b32 s{sKOX}, {3*128}")
    e(f"s_mov_b32 s{sIT}, 1")
    e(f"s_lshr_b32 s3, s{sG}, 1")
    e(f"s_cmp_eq_u32 s3, s{sMH}")
    e("s_cbranch_scc0 K1_ROLEH")

    uid = [0]
    def adv(sreg, step, lim):
        e(f"s_add_u32 s{sreg}, s{sreg}, {step}")
        e(f"s_sub_u32 s{sT1}, s{sreg}, {lim}")
        e(f"s_cmp_ge_u32 s{sreg}, {lim}")
        e(f"s_cselect_b32 s{sreg}, s{sT1}, s{sreg}")
    def dma_loop(withX):
        uid[0] += 1
        lb = f"K1_ND{uid[0]}"
        e(f"s_cmp_eq_u32 s{sDMA}, 0")
        e(f"s_cbranch_scc1 {lb}")
        e(f"s_add_u32 s{sT2}, s{sDWs}, s{sWPW}")
        e(f"s_add_u32 m0, s{sT2}, {W1OFF}")
        e("s_nop 0")
        e(f"buffer_load_dwordx4 v{vDW13}, {sr(S_W1,4)}, s{sKO1} offen lds")
        e(f"s_add_u32 m0, s{sT2}, {QKVOFF}")
        e("s_nop 0")
        e(f"buffer_load_dwordx4 v{vDQKV}, {sr(S_QKV,4)}, s{sKOQ} offen lds")
        e(f"s_add_u32 m0, s{sT2}, {W3OFF}")
        e("s_nop 0")
        e(f"buffer_load_dwordx4 v{vDW13}, {sr(S_W3,4)}, s{sKO1} offen lds")
        e(f"s_add_u32 s{sKO1}, s{sKO1}, {32*2752}")
        e(f"s_add_u32 s{sKOQ}, s{sKOQ}, {32*3072}")
        adv(sDWs, WSLOT, NW * WSLOT)
        if withX:
            e(f"s_add_u32 s{sT2}, s{sDXs}, s{sWPX}")
            e(f"s_cmp_ge_u32 s{sKOX}, 1024")
            e(f"s_cselect_b32 s{sT3}, 0x40000000, s{sKOX}")
            for j in range(3):
                e(f"s_add_u32 m0, s{sT2}, {1024*j}")
                e("s_nop 0")
                e(f"buffer_load_dwordx4 v{vDX+j}, {sr(S_X,4)}, s{sT3} offen lds")
            e(f"s_add_u32 s{sKOX}, s{sKOX}, 128")
            adv(sDXs, XSLOT, NX * XSLOT)
        lab(lb)

    def x_addrs():
        e(f"v_add_u32 v{aX}, s{sRX}, v{vXa0}")
        e(f"v_add_u32 v{aX+4}, s{sRX}, v{vXa1}")
        for ks in range(1, 4):
            e(f"v_xor_b32 v{aX+ks}, {32*ks}, v{aX}")
            e(f"v_xor_b32 v{aX+4+ks}, {32*ks}, v{aX+4}")
        e(f"v_add_u32 v{aS0}, s{sRX}, v{vXs0}")
        e(f"v_add_u32 v{aS1}, s{sRX}, v{vXs1}")
    def w_addrs(srw, role9):
        e(f"v_add_u32 v{aWA}, s{srw}, v{vWA}")
        e(f"v_add_u32 v{aWB}, s{srw}, v{vWB}")
        if role9:
            e(f"v_mad_u32_u24 v{a9}, v{vM9}, s{srw}, v{vB9}")
        else:
            e(f"v_add_u32 v{aHW}, s{srw}, v{vHWa}")
    def reads(st, ks4, role9):
        ks = ks4 & 1
        o = 3072 * ks
        e(f"ds_read_b128 {vr(FX[st],4)}, v{aX+ks4}")
        e(f"ds_read_b64_tr_b16 {vr(FW[st],2)}, v{aWA} offset:{o}")
        e(f"ds_read_b64_tr_b16 {vr(FW[st]+2,2)}, v{aWA} offset:{o+768}")
        e(f"ds_read_b128 {vr(FX[st]+4,4)}, v{aX+4+ks4}")
        e(f"ds_read_b64_tr_b16 {vr(FW[st]+4,2)}, v{aWB} offset:{o}")
        e(f"ds_read_b64_tr_b16 {vr(FW[st]+6,2)}, v{aWB} offset:{o+768}")
        if role9:
            e(f"ds_read_b64_tr_b16 {vr(FW[st]+8,2)}, v{a9} offset:{o}")
            e(f"ds_read_b64_tr_b16 {vr(FW[st]+10,2)}, v{a9} offset:{o+768}")
        else:
            if ks == 0:
                e(f"ds_read_b128 {vr(FHX,4)}, v{aHX}")
                e(f"ds_read_b32 v{FHS}, v{aHX+0} offset:0")
            else:
                e(f"ds_read_b64_tr_b16 {vr(FHW,2)}, v{aHW}")
                e(f"ds_read_b64_tr_b16 {vr(FHW+2,2)}, v{aHW} offset:768")
        return 8
    tcnt = [0]
    def unpack_add(src, n, accl, acch):
        va = []
        for i in range(n):
            t = T + 2 * (tcnt[0] % 4); tcnt[0] += 1
            va.append(f"v_lshlrev_b32 v{t}, 16, v{src+i}")
            va.append(f"v_and_b32 v{t+1}, 0xffff0000, v{src+i}")
            va.append(f"v_add_f32 v{accl}, v{accl}, v{t}")
            va.append(f"v_add_f32 v{acch}, v{acch}, v{t+1}")
        return va
    def unpack_sq(src, n, acc):
        va = []
        for i in range(n):
            t = T + 2 * (tcnt[0] % 4); tcnt[0] += 1
            va.append(f"v_lshlrev_b32 v{t}, 16, v{src+i}")
            va.append(f"v_and_b32 v{t+1}, 0xffff0000, v{src+i}")
            va.append(f"v_fmac_f32 v{acc}, v{t}, v{t}")
            va.append(f"v_fmac_f32 v{acc}, v{t+1}, v{t+1}")
        return va
    def mfmas(st, ks4, role9, first, extra_va=()):
        z = first and ks4 == 0
        def c(b): return "0" if z else vr(b, 16)
        mf = []
        mf.append(f"v_mfma_f32_32x32x16_bf16 {vr(ACC,16)}, {vr(FW[st],4)}, {vr(FX[st],4)}, {c(ACC)}")
        mf.append(f"v_mfma_f32_32x32x16_bf16 {vr(ACC+16,16)}, {vr(FW[st],4)}, {vr(FX[st]+4,4)}, {c(ACC+16)}")
        mf.append(f"v_mfma_f32_32x32x16_bf16 {vr(ACC+32,16)}, {vr(FW[st]+4,4)}, {vr(FX[st],4)}, {c(ACC+32)}")
        mf.append(f"v_mfma_f32_32x32x16_bf16 {vr(ACC+48,16)}, {vr(FW[st]+4,4)}, {vr(FX[st]+4,4)}, {c(ACC+48)}")
        va = []
        if role9:
            mf.append(f"v_mfma_f32_32x32x16_bf16 {vr(ACC9,16)}, {vr(FW[st]+8,4)}, {vr(FX[st],4)}, {c(ACC9)}")
            va += unpack_add(FW[st], 4, csA, csB)
        else:
            va += unpack_add(FW[st] + 4, 4, csA, csB)
            if ks4 & 1:
                zc = "0" if (first and ks4 == 1) else vr(ACC9, 4)
                mf.append(f"v_mfma_f32_16x16x32_bf16 {vr(ACC9,4)}, {vr(FHW,4)}, {vr(FHX,4)}, {zc}")
                t = T + 8
                va += [f"v_lshlrev_b32 v{t}, 16, v{FHS}", f"v_and_b32 v{t+1}, 0xffff0000, v{FHS}",
                       f"v_add_f32 v{hs}, v{hs}, v{t}", f"v_fmac_f32 v{hq}, v{t}, v{t}",
                       f"v_add_f32 v{hs}, v{hs}, v{t+1}", f"v_fmac_f32 v{hq}, v{t+1}, v{t+1}"]
        va += list(extra_va)
        for s in weave(mf, va): e(s)
    def halo_addr(c2):
        e(f"v_add_u32 v{aHX}, s{sRX}, v{vHXa}")
        if c2: e(f"v_xor_b32 v{aHX}, 64, v{aHX}")

    def iteration(role9, first):
        reads(1, 1, role9)
        e(f"ds_read_b128 {vr(FSQ,4)}, v{aS0}")
        e(f"ds_read_b128 {vr(FSQ+4,4)}, v{aS1}")
        e("s_waitcnt lgkmcnt(10)")
        mfmas(0, 0, role9, first)
        e(f"s_waitcnt vmcnt({15 if first else 9})")
        e("s_barrier")
        if not first: dma_loop(True)
        w_addrs(sRWB, role9)
        e("s_waitcnt lgkmcnt(2)")
        if not role9:
            pass
        if role9:
            reads(0, 2, role9)
            mfmas(1, 1, role9, first)
        else:
            e(f"ds_read_b128 {vr(FX[0],4)}, v{aX+2}")
            e(f"ds_read_b64_tr_b16 {vr(FW[0],2)}, v{aWA}")
            e(f"ds_read_b64_tr_b16 {vr(FW[0]+2,2)}, v{aWA} offset:768")
            e(f"ds_read_b128 {vr(FX[0]+4,4)}, v{aX+4+2}")
            e(f"ds_read_b64_tr_b16 {vr(FW[0]+4,2)}, v{aWB}")
            e(f"ds_read_b64_tr_b16 {vr(FW[0]+6,2)}, v{aWB} offset:768")
            mfmas(1, 1, role9, first)
            halo_addr(1)
            e(f"v_add_u32 v{T+10}, s{sT0}, v{aHX}")
            e(f"ds_read_b128 {vr(FHX,4)}, v{aHX}")
            e(f"ds_read_b32 v{FHS}, v{T+10}")
        if first:
            uid[0] += 1
            lb = f"K1_TJ{uid[0]}"
            e(f"s_cmp_eq_u32 s{sDMA}, 1")
            e(f"s_cbranch_scc1 {lb}")
            e("s_waitcnt vmcnt(0)")
            lab(lb)
            e(f"v_lshlrev_b32 v{T+10}, 4, v{vLane}")
            e(f"s_add_u32 s3, s{sWPW}, {TS}")
            e(f"v_add_u32 v{T+11}, s3, v{T+10}")
            e(f"ds_write_b128 v{T+11}, {vr(WT,4)}")
            e("s_waitcnt lgkmcnt(0)")
            e(f"ds_read_b64_tr_b16 {vr(WT,2)}, v{vTA1}")
            e(f"ds_read_b64_tr_b16 {vr(WT+2,2)}, v{vTA2}")
            e(f"s_lshl_b32 s3, s{sID}, 10")
            e("s_waitcnt lgkmcnt(0)")
            e(f"buffer_store_dwordx4 {vr(WT,4)}, v{T+10}, {sr(S_W2F,4)}, s3 offen")
        reads(1, 3, role9)
        if not role9:
            e(f"s_cmp_lt_u32 s{sG}, 2")
            e(f"s_cselect_b32 s{sT1}, s{sRWA}, s{sRWB}")
            e(f"s_add_u32 s{sT1}, s{sT1}, s{sSEL9}")
            e(f"v_mad_u32_u24 v{a9c}, v{vM9}, s{sT1}, v{vB9}")
            e(f"ds_read_b64_tr_b16 {vr(F9C,2)}, v{a9c}")
            e(f"ds_read_b64_tr_b16 {vr(F9C+2,2)}, v{a9c} offset:768")
            e("s_waitcnt lgkmcnt(10)")
        else:
            e("s_waitcnt lgkmcnt(8)")
        mfmas(0, 2, role9, False, unpack_sq(FSQ, 4, sq0) + unpack_sq(FSQ + 4, 4, sq1))
        adv(sRWA, 2 * WSLOT, NW * WSLOT)
        adv(sRWB, 2 * WSLOT, NW * WSLOT)
        e(f"s_add_u32 s{sRX}, s{sRX}, {XSLOT}")
        e(f"s_cmp_ge_u32 s{sRX}, {XBASE+NX*XSLOT}")
        e(f"s_cselect_b32 s{sRX}, {XBASE}, s{sRX}")
        e("s_waitcnt lgkmcnt(0)")
        e("s_waitcnt vmcnt(9)")
        e("s_barrier")
        dma_loop(False)
        x_addrs()
        w_addrs(sRWA, role9)
        if role9:
            reads(0, 0, role9)
            mfmas(1, 3, role9, False)
        else:
            e(f"ds_read_b128 {vr(FX[0],4)}, v{aX}")
            e(f"ds_read_b64_tr_b16 {vr(FW[0],2)}, v{aWA}")
            e(f"ds_read_b64_tr_b16 {vr(FW[0]+2,2)}, v{aWA} offset:768")
            e(f"ds_read_b128 {vr(FX[0]+4,4)}, v{aX+4}")
            e(f"ds_read_b64_tr_b16 {vr(FW[0]+4,2)}, v{aWB}")
            e(f"ds_read_b64_tr_b16 {vr(FW[0]+6,2)}, v{aWB} offset:768")
            mfmas(1, 3, role9, False, unpack_add(F9C, 4, cs9a, cs9b))
            halo_addr(0)
            e(f"v_add_u32 v{T+10}, s{sT0}, v{aHX}")
            e(f"ds_read_b128 {vr(FHX,4)}, v{aHX}")
            e(f"ds_read_b32 v{FHS}, v{T+10}")

    def mainloop(role9):
        nm = "9" if role9 else "H"
        if not role9:
            e(f"s_lshl_b32 s{sT0}, s{sG}, 2")
            e(f"s_and_b32 s{sSEL9}, s{sG}, 1")
            e(f"s_mul_i32 s{sSEL9}, s{sSEL9}, 3072")
        x_addrs()
        w_addrs(sRWA, role9)
        if not role9:
            halo_addr(0)
            e(f"v_add_u32 v{T+10}, s{sT0}, v{aHX}")
        e("s_waitcnt vmcnt(18) lgkmcnt(0)")
        e("s_barrier")
        if role9:
            reads(0, 0, role9)
        else:
            e(f"ds_read_b128 {vr(FX[0],4)}, v{aX}")
            e(f"ds_read_b64_tr_b16 {vr(FW[0],2)}, v{aWA}")
            e(f"ds_read_b64_tr_b16 {vr(FW[0]+2,2)}, v{aWA} offset:768")
            e(f"ds_read_b128 {vr(FX[0]+4,4)}, v{aX+4}")
            e(f"ds_read_b64_tr_b16 {vr(FW[0]+4,2)}, v{aWB}")
            e(f"ds_read_b64_tr_b16 {vr(FW[0]+6,2)}, v{aWB} offset:768")
            e(f"ds_read_b128 {vr(FHX,4)}, v{aHX}")
            e(f"ds_read_b32 v{FHS}, v{T+10}")
        iteration(role9, True)
        lab(f"K1_LOOP{nm}")
        iteration(role9, False)
        e(f"s_add_u32 s{sIT}, s{sIT}, 1")
        e(f"s_cmp_lt_u32 s{sIT}, 8")
        e(f"s_cbranch_scc1 K1_LOOP{nm}")
        e("s_waitcnt vmcnt(0) lgkmcnt(0)")
        e(f"v_and_b32 v{T}, 31, v{vLane}")
        e(f"v_lshlrev_b32 v{T}, 2, v{T}")
        e(f"v_add_f32 v{csA}, v{csA}, v{csB}")
        e(f"s_lshl_b32 s3, s{sG}, 8")
        e(f"s_add_u32 s3, s3, {CS + (0 if role9 else 128)}")
        e(f"v_add_u32 v{T+1}, s3, v{T}")
        e(f"ds_add_f32 v{T+1}, v{csA}")
        e(f"s_lshl_b32 s3, s{sMT0}, 7")
        e(f"s_lshl_b32 s4, s{sMT1}, 7")
        e(f"v_add_u32 v{T+2}, s3, v{T}")
        e(f"v_add_u32 v{T+3}, s4, v{T}")
        e(f"v_add_u32 v{T+4}, {SQ}, v{T+2}")
        e(f"v_add_u32 v{T+5}, {SQ}, v{T+3}")
        e(f"ds_add_f32 v{T+4}, v{sq0}")
        e(f"ds_add_f32 v{T+5}, v{sq1}")
        if role9:
            e(f"v_add_u32 v{T+6}, {RS}, v{T+2}")
            e("s_nop 7")
            e(f"ds_write_b32 v{T+6}, v{ACC9+8}")
        else:
            e(f"v_add_f32 v{cs9a}, v{cs9a}, v{cs9b}")
            e(f"v_add_u32 v{T+6}, {CS+1024}, v{T}")
            e(f"ds_add_f32 v{T+6}, v{cs9a}")
            e(f"v_and_b32 v{T+7}, 15, v{vLane}")
            e(f"v_lshlrev_b32 v{T+7}, 2, v{T+7}")
            e(f"v_add_u32 v{T+7}, {HS}, v{T+7}")
            e(f"ds_add_f32 v{T+7}, v{hs}")
            e(f"ds_add_f32 v{T+7}, v{hq} offset:64")
        e(f"s_mov_b32 s{sT3}, {1 if role9 else 0}")
        e("s_branch K1_EPI")

    mainloop(True)
    lab("K1_ROLEH")
    mainloop(False)

    lab("K1_EPI")
    sROLE = sT3
    CA, CB = 80, 96
    C9 = 112
    ST = 120
    RAW = 132
    e("s_waitcnt lgkmcnt(0)")
    e("s_barrier")
    e(f"v_add_u32 v{T+4}, {RS}, v{T+2}")
    e(f"v_add_u32 v{T+5}, {RS}, v{T+3}")
    e(f"ds_read_b32 v{RAW}, v{T+4}")
    e(f"ds_read_b32 v{RAW+1}, v{T+5}")
    e(f"ds_read_b32 v{RAW+2}, v{T+4} offset:{SQ-RS+65536}" if False else f"v_add_u32 v{T+6}, {SQ}, v{T+2}")
    e(f"v_add_u32 v{T+7}, {SQ}, v{T+3}")
    e(f"ds_read_b32 v{RAW+2}, v{T+6}")
    e(f"ds_read_b32 v{RAW+3}, v{T+7}")
    e(f"v_and_b32 v{T+8}, 15, v{vLane}")
    e(f"v_lshlrev_b32 v{T+8}, 2, v{T+8}")
    e(f"v_add_u32 v{T+8}, {HS}, v{T+8}")
    e(f"ds_read_b32 v{RAW+4}, v{T+8}")
    e(f"ds_read_b32 v{RAW+5}, v{T+8} offset:64")
    e(f"v_lshrrev_b32 v{T+9}, 5, v{vLane}")
    e(f"v_lshlrev_b32 v{T+10}, 4, v{T+9}")
    e(f"s_lshl_b32 s3, s{sG}, 8")
    e(f"s_add_u32 s3, s3, {CS}")
    e(f"v_add_u32 v{T+11}, s3, v{T+10}")
    for q in range(4):
        e(f"ds_read_b128 {vr(CA+4*q,4)}, v{T+11} offset:{32*q}")
    for q in range(4):
        e(f"ds_read_b128 {vr(CB+4*q,4)}, v{T+11} offset:{128+32*q}")
    e(f"v_add_u32 v{T+12}, {CS+1024}, v{T+10}")
    e(f"v_lshrrev_b32 v{T+13}, 4, v{vLane}")
    e(f"v_lshlrev_b32 v{T+13}, 4, v{T+13}")
    e(f"s_lshl_b32 s3, s{sG}, 6")
    e(f"s_add_u32 s3, s3, {CS+128}")
    e(f"v_add_u32 v{T+13}, s3, v{T+13}")
    e(f"s_cmp_eq_u32 s{sROLE}, 1")
    e(f"s_cselect_b64 {sr(sMK,2)}, -1, 0")
    e(f"v_cndmask_b32 v{T+12}, v{T+13}, v{T+12}, {sr(sMK,2)}")
    e("s_waitcnt lgkmcnt(8)")
    e(f"ds_read_b128 {vr(C9,4)}, v{T+12}")
    e(f"ds_read_b128 {vr(C9+4,4)}, v{T+12} offset:32")
    def stats(rs, sq, o):
        t = vTMP
        e(f"v_mul_f32 v{t}, {f2u(1/512):#x}, v{rs}")
        e(f"v_mul_f32 v{t+1}, {f2u(1/512):#x}, v{sq}")
        e(f"v_fma_f32 v{t+1}, -v{t}, v{t}, v{t+1}")
        e(f"v_max_f32 v{t+1}, 0, v{t+1}")
        e(f"v_cvt_pk_bf16_f32 v{t+2}, v{t}, v{t+1}")
        e(f"v_lshlrev_b32 v{t}, 16, v{t+2}")
        e(f"v_and_b32 v{t+1}, 0xffff0000, v{t+2}")
        e(f"v_add_f32 v{t+1}, {f2u(1e-5):#x}, v{t+1}")
        e(f"v_cvt_pk_bf16_f32 v{t+2}, v{t+1}, v{t+1}")
        e(f"v_and_b32 v{t+1}, 0xffff0000, v{t+2}")
        e(f"v_sqrt_f32 v{t+1}, v{t+1}")
        e(f"v_xor_b32 v{o+1}, 0x80000000, v{t}")
        e(f"v_cvt_pk_bf16_f32 v{t+2}, v{t+1}, v{t+1}")
        e(f"v_and_b32 v{t+1}, 0xffff0000, v{t+2}")
        e(f"v_rcp_f32 v{o}, v{t+1}")
        e(f"v_mul_f32 v{o+3}, v{t+1}, v{t+1}")
        e(f"v_mul_f32 v{o+2}, {f2u(-LOG2E):#x}, v{o}")
    stats(RAW, RAW + 2, ST)
    stats(RAW + 1, RAW + 3, ST + 4)
    stats(RAW + 4, RAW + 5, ST + 8)
    e(f"v_and_b32 v{T}, 31, v{vLane}")
    e(f"v_mul_u32_u24 v{T}, {SPITCH}, v{T}")
    e(f"v_lshl_add_u32 v{T+1}, v{T+9}, 3, v{T}")
    e(f"v_lshl_add_u32 v{T+2}, v{T+9}, 4, v{T}")
    e(f"s_mul_i32 s3, s{sMT0}, {32*SPITCH}")
    e(f"s_add_u32 s3, s3, {STG+16*SPITCH}")
    e(f"s_mul_i32 s4, s{sMT1}, {32*SPITCH}")
    e(f"s_add_u32 s4, s4, {STG+16*SPITCH}")
    e(f"v_add_u32 v{T+3}, s3, v{T+1}")
    e(f"v_add_u32 v{T+4}, s4, v{T+1}")
    e(f"v_add_u32 v{T+5}, s3, v{T+2}")
    e(f"v_add_u32 v{T+6}, s4, v{T+2}")
    e(f"v_lshlrev_b32 v{T+7}, 4, v{vLane}")
    e(f"s_lshl_b32 s5, s{sRB}, 2")
    e(f"s_add_u32 s{sT1}, s5, s{sMT0}")
    e(f"s_add_u32 s{sT2}, s5, s{sMT1}")
    e("s_waitcnt lgkmcnt(0)")
    def ln16(R, C, st, n, dst):
        for i in range(n):
            e(f"v_fma_f32 v{dst+i}, v{C+i}, v{st+1}, v{R+i}")
        for i in range(n):
            e(f"v_mul_f32 v{dst+i}, v{st}, v{dst+i}")
    def tile_qk(R, C, st, addr, sec):
        t = vTMP
        ln16(R, C, st, 16, t)
        for q in range(4):
            e(f"v_cvt_pk_bf16_f32 v{t+16+2*q}, v{t+4*q}, v{t+4*q+1}")
            e(f"v_cvt_pk_bf16_f32 v{t+17+2*q}, v{t+4*q+2}, v{t+4*q+3}")
        for q in range(4):
            e(f"ds_write_b64 v{addr}, {vr(t+16+2*q,2)} offset:{sec*64+16*q}")
    def tile_v(R, C, st, addr):
        t = vTMP + 24
        ln16(R, C, st, 16, t)
        for q in range(4):
            e(f"ds_write_b128 v{addr}, {vr(t+4*q,4)} offset:{128+32*q}")
    def silu(R, C, st, n, goff, uoff, t):
        for i in range(n):
            e(f"v_fma_f32 v{t+i}, v{C+goff+i}, v{st+1}, v{R+goff+i}")
        for i in range(n):
            e(f"v_mul_f32 v{t+n+i}, v{st+2}, v{t+i}")
        for i in range(n):
            e(f"v_exp_f32 v{t+n+i}, v{t+n+i}")
        for i in range(n):
            e(f"v_fma_f32 v{t+2*n+i}, v{C+uoff+i}, v{st+1}, v{R+uoff+i}")
        for i in range(n):
            e(f"v_fma_f32 v{t+n+i}, v{t+n+i}, v{st+3}, v{st+3}")
        for i in range(n):
            e(f"v_rcp_f32 v{t+n+i}, v{t+n+i}")
        for i in range(n):
            e(f"v_mul_f32 v{t+i}, v{t+i}, v{t+2*n+i}")
        for i in range(n):
            e(f"v_mul_f32 v{t+i}, v{t+i}, v{t+n+i}")
        for i in range(n // 2):
            e(f"v_cvt_pk_bf16_f32 v{t+3*n+i}, v{t+2*i}, v{t+2*i+1}")
    def tile_ffn(R, C, st, smt, tau_s, tbase):
        silu(R, C, st, 8, 0, 8, tbase)
        e(f"s_add_u32 s3, s{tau_s}, s{smt}")
        e("s_lshl_b32 s3, s3, 10")
        e(f"buffer_store_dwordx4 {vr(tbase+24,4)}, v{T+7}, {sr(S_HF,4)}, s3 offen")
    e(f"s_lshl_b32 s6, s{sG}, 1")
    e(f"s_add_u32 s6, s6, s{sTF}")
    e("s_add_u32 s6, s6, 29")
    e("s_lshl_b32 s6, s6, 6")
    e("s_add_u32 s7, s6, 64")
    e(f"s_cmp_eq_u32 s{sG}, 0")
    e("s_cbranch_scc1 K1_E_G0")
    e(f"s_cmp_eq_u32 s{sG}, 1")
    e("s_cbranch_scc1 K1_E_G1")
    tile_ffn(ACC, CA, ST, sT1, 6, vTMP)
    tile_ffn(ACC + 16, CA, ST + 4, sT2, 6, vTMP - 62)
    e("s_branch K1_E_B")
    lab("K1_E_G1")
    tile_v(ACC, CA, ST, T + 5)
    e("s_nop 1")
    tile_v(ACC + 16, CA, ST + 4, T + 6)
    lab("K1_E_B")
    tile_ffn(ACC + 32, CB, ST, sT1, 7, vTMP)
    tile_ffn(ACC + 48, CB, ST + 4, sT2, 7, vTMP - 62)
    e("s_branch K1_E_C")
    lab("K1_E_G0")
    tile_qk(ACC, CA, ST, T + 3, 0)
    tile_qk(ACC + 16, CA, ST + 4, T + 4, 0)
    tile_qk(ACC + 32, CB, ST, T + 3, 1)
    tile_qk(ACC + 48, CB, ST + 4, T + 4, 1)
    lab("K1_E_C")
    e(f"s_cmp_eq_u32 s{sROLE}, 1")
    e("s_cbranch_scc0 K1_E_HALO")
    e(f"s_cmp_eq_u32 s{sHAS}, 1")
    e("s_cbranch_scc0 K1_E_D")
    e("s_nop 1")
    silu(ACC9, C9, ST, 4, 0, 4, vTMP)
    e(f"s_add_u32 s3, s{sTH}, 32")
    e("s_lshl_b32 s3, s3, 6")
    e(f"s_add_u32 s3, s3, s{sT1}")
    e("s_lshl_b32 s3, s3, 10")
    e(f"s_lshl_b32 s4, s{sHSEL}, 3")
    e("s_add_u32 s3, s3, s4")
    e(f"buffer_store_dwordx2 {vr(vTMP+12,2)}, v{T+7}, {sr(S_HF,4)}, s3 offen")
    e("s_branch K1_E_D")
    lab("K1_E_HALO")
    t = vTMP + 40
    ln16(ACC9, C9, ST + 8, 4, t)
    e(f"v_and_b32 v{T}, 63, v0") if False else None
    e(f"v_lshrrev_b32 v{T+8}, 4, v{T+7}")
    e(f"v_and_b32 v{T}, 15, v{T+8}")
    e(f"v_mul_u32_u24 v{T}, {SPITCH}, v{T}")
    e(f"v_lshrrev_b32 v{T+1}, 4, v{T+8}")
    e(f"s_cmp_lt_u32 s{sG}, 2")
    e("s_cbranch_scc0 K1_E_HV")
    e(f"v_cvt_pk_bf16_f32 v{t+4}, v{t}, v{t+1}")
    e(f"v_cvt_pk_bf16_f32 v{t+5}, v{t+2}, v{t+3}")
    e(f"v_lshl_add_u32 v{T}, v{T+1}, 3, v{T}")
    e(f"s_lshl_b32 s3, s{sG}, 5")
    e(f"s_add_u32 s3, s3, {STG+64}")
    e(f"v_add_u32 v{T}, s3, v{T}")
    e(f"ds_write_b64 v{T}, {vr(t+4,2)}")
    e("s_branch K1_E_D")
    lab("K1_E_HV")
    e(f"v_lshl_add_u32 v{T}, v{T+1}, 4, v{T}")
    e(f"s_lshl_b32 s3, s{sG}, 6")
    e(f"s_add_u32 s3, s3, {STG+128-128}")
    e(f"v_add_u32 v{T}, s3, v{T}")
    e(f"ds_write_b128 v{T}, {vr(t,4)}")
    lab("K1_E_D")
    Q = 0; KK = 4; VV = 36; P = 100; O = 112; A2 = 120
    e(f"v_lshrrev_b32 v{T+8}, 4, v{T+7}")
    e(f"v_and_b32 v{T}, 31, v{T+8}")
    e(f"v_lshrrev_b32 v{T+1}, 5, v{T+8}")
    e(f"s_lshr_b32 s3, s{sW}, 1")
    e(f"s_and_b32 s4, s{sW}, 1")
    e(f"v_mul_u32_u24 v{T+2}, {SPITCH}, v{T}")
    e(f"s_mul_i32 s5, s3, {32*SPITCH}")
    e(f"s_add_u32 s5, s5, {STG+2*SPITCH}")
    e("s_lshl_b32 s6, s4, 5")
    e("s_add_u32 s6, s6, s5")
    e(f"v_lshl_add_u32 v{T+3}, v{T+1}, 4, v{T+2}")
    e(f"v_add_u32 v{T+3}, s6, v{T+3}")
    e("s_lshl_b32 s6, s4, 6")
    e("s_add_u32 s6, s6, s5")
    e(f"v_lshl_add_u32 v{T+4}, v{T+1}, 5, v{T+2}")
    e(f"v_add_u32 v{T+4}, s6, v{T+4}")
    e("s_lshl_b32 s5, s3, 5")
    e(f"s_add_u32 s5, s5, s{sM0}")
    e(f"v_add_u32 v{T+5}, s5, v{T}")
    e(f"v_lshlrev_b32 v{T+6}, 1, v{T+1}")
    e(f"v_sub_u32 v{T+5}, v{T+5}, v{T+6}")
    e(f"s_lshl_b32 s5, s{sCG}, 1")
    e("s_add_u32 s5, s5, s4")
    e("s_lshl_b32 s5, s5, 6")
    e(f"s_lshl_b32 s6, s{sRB}, 2")
    e("s_add_u32 s5, s5, s6")
    e("s_add_u32 s5, s5, s3")
    e(f"s_lshl_b32 s{sT1}, s5, 10")
    e("s_waitcnt lgkmcnt(0)")
    e("s_barrier")
    e(f"ds_read_b128 {vr(Q,4)}, v{T+3} offset:{14*SPITCH}")
    for w in range(8):
        e(f"ds_read_b128 {vr(KK+4*w,4)}, v{T+3} offset:{(14-2*w)*SPITCH+64}")
    for w in range(3):
        e(f"ds_read_b128 {vr(VV+8*w,4)}, v{T+4} offset:{(14-2*w)*SPITCH+128}")
        e(f"ds_read_b128 {vr(VV+8*w+4,4)}, v{T+4} offset:{(14-2*w)*SPITCH+144}")
    for w in range(8):
        e(f"s_waitcnt lgkmcnt({min(15, 13-w)})")
        e(f"v_dot2_f32_bf16 v{P+w}, v{Q}, v{KK+4*w}, 0")
        for i in range(1, 4):
            e(f"v_dot2_f32_bf16 v{P+w}, v{Q+i}, v{KK+4*w+i}, v{P+w}")
    for w in range(3, 8):
        e(f"ds_read_b128 {vr(VV+8*w,4)}, v{T+4} offset:{(14-2*w)*SPITCH+128}")
        e(f"ds_read_b128 {vr(VV+8*w+4,4)}, v{T+4} offset:{(14-2*w)*SPITCH+144}")
    e("s_nop 2")
    for i in range(4):
        e(f"v_permlane32_swap_b32 v{P+2*i}, v{P+2*i+1}")
    e(f"v_mov_b32 v{T+9}, {f2u(-1e9):#x}")
    for i in range(4):
        e(f"v_add_f32 v{P+2*i}, v{P+2*i}, v{P+2*i+1}")
    for i in range(4):
        e(f"v_cmp_le_i32 vcc, {4*i}, v{T+5}")
        e(f"v_mul_f32 v{P+2*i}, 0.25, v{P+2*i}") if False else e(f"v_mul_f32 v{P+2*i}, {f2u(0.25):#x}, v{P+2*i}")
        e("s_nop 0")
        e(f"v_cndmask_b32 v{P+2*i}, v{T+9}, v{P+2*i}, vcc")
    e(f"v_max3_f32 v{P+1}, v{P}, v{P+2}, v{P+4}")
    e(f"v_max_f32 v{P+1}, v{P+1}, v{P+6}")
    e(f"v_mov_b32 v{P+3}, v{P+1}")
    e("s_nop 1")
    e(f"v_permlane32_swap_b32 v{P+1}, v{P+3}")
    e("s_nop 0")
    e(f"v_max_f32 v{P+1}, v{P+1}, v{P+3}")
    for i in range(4):
        e(f"v_sub_f32 v{P+2*i}, v{P+2*i}, v{P+1}")
    for i in range(4):
        e(f"v_mul_f32 v{P+2*i}, {f2u(LOG2E):#x}, v{P+2*i}")
    for i in range(4):
        e(f"v_exp_f32 v{P+2*i}, v{P+2*i}")
    e("s_nop 0")
    e(f"v_add_f32 v{P+1}, v{P}, v{P+2}")
    e(f"v_add_f32 v{P+3}, v{P+4}, v{P+6}")
    e(f"v_add_f32 v{P+1}, v{P+1}, v{P+3}")
    e(f"v_mov_b32 v{P+3}, v{P+1}")
    e("s_nop 1")
    e(f"v_permlane32_swap_b32 v{P+1}, v{P+3}")
    e("s_nop 0")
    e(f"v_add_f32 v{P+8}, v{P+1}, v{P+3}")
    e(f"v_rcp_f32 v{P+8}, v{P+8}")
    e("s_nop 0")
    for i in range(4):
        e(f"v_mul_f32 v{P+2*i}, v{P+2*i}, v{P+8}")
    for i in range(4):
        e(f"v_mov_b32 v{P+2*i+1}, v{P+2*i}")
    e("s_nop 1")
    for i in range(4):
        e(f"v_permlane32_swap_b32 v{P+2*i}, v{P+2*i+1}")
    e("s_nop 0")
    for w in range(8):
        e(f"s_waitcnt lgkmcnt({14-2*w})")
        for d in range(8):
            if w == 0:
                e(f"v_mul_f32 v{O+d}, v{P}, v{VV+d}")
            else:
                e(f"v_fmac_f32 v{O+d}, v{P+w}, v{VV+8*w+d}")
    for i in range(4):
        e(f"v_cvt_pk_bf16_f32 v{A2+i}, v{O+2*i}, v{O+2*i+1}")
    e(f"buffer_store_dwordx4 {vr(A2,4)}, v{T+7}, {sr(S_HF,4)}, s{sT1} offen")
    lab("K1_END")
    e("s_endpgm")

def kernel2():
    S_HF, S_W2F, S_X, S_O = 8, 12, 16, 20
    sW, sMB, sNB, sKH, sKW = 30, 31, 32, 33, 34
    ACC = 0
    vLane, vH0, vH1, vW0, vW1, vXO = 64, 65, 66, 67, 68, 69
    XR = 72
    T = 80
    RD = 96
    NK = 30; D = 15
    L.append(".globl k2_kernel\n.p2align 8\n.type k2_kernel,@function\nk2_kernel:")
    e("s_cmp_ge_u32 s2, 256")
    e("s_cbranch_scc1 K2_END")
    e("s_load_dwordx2 s[36:37], s[0:1], 0")
    e("s_load_dwordx2 s[38:39], s[0:1], 56")
    e("s_load_dwordx2 s[40:41], s[0:1], 72")
    e(f"v_and_b32 v{vLane}, 63, v0")
    e(f"v_lshrrev_b32 v{T}, 6, v0")
    e("s_and_b32 s3, s2, 7")
    e(f"v_readfirstlane_b32 s{sW}, v{T}")
    e("s_lshr_b32 s4, s2, 3")
    e("s_and_b32 s5, s3, 1")
    e("s_lshl_b32 s5, s5, 1")
    e("s_bfe_u32 s6, s3, 0x10001")
    e("s_add_u32 s5, s5, s6")
    e("s_lshl_b32 s5, s5, 3")
    e("s_and_b32 s6, s4, 7")
    e(f"s_add_u32 s{sMB}, s5, s6")
    e("s_lshr_b32 s5, s3, 2")
    e("s_lshl_b32 s5, s5, 2")
    e("s_lshr_b32 s6, s4, 3")
    e(f"s_add_u32 s{sNB}, s5, s6")
    e(f"v_lshlrev_b32 v{T}, 4, v{vLane}")
    e(f"s_lshr_b32 s3, s{sW}, 1")
    e(f"s_and_b32 s4, s{sW}, 1")
    e(f"s_lshl_b32 s5, s{sMB}, 1")
    e("s_add_u32 s5, s5, s3")
    e("s_lshl_b32 s6, s5, 10")
    e(f"v_add_u32 v{vH0}, s6, v{T}")
    e("s_xor_b32 s6, s6, 1024")
    e(f"v_add_u32 v{vH1}, s6, v{T}")
    e(f"s_lshl_b32 s7, s{sNB}, 1")
    e("s_add_u32 s7, s7, s4")
    e("s_lshl_b32 s6, s7, 10")
    e(f"v_add_u32 v{vW0}, s6, v{T}")
    e("s_xor_b32 s6, s6, 1024")
    e(f"v_add_u32 v{vW1}, s6, v{T}")
    e(f"v_and_b32 v{T+1}, 31, v{vLane}")
    e(f"v_lshrrev_b32 v{T+2}, 5, v{vLane}")
    e(f"v_lshlrev_b32 v{T+1}, 10, v{T+1}")
    e(f"v_lshl_add_u32 v{T+1}, v{T+2}, 3, v{T+1}")
    e("s_lshl_b32 s5, s5, 15")
    e("s_lshl_b32 s7, s7, 6")
    e("s_add_u32 s5, s5, s7")
    e(f"v_add_u32 v{vXO}, s5, v{T+1}")
    e(f"s_lshl_b32 s{sKH}, s{sW}, 16")
    e(f"s_lshl_b32 s{sKW}, s{sW}, 14")
    e("s_waitcnt lgkmcnt(0)")
    e(f"s_mov_b32 s{S_HF}, s40")
    e(f"s_and_b32 s{S_HF+1}, s41, 0xffff")
    e(f"s_mov_b32 s{S_HF+2}, {HF_BYTES}")
    e(f"s_mov_b32 s{S_HF+3}, 0x00020000")
    e(f"s_add_u32 s{S_W2F}, s40, {W2F_OFF}")
    e(f"s_addc_u32 s{S_W2F+1}, s41, 0")
    e(f"s_and_b32 s{S_W2F+1}, s{S_W2F+1}, 0xffff")
    e(f"s_mov_b32 s{S_W2F+2}, {W2F_BYTES}")
    e(f"s_mov_b32 s{S_W2F+3}, 0x00020000")
    srd(S_X, 36, 2048 * 1024)
    srd(S_O, 38, 2048 * 1024)
    def loads(i):
        b = 16 * (i % D)
        e(f"buffer_load_dwordx4 {ar(b,4)}, v{vW0}, {sr(S_W2F,4)}, s{sKW} offen")
        e(f"buffer_load_dwordx4 {ar(b+4,4)}, v{vH0}, {sr(S_HF,4)}, s{sKH} offen")
        e(f"buffer_load_dwordx4 {ar(b+8,4)}, v{vH1}, {sr(S_HF,4)}, s{sKH} offen")
        e(f"buffer_load_dwordx4 {ar(b+12,4)}, v{vW1}, {sr(S_W2F,4)}, s{sKW} offen")
        e(f"s_add_u32 s{sKH}, s{sKH}, {4*65536}")
        e(f"s_add_u32 s{sKW}, s{sKW}, {4*16384}")
    for i in range(D): loads(i)
    issued = D
    for i in range(NK):
        b = 16 * (i % D)
        out = 4 * (issued - i - 1)
        if i == NK - 6:
            pass
        e(f"s_waitcnt vmcnt({min(63, out + 2)})")
        c = (lambda r: "0") if i == 0 else (lambda r: vr(r, 16))
        e(f"v_mfma_f32_32x32x16_bf16 {vr(ACC,16)}, {ar(b,4)}, {ar(b+4,4)}, {c(ACC)}")
        e(f"s_waitcnt vmcnt({min(63, out + 1)})")
        e(f"v_mfma_f32_32x32x16_bf16 {vr(ACC+32,16)}, {ar(b,4)}, {ar(b+8,4)}, {c(ACC+32)}")
        e(f"s_waitcnt vmcnt({out})")
        e(f"v_mfma_f32_32x32x16_bf16 {vr(ACC+16,16)}, {ar(b+12,4)}, {ar(b+4,4)}, {c(ACC+16)}")
        e(f"v_mfma_f32_32x32x16_bf16 {vr(ACC+48,16)}, {ar(b+12,4)}, {ar(b+8,4)}, {c(ACC+48)}")
        if issued < NK:
            loads(issued); issued += 1
    for q in range(4):
        e(f"buffer_load_dwordx2 {vr(XR+2*q,2)}, v{vXO}, {sr(S_X,4)}, 0 offen offset:{16*q}")
    for a in range(1, 4):
        e(f"s_xor_b32 s3, s{sW}, {a}")
        e("s_mul_i32 s3, s3, 12288")
        e(f"s_add_u32 s3, s3, {(a-1)*4096}")
        e(f"v_add_u32 v{T+a}, s3, v{T}")
    e(f"s_mul_i32 s3, s{sW}, 12288")
    e(f"v_add_u32 v{T+4}, s3, v{T}")
    e("s_nop 7")
    for a in (2, 1, 3):
        for q in range(4):
            e(f"ds_write_b128 v{T+a}, {vr(ACC+16*a+4*q,4)} offset:{1024*q}")
    e("s_waitcnt lgkmcnt(0)")
    e("s_barrier")
    for s in range(3):
        for q in range(4):
            e(f"ds_read_b128 {vr(RD+16*s+4*q,4)}, v{T+4} offset:{4096*s+1024*q}")
    e("s_waitcnt vmcnt(0)")
    for q in range(4):
        for i in range(2):
            e(f"v_lshlrev_b32 v{T+8}, 16, v{XR+2*q+i}")
            e(f"v_and_b32 v{T+9}, 0xffff0000, v{XR+2*q+i}")
            e(f"v_add_f32 v{ACC+4*q+2*i}, v{ACC+4*q+2*i}, v{T+8}")
            e(f"v_add_f32 v{ACC+4*q+2*i+1}, v{ACC+4*q+2*i+1}, v{T+9}")
    for s in range(3):
        e(f"s_waitcnt lgkmcnt({8-4*s})")
        for r in range(16):
            e(f"v_add_f32 v{ACC+r}, v{ACC+r}, v{RD+16*s+r}")
    for q in range(4):
        e(f"v_cvt_pk_bf16_f32 v{XR+2*q}, v{ACC+4*q}, v{ACC+4*q+1}")
        e(f"v_cvt_pk_bf16_f32 v{XR+2*q+1}, v{ACC+4*q+2}, v{ACC+4*q+3}")
    for q in range(4):
        e(f"buffer_store_dwordx2 {vr(XR+2*q,2)}, v{vXO}, {sr(S_O,4)}, 0 offen offset:{16*q}")
    lab("K2_END")
    e("s_endpgm")

def desc(name, nv, acc):
    L.append(f""".amdhsa_kernel {name}
  .amdhsa_next_free_vgpr {nv}
  .amdhsa_next_free_sgpr 102
  .amdhsa_accum_offset {acc}
  .amdhsa_group_segment_fixed_size 0
  .amdhsa_kernarg_size 80
  .amdhsa_user_sgpr_count 2
  .amdhsa_user_sgpr_kernarg_segment_ptr 1
  .amdhsa_system_sgpr_workgroup_id_x 1
.end_amdhsa_kernel""")

L.append(HEADER.rstrip())
L.append("; @launch kernel=k1_kernel grid=(256,1,1) block=(512,1,1) lds=163840")
L.append("; @launch kernel=k2_kernel grid=(256,1,1) block=(256,1,1) lds=49152")
L.append('.amdgcn_target "amdgcn-amd-amdhsa--gfx950"\n.text')
kernel1()
kernel2()
L.append('.section .rodata,"a"\n.p2align 6')
desc("k1_kernel", 256, 256)
L.append(".p2align 6")
desc("k2_kernel", 496, 256)
open(OUT, "w").write("\n".join(x for x in L if x is not None) + "\n")
print("wrote", OUT, len(L), "lines")
```

```python
import sys
OUT = sys.argv[1] if len(sys.argv) > 1 else "parallel_sum__sliding_local_dilated__glu_gated_swiglu__prompt.s"
L = []
import os
EXP = os.environ.get("EXP", "")
INLOOP = [False]
def e(s):
    if INLOOP[0]:
        if "nodma" in EXP and ("offen lds" in s): return
        if "nomfma" in EXP and s.startswith("v_mfma"): return
        if "nolds" in EXP and s.startswith("ds_read"): return
        if "novalu" in EXP and (s.startswith("v_lshlrev_b32") or s.startswith("v_and_b32") or s.startswith("v_add_f32") or s.startswith("v_fmac")): return
        if "nox" in EXP and ("offen lds" in s) and "s[8:11]" in s: return
        if "noqkv" in EXP and ("offen lds" in s) and "s[20:23]" in s: return
        if "now13" in EXP and ("offen lds" in s) and ("s[12:15]" in s or "s[16:19]" in s): return
    L.append("    " + s)
def lab(s): L.append(s + ":")
def vr(b, n): return f"v[{b}:{b+n-1}]"
def ar(b, n): return f"a[{b}:{b+n-1}]"
def sr(b, n): return f"s[{b}:{b+n-1}]"

WSLOT = 18496; NW = 5
W1OFF = 0; QKVOFF = 6144; W3OFF = 12320
XBASE = 92544; XSLOT = 18432; NX = 3
MISC = XBASE + NX * XSLOT
ONES = MISC
TS = MISC + 4096
CS = MISC + 12288
CS9 = CS + 1024
RS = CS9 + 512
SQ = MISC + 1024
HSC = RS + 512
HSC = TS
assert RS + 512 <= 163840
STG = 0; SPITCH = 272
HF_BYTES = 118 * 64 * 1024
W2F_OFF = 0x800000; W2F_BYTES = 118 * 16 * 1024
LOG2E = 1.4426950408889634
import struct
def f2u(x): return struct.unpack("<I", struct.pack("<f", x))[0]

HEADER = open("parallel_sum__sliding_local_dilated__glu_gated_swiglu__prompt.s.ref").read().split("; Override launch")[0]

def srd(d, base, nbytes):
    e(f"s_mov_b32 s{d}, s{base}")
    e(f"s_and_b32 s{d+1}, s{base+1}, 0xffff")
    e(f"s_mov_b32 s{d+2}, {nbytes}")
    e(f"s_mov_b32 s{d+3}, 0x00020000")

import os
STAMP = int(os.environ.get("STAMP", "0"))
def stamp(idx, sbase=90):
    if not STAMP: return
    e(f"s_memrealtime s[{sbase}:{sbase+1}]")
    e(f"s_memtime s[{sbase+2}:{sbase+3}]")
    e("s_waitcnt lgkmcnt(0)")
    e(f"v_writelane_b32 v{STV}, s{sbase}, {2*idx}")
    e(f"v_writelane_b32 v{STV}, s{sbase+2}, {2*idx+1}")
def stamp_flush(wsreg, off, swave, lanereg_x16=None):
    if not STAMP: return
    e(f"s_add_u32 s92, s{wsreg}, {off}")
    e(f"s_addc_u32 s93, s{wsreg+1}, 0")
    e("s_and_b32 s93, s93, 0xffff")
    e("s_mov_b32 s94, 0x100000")
    e("s_mov_b32 s95, 0x00020000")
    e(f"s_lshl_b32 s90, s2, 3")
    e(f"s_add_u32 s90, s90, s{swave}")
    e("s_lshl_b32 s90, s90, 8")
    e("v_mbcnt_lo_u32_b32 v1, -1, 0")
    e("v_mbcnt_hi_u32_b32 v1, -1, v1")
    e("v_lshlrev_b32 v1, 2, v1")
    e(f"buffer_store_dword v{STV}, v1, s[92:95], s90 offen")
STV = 255
def weave(mf, va):
    out = []
    n = len(mf);
    per = [len(va) * (i + 1) // n - len(va) * i // n for i in range(n)]
    k = 0
    for i, m in enumerate(mf):
        out.append(m)
        out.extend(va[k:k + per[i]]); k += per[i]
    return out

def kernel1():
    ROT1 = int(os.environ.get("K1ROT", "1"))
    S_X, S_W1, S_W3, S_QKV, S_WT, S_HF, S_W2F = 8, 12, 16, 20, 24, 28, 32
    sW, sG, sMH, sRB, sCG, sM0, sTF, sTH, sFW, sOF, sOH, sHSEL, sHAS = 52, 53, 54, 55, 56, 57, 58, 59, 60, 61, 62, 63, 64
    sRWA, sRWB, sRX, sKC, sKD, sKO1, sKOQ, sKOX, sIT, sT0, sT1, sT2, sT3 = 65, 66, 67, 68, 69, 70, 71, 72, 73, 74, 75, 76, 77
    sDMA, sMT0, sMT1, sID = 78, 79, 80, 81
    sDWs, sDXs = 83, 84
    sMK = 86
    sWPW, sWPX = 88, 89
    ACC = 0
    ACC9 = 64
    HST = 68
    CSA, CS9A, SQA = 80, 84, 88
    FX = [92, 100]
    FW = [108, 120]
    FHX, FHX1, FHW, FSQ, SEL = 132, 136, 140, 144, 148
    vLane, vTid = 152, 153
    vDW13, vDQKV, vDX = 154, 155, 156
    vXa0, vXa1 = 159, 160
    vWA, vWB, vB9, vM9 = 161, 162, 163, 164
    vHXa, vHWa, vMH1, vCH1, vSQa = 165, 166, 167, 168, 169
    aX = 170
    aWA, aWB, a9 = 178, 179, 180
    aHX, aHX1, aHW, aSQ = 181, 182, 183, 184
    T = 186
    WT = 200
    vTA1, vTA2 = 204, 205
    vTMP = 206

    L.append(".globl k1_kernel\n.p2align 8\n.type k1_kernel,@function\nk1_kernel:")
    e("s_cmp_ge_u32 s2, 256")
    e("s_cbranch_scc1 K1_END")
    e("s_load_dwordx4 s[36:39], s[0:1], 0")
    e("s_load_dwordx2 s[40:41], s[0:1], 16")
    e("s_load_dwordx4 s[44:47], s[0:1], 32")
    e("s_load_dwordx2 s[48:49], s[0:1], 48")
    e("s_load_dwordx2 s[50:51], s[0:1], 72")
    stamp(0)
    e(f"v_mov_b32 v{vTid}, v0")
    e(f"v_and_b32 v{vLane}, 63, v0")
    e(f"v_lshrrev_b32 v{T}, 6, v0")
    e("s_and_b32 s3, s2, 7")
    e(f"v_readfirstlane_b32 s{sW}, v{T}")
    e("s_lshr_b32 s4, s2, 3")
    e("s_and_b32 s5, s3, 1")
    e("s_lshl_b32 s5, s5, 3")
    e("s_and_b32 s6, s4, 7")
    e(f"s_add_u32 s{sRB}, s5, s6")
    e("s_lshr_b32 s5, s3, 1")
    e("s_lshl_b32 s5, s5, 2")
    e("s_lshr_b32 s6, s4, 3")
    e(f"s_add_u32 s{sCG}, s5, s6")
    e("s_lshl_b32 s6, s6, 1")
    e("s_add_u32 s6, s6, s4")
    e(f"s_mul_i32 s6, s6, {ROT1}")
    e(f"s_and_b32 s{sKD}, s6, 7")
    e(f"s_lshl_b32 s{sKC}, s{sKD}, 1")
    e(f"s_lshl_b32 s{sM0}, s{sRB}, 7")
    e(f"s_and_b32 s{sG}, s{sW}, 3")
    e(f"s_lshr_b32 s{sMH}, s{sW}, 2")
    e(f"s_lshr_b32 s3, s{sCG}, 1")
    e("s_mul_i32 s3, s3, 11")
    e(f"s_and_b32 s4, s{sCG}, 1")
    e(f"s_mul_i32 s5, s{sCG}, 5")
    e("s_add_u32 s5, s5, 6")
    e(f"s_cmp_lt_u32 s{sCG}, 12")
    e("s_cselect_b32 s3, s3, s5")
    e(f"s_cselect_b32 s{sHSEL}, s4, 0")
    e(f"s_cselect_b32 s{sHAS}, 1, 0")
    e(f"s_add_u32 s{sTH}, s3, 5")
    e(f"s_mul_i32 s4, s{sHSEL}, 6")
    e(f"s_add_u32 s{sTF}, s3, s4")
    e(f"s_lshl_b32 s5, s3, 5")
    e(f"s_mul_i32 s4, s{sHSEL}, 176")
    e(f"s_add_u32 s{sFW}, s5, s4")
    e(f"s_lshl_b32 s{sOF}, s{sHSEL}, 4")
    e(f"s_mul_i32 s4, s{sHSEL}, 160")
    e(f"s_sub_u32 s{sOH}, 160, s4")
    e(f"v_mul_u32_u24 v{T}, 43691, v{vTid}")
    e(f"v_lshrrev_b32 v{T}, 19, v{T}")
    e(f"v_mul_u32_u24 v{T+1}, 12, v{T}")
    e(f"v_sub_u32 v{T+1}, v{vTid}, v{T+1}")
    e(f"v_mul_u32_u24 v{vDW13}, 2752, v{T}")
    e(f"v_lshl_add_u32 v{vDW13}, v{T+1}, 4, v{vDW13}")
    e(f"v_add_u32 v{vDW13}, s{sFW}, v{vDW13}")
    e(f"v_mul_u32_u24 v{vDQKV}, 3072, v{T}")
    e(f"v_lshrrev_b32 v{T+2}, 2, v{T+1}")
    e(f"v_lshl_add_u32 v{vDQKV}, v{T+2}, 10, v{vDQKV}")
    e(f"v_and_b32 v{T+2}, 3, v{T+1}")
    e(f"v_lshl_add_u32 v{vDQKV}, v{T+2}, 4, v{vDQKV}")
    e(f"s_lshl_b32 s3, s{sCG}, 6")
    e(f"v_add_u32 v{vDQKV}, s3, v{vDQKV}")
    e(f"s_mul_i32 s3, s{sW}, 24")
    e(f"v_lshrrev_b32 v{T}, 3, v{vLane}")
    e(f"v_add_u32 v{T}, s3, v{T}")
    e(f"v_and_b32 v{T+1}, 7, v{vLane}")
    e(f"s_sub_u32 s4, s{sM0}, 16")
    e(f"v_mov_b32 v{T+5}, 0x80000000")
    for j in range(3):
        e(f"v_add_u32 v{T+2}, {8*j}, v{T}")
        e(f"v_bfe_u32 v{T+3}, v{T+2}, 1, 3")
        e(f"v_xor_b32 v{T+3}, v{T+3}, v{T+1}")
        e(f"v_add_u32 v{T+2}, s4, v{T+2}")
        e(f"v_lshlrev_b32 v{T+4}, 10, v{T+2}")
        e(f"v_lshl_add_u32 v{T+4}, v{T+3}, 4, v{T+4}")
        e(f"v_cmp_gt_i32 vcc, 0, v{T+2}")
        e("s_nop 1")
        e(f"v_cndmask_b32 v{vDX+j}, v{T+4}, v{T+5}, vcc")
    e(f"s_lshl_b32 s{sID}, s2, 3")
    e(f"s_add_u32 s{sID}, s{sID}, s{sW}")
    e(f"s_lshr_b32 s3, s{sID}, 4")
    e(f"s_and_b32 s4, s{sID}, 15")
    e("s_sub_u32 s5, s3, 32")
    e("s_cmp_lt_u32 s3, 32")
    e("s_cselect_b32 s5, s3, s5")
    e(f"s_cselect_b32 s{sT0}, 1, 0")
    e("s_lshl_b32 s5, s5, 14")
    e("s_lshl_b32 s4, s4, 6")
    e("s_add_u32 s5, s5, s4")
    e(f"v_lshrrev_b32 v{T}, 2, v{vLane}")
    e(f"v_lshlrev_b32 v{T}, 10, v{T}")
    e(f"v_and_b32 v{T+1}, 3, v{vLane}")
    e(f"v_lshl_add_u32 v{T}, v{T+1}, 4, v{T}")
    e(f"v_add_u32 v{T+6}, s5, v{T}")
    e(f"s_lshl_b32 s{sWPW}, s{sW}, 10")
    e(f"s_mul_i32 s{sWPX}, s{sW}, 3072")
    e(f"s_add_u32 s{sWPX}, s{sWPX}, {XBASE}")
    e(f"s_mov_b32 s{sDWs}, s{sWPW}")
    e(f"s_mov_b32 s{sDXs}, s{sWPX}")
    e("s_waitcnt lgkmcnt(0)")
    srd(S_X, 36, 2048 * 1024)
    srd(S_QKV, 38, 512 * 3072)
    srd(S_W1, 44, 512 * 2752)
    srd(S_W3, 46, 512 * 2752)
    def dmaW():
        e(f"s_mul_i32 s{sKO1}, s{sKC}, {32*2752}")
        e(f"s_mul_i32 s{sKOQ}, s{sKC}, {32*3072}")
        e(f"s_add_u32 m0, s{sDWs}, {W1OFF}")
        e(f"s_add_u32 s{sKC}, s{sKC}, 1")
        e(f"buffer_load_dwordx4 v{vDW13}, {sr(S_W1,4)}, s{sKO1} offen lds")
        e(f"s_add_u32 m0, s{sDWs}, {QKVOFF}")
        e(f"s_and_b32 s{sKC}, s{sKC}, 15")
        e(f"buffer_load_dwordx4 v{vDQKV}, {sr(S_QKV,4)}, s{sKOQ} offen lds")
        e(f"s_add_u32 m0, s{sDWs}, {W3OFF}")
        e(f"s_add_u32 s{sDWs}, s{sDWs}, {WSLOT}")
        e(f"buffer_load_dwordx4 v{vDW13}, {sr(S_W3,4)}, s{sKO1} offen lds")
        e(f"s_cmp_ge_u32 s{sDWs}, {NW*WSLOT}")
        e(f"s_cselect_b32 s{sDWs}, s{sWPW}, s{sDWs}")
    def dmaX():
        e(f"s_lshl_b32 s{sKOX}, s{sKD}, 7")
        e(f"s_add_u32 m0, s{sDXs}, 0")
        e(f"s_add_u32 s{sKD}, s{sKD}, 1")
        e(f"buffer_load_dwordx4 v{vDX}, {sr(S_X,4)}, s{sKOX} offen lds")
        e(f"s_add_u32 m0, s{sDXs}, 1024")
        e(f"s_and_b32 s{sKD}, s{sKD}, 7")
        e(f"buffer_load_dwordx4 v{vDX+1}, {sr(S_X,4)}, s{sKOX} offen lds")
        e(f"s_add_u32 m0, s{sDXs}, 2048")
        e(f"s_add_u32 s{sDXs}, s{sDXs}, {XSLOT}")
        e(f"buffer_load_dwordx4 v{vDX+2}, {sr(S_X,4)}, s{sKOX} offen lds")
        e(f"s_cmp_ge_u32 s{sDXs}, {XBASE+NX*XSLOT}")
        e(f"s_cselect_b32 s{sDXs}, s{sWPX}, s{sDXs}")
    e(f"s_cmp_lt_u32 s{sW}, 6")
    e(f"s_cselect_b32 s{sDMA}, 1, 0")
    e("s_cbranch_scc0 K1_PRO_NODMA0")
    dmaW(); dmaX(); dmaW()
    lab("K1_PRO_NODMA0")
    e(f"s_cmp_eq_u32 s{sT0}, 1")
    e(f"s_cselect_b32 s{S_WT}, s40, s48")
    e(f"s_cselect_b32 s{S_WT+1}, s41, s49")
    e(f"s_and_b32 s{S_WT+1}, s{S_WT+1}, 0xffff")
    e(f"s_mov_b32 s3, {1376*1024}")
    e(f"s_cmp_eq_u32 s{sT0}, 1")
    e(f"s_cselect_b32 s{S_WT+2}, {512*1024}, s3")
    e(f"s_mov_b32 s{S_WT+3}, 0x00020000")
    e(f"s_mov_b32 s{S_HF}, s50")
    e(f"s_and_b32 s{S_HF+1}, s51, 0xffff")
    e(f"s_mov_b32 s{S_HF+2}, {HF_BYTES}")
    e(f"s_mov_b32 s{S_HF+3}, 0x00020000")
    e(f"s_add_u32 s{S_W2F}, s50, {W2F_OFF}")
    e(f"s_addc_u32 s{S_W2F+1}, s51, 0")
    e(f"s_and_b32 s{S_W2F+1}, s{S_W2F+1}, 0xffff")
    e(f"s_mov_b32 s{S_W2F+2}, {W2F_BYTES}")
    e(f"s_mov_b32 s{S_W2F+3}, 0x00020000")
    for i in range(4): e(f"v_mov_b32 v{T+8+i}, 0x3f803f80")
    e(f"v_mov_b32 v{T+4}, {ONES}")
    e(f"ds_write_b128 v{T+4}, {vr(T+8,4)}")
    for o in (768, 3072, 3840):
        e(f"ds_write_b64 v{T+4}, {vr(T+8,2)} offset:{o}")
    e(f"v_and_b32 v{T}, 31, v{vLane}")
    e(f"v_lshrrev_b32 v{T+1}, 5, v{vLane}")
    e(f"v_bfe_u32 v{T+2}, v{vLane}, 1, 3")
    e(f"v_xor_b32 v{T+2}, v{T+2}, v{T+1}")
    e(f"v_lshlrev_b32 v{T+2}, 4, v{T+2}")
    e(f"v_lshl_add_u32 v{T+2}, v{T}, 7, v{T+2}")
    e(f"s_and_b32 s3, s{sG}, 1")
    e(f"s_lshl_b32 s4, s{sMH}, 1")
    e(f"s_add_u32 s{sMT0}, s4, s3")
    e(f"s_xor_b32 s{sMT1}, s{sMT0}, 1")
    e(f"s_lshl_b32 s3, s{sMT0}, 12")
    e(f"s_add_u32 s3, s3, {16*128}")
    e(f"v_add_u32 v{vXa0}, s3, v{T+2}")
    e(f"s_lshl_b32 s3, s{sMT1}, 12")
    e(f"s_add_u32 s3, s3, {16*128}")
    e(f"v_add_u32 v{vXa1}, s3, v{T+2}")
    e(f"v_bfe_u32 v{T}, v{vLane}, 4, 1")
    e(f"v_bfe_u32 v{T+2}, v{vLane}, 2, 2")
    e(f"v_lshl_add_u32 v{T+2}, v{T+1}, 3, v{T+2}")
    e(f"v_mul_u32_u24 v{T+2}, 192, v{T+2}")
    e(f"v_and_b32 v{T+3}, 3, v{vLane}")
    e(f"v_lshl_add_u32 v{T+4}, v{T+3}, 3, v{T+2}")
    e(f"v_lshl_add_u32 v{T+5}, v{T}, 5, v{T+4}")
    e(f"v_add_u32 v{T+5}, {QKVOFF}, v{T+5}")
    e(f"v_mul_u32_u24 v{T+7}, {W3OFF}, v{T}")
    e(f"v_add_u32 v{T+7}, v{T+7}, v{T+4}")
    e(f"v_add_u32 v{T+7}, s{sOF}, v{T+7}")
    for slot, dst in ((0, vWA), (1, vWB)):
        e(f"s_lshl_b32 s3, s{sG}, 1")
        e(f"s_add_u32 s3, s3, {slot}")
        e("s_lshl_b32 s4, s3, 6")
        e("s_sub_u32 s5, s3, 3")
        e("s_lshl_b32 s5, s5, 5")
        e("s_cmp_lt_u32 s3, 3")
        e("s_cselect_b32 s4, s4, s5")
        e(f"s_cselect_b64 {sr(sMK,2)}, -1, 0")
        e(f"v_cndmask_b32 v{dst}, v{T+7}, v{T+5}, {sr(sMK,2)}")
        e(f"v_add_u32 v{dst}, s4, v{dst}")
    e(f"v_lshrrev_b32 v{T+8}, 1, v{T+3}")
    e(f"v_mul_u32_u24 v{T+8}, {W3OFF}, v{T+8}")
    e(f"v_and_b32 v{T+9}, 1, v{T+3}")
    e(f"v_lshl_add_u32 v{T+8}, v{T+9}, 3, v{T+8}")
    e(f"v_add_u32 v{T+8}, v{T+8}, v{T+2}")
    e(f"v_add_u32 v{T+8}, s{sOH}, v{T+8}")
    e(f"v_mov_b32 v{T+9}, {ONES}")
    e(f"v_cmp_eq_u32 vcc, 1, v{T}")
    e(f"v_xor_b32 v{vM9}, 1, v{T}")
    e("s_nop 0")
    e(f"v_cndmask_b32 v{vB9}, v{T+8}, v{T+9}, vcc")
    e(f"buffer_load_dwordx4 {vr(WT,4)}, v{T+6}, {sr(S_WT,4)}, 0 offen")
    e(f"s_cmp_eq_u32 s{sDMA}, 1")
    e("s_cbranch_scc0 K1_PRO_NODMA1")
    dmaW(); dmaX(); dmaW(); dmaW(); dmaX()
    lab("K1_PRO_NODMA1")
    e(f"v_and_b32 v{T}, 15, v{vLane}")
    e(f"v_lshrrev_b32 v{T+1}, 4, v{vLane}")
    e(f"v_bfe_u32 v{T+2}, v{vLane}, 1, 3")
    e(f"v_xor_b32 v{T+2}, v{T+2}, v{T+1}")
    e(f"v_lshlrev_b32 v{T+2}, 4, v{T+2}")
    e(f"v_lshl_add_u32 v{vHXa}, v{T}, 7, v{T+2}")
    e(f"s_lshl_b32 s3, s{sW}, 11")
    e(f"s_add_u32 s3, s3, 2048")
    e(f"v_add_u32 v{vSQa}, s3, v{vHXa}")
    e(f"v_cmp_eq_u32 vcc, 0, v{T}")
    e(f"v_mov_b32 v{T+4}, 0")
    e(f"v_mov_b32 v{T+5}, 1")
    e(f"v_cndmask_b32 v{vCH1}, v{T+4}, v{T+9}, vcc")
    e(f"v_cndmask_b32 v{vMH1}, v{T+5}, v{T+4}, vcc")
    e(f"v_and_b32 v{T+5}, 1, v{T+1}")
    e(f"v_cmp_eq_u32 vcc, v{T+5}, v{T}")
    e(f"v_mov_b32 v{T+5}, 0x3f803f80")
    e("s_nop 0")
    for i in range(4): e(f"v_cndmask_b32 v{SEL+i}, v{T+4}, v{T+5}, vcc")
    e(f"v_bfe_u32 v{T+2}, v{vLane}, 2, 2")
    e(f"v_lshl_add_u32 v{T+2}, v{T+1}, 3, v{T+2}")
    e(f"v_mul_u32_u24 v{T+2}, 192, v{T+2}")
    e(f"v_lshl_add_u32 v{T+2}, v{T+3}, 3, v{T+2}")
    e(f"s_lshl_b32 s3, s{sG}, 5")
    e(f"s_add_u32 s3, s3, {QKVOFF+64}")
    e(f"v_add_u32 v{vHWa}, s3, v{T+2}")
    e(f"v_bfe_u32 v{T}, v{vLane}, 4, 1")
    e(f"v_lshrrev_b32 v{T+1}, 5, v{vLane}")
    e(f"v_bfe_u32 v{T+2}, v{vLane}, 2, 2")
    e(f"s_cmp_eq_u32 s{sT0}, 1")
    e("s_cselect_b32 s3, 3, 2")
    e("s_movk_i32 s4, 512")
    e("s_cselect_b32 s4, 256, s4")
    e(f"v_lshlrev_b32 v{T+1}, s3, v{T+1}")
    e(f"v_add_u32 v{T+1}, v{T+1}, v{T+2}")
    e(f"v_lshlrev_b32 v{T+1}, 6, v{T+1}")
    e(f"v_lshl_add_u32 v{T+1}, v{T}, 5, v{T+1}")
    e(f"v_lshl_add_u32 v{T+1}, v{T+3}, 3, v{T+1}")
    e(f"s_add_u32 s5, s{sWPW}, {TS}")
    e(f"v_add_u32 v{vTA1}, s5, v{T+1}")
    e(f"v_add_u32 v{vTA2}, s4, v{vTA1}")
    for r in range(0, 92): e(f"v_mov_b32 v{r}, 0")
    for r in list(range(FX[1], FX[1]+8)) + list(range(FW[1], FW[1]+12)) + list(range(FHX, FHX+16)): e(f"v_mov_b32 v{r}, 0")
    e(f"s_mov_b32 s{sRWA}, 0")
    e(f"s_mov_b32 s{sRWB}, {WSLOT}")
    e(f"s_mov_b32 s{sRX}, {XBASE}")
    e(f"s_mov_b32 s{sIT}, 0")
    e(f"s_lshr_b32 s3, s{sG}, 1")
    e(f"s_cmp_eq_u32 s3, s{sMH}")
    e("s_cbranch_scc0 K1_ROLEH")

    uid = [0]
    def adv(sreg, step, lim):
        e(f"s_add_u32 s{sreg}, s{sreg}, {step}")
        e(f"s_sub_u32 s{sT1}, s{sreg}, {lim}")
        e(f"s_cmp_ge_u32 s{sreg}, {lim}")
        e(f"s_cselect_b32 s{sreg}, s{sT1}, s{sreg}")
    def dma_loop(withX, lo, hi):
        uid[0] += 1
        lb = f"K1_ND{uid[0]}"
        e(f"s_cmp_eq_u32 s{sDMA}, 0")
        e(f"s_cbranch_scc1 {lb}")
        e(f"s_sub_u32 s{sT2}, s{sIT}, {lo}")
        e(f"s_cmp_gt_u32 s{sT2}, {hi-lo}")
        e(f"s_cbranch_scc1 {lb}")
        dmaW()
        if withX: dmaX()
        lab(lb)
    def vwait(first, steady, tail):
        uid[0] += 1
        lb = f"K1_VW{uid[0]}"
        if first is not None:
            e(f"s_waitcnt vmcnt({first})")
            e(f"s_cmp_eq_u32 s{sIT}, 0")
            e(f"s_cbranch_scc1 {lb}")
        e(f"s_waitcnt vmcnt({steady})")
        for th, n in tail:
            e(f"s_cmp_lt_u32 s{sIT}, {th}")
            e(f"s_cbranch_scc1 {lb}")
            e(f"s_waitcnt vmcnt({n})")
        lab(lb)
    def x_addrs():
        r = [f"v_add_u32 v{aX}, s{sRX}, v{vXa0}", f"v_add_u32 v{aX+4}, s{sRX}, v{vXa1}"]
        for ks in range(1, 4):
            r.append(f"v_xor_b32 v{aX+ks}, {32*ks}, v{aX}")
            r.append(f"v_xor_b32 v{aX+4+ks}, {32*ks}, v{aX+4}")
        return r
    def chunk_addrs(srw, c2, role9):
        r = [f"v_add_u32 v{aWA}, s{srw}, v{vWA}", f"v_add_u32 v{aWB}, s{srw}, v{vWB}"]
        if role9:
            r.append(f"v_mad_u32_u24 v{a9}, v{vM9}, s{srw}, v{vB9}")
        else:
            r.append(f"v_add_u32 v{aHW}, s{srw}, v{vHWa}")
            r.append(f"v_add_u32 v{aHX}, s{sRX}, v{vHXa}")
            if c2: r.append(f"v_xor_b32 v{aHX}, 64, v{aHX}")
            r.append(f"v_mad_u32_u24 v{aHX1}, v{vMH1}, v{aHX}, v{vCH1}")
        r.append(f"v_add_u32 v{aSQ}, s{sRX}, v{vSQa}")
        if c2: r.append(f"v_xor_b32 v{aSQ}, 64, v{aSQ}")
        return r
    def reads(st, ks4, role9):
        ks = ks4 & 1
        o = 3072 * ks
        r = [f"ds_read_b128 {vr(FX[st],4)}, v{aX+ks4}",
             f"ds_read_b64_tr_b16 {vr(FW[st],2)}, v{aWA} offset:{o}",
             f"ds_read_b64_tr_b16 {vr(FW[st]+2,2)}, v{aWA} offset:{o+768}",
             f"ds_read_b128 {vr(FX[st]+4,4)}, v{aX+4+ks4}",
             f"ds_read_b64_tr_b16 {vr(FW[st]+4,2)}, v{aWB} offset:{o}",
             f"ds_read_b64_tr_b16 {vr(FW[st]+6,2)}, v{aWB} offset:{o+768}"]
        if role9:
            r += [f"ds_read_b64_tr_b16 {vr(FW[st]+8,2)}, v{a9} offset:{o}",
                  f"ds_read_b64_tr_b16 {vr(FW[st]+10,2)}, v{a9} offset:{o+768}"]
        return r
    def side_reads(role9):
        r = [f"ds_read_b128 {vr(FSQ,4)}, v{aSQ}"]
        if not role9:
            r += [f"ds_read_b128 {vr(FHX,4)}, v{aHX}", f"ds_read_b128 {vr(FHX1,4)}, v{aHX1}",
                  f"ds_read_b64_tr_b16 {vr(FHW,2)}, v{aHW}", f"ds_read_b64_tr_b16 {vr(FHW+2,2)}, v{aHW} offset:768"]
        return r
    def mfma_list(st, ks4, role9):
        mf = [f"v_mfma_f32_32x32x16_bf16 {vr(ACC,16)}, {vr(FW[st],4)}, {vr(FX[st],4)}, {vr(ACC,16)}",
              f"v_mfma_f32_32x32x16_bf16 {vr(ACC+16,16)}, {vr(FW[st],4)}, {vr(FX[st]+4,4)}, {vr(ACC+16,16)}",
              f"v_mfma_f32_32x32x16_bf16 {vr(ACC+32,16)}, {vr(FW[st]+4,4)}, {vr(FX[st],4)}, {vr(ACC+32,16)}",
              f"v_mfma_f32_32x32x16_bf16 {vr(ACC+48,16)}, {vr(FW[st]+4,4)}, {vr(FX[st]+4,4)}, {vr(ACC+48,16)}"]
        small = []
        if role9:
            mf.append(f"v_mfma_f32_32x32x16_bf16 {vr(ACC9,16)}, {vr(FW[st]+8,4)}, {vr(FX[st],4)}, {vr(ACC9,16)}")
            small.append(f"v_mfma_f32_16x16x32_bf16 {vr(CSA,4)}, {vr(FW[st],4)}, {vr(SEL,4)}, {vr(CSA,4)}")
        else:
            small.append(f"v_mfma_f32_16x16x32_bf16 {vr(CSA,4)}, {vr(FW[st]+4,4)}, {vr(SEL,4)}, {vr(CSA,4)}")
        if ks4 & 1:
            small.append(f"v_mfma_f32_16x16x32_bf16 {vr(SQA,4)}, {vr(FSQ,4)}, {vr(FSQ,4)}, {vr(SQA,4)}")
            if not role9:
                small.append(f"v_mfma_f32_16x16x32_bf16 {vr(ACC9,4)}, {vr(FHW,4)}, {vr(FHX,4)}, {vr(ACC9,4)}")
                small.append(f"v_mfma_f32_16x16x32_bf16 {vr(HST,4)}, {vr(FHX1,4)}, {vr(FHX,4)}, {vr(HST,4)}")
        return small, mf
    def group(st, ks4, role9, fill):
        small, mf = mfma_list(st, ks4, role9)
        MODE = os.environ.get("GMODE", "weave")
        def c9():
            if role9:
                uid[0] += 1
                lb = f"K1_C9{uid[0]}"
                e(f"s_cmp_eq_u32 s{sG}, {ks4}")
                e(f"s_cbranch_scc0 {lb}")
                e(f"v_mfma_f32_16x16x32_bf16 {vr(CS9A,4)}, {vr(FW[st]+8,4)}, {vr(SEL,4)}, {vr(CS9A,4)}")
                lab(lb)
        if MODE == "weave":
            for m in small: e(m)
            c9()
            n = len(mf) - 1
            per = [len(fill) * (i + 1) // n - len(fill) * i // n for i in range(n)] + [0]
            k = 0
            for i, m in enumerate(mf):
                e(m)
                for f in fill[k:k + per[i]]: e(f)
                k += per[i]
        elif MODE == "first":
            for f in fill: e(f)
            for m in mf: e(m)
            for m in small: e(m)
            c9()
        elif MODE == "one":
            e(mf[0])
            for f in fill: e(f)
            for m in mf[1:]: e(m)
            for m in small: e(m)
            c9()
        elif MODE == "two":
            e(mf[0])
            h = len(fill) // 2
            for f in fill[:h]: e(f)
            e(mf[1])
            for f in fill[h:]: e(f)
            for m in mf[2:]: e(m)
            for m in small: e(m)
            c9()

    def mainloop(role9):
        nm = "9" if role9 else "H"
        uid[0] += 1
        lb = f"K1_TJ{uid[0]}"
        e("s_waitcnt vmcnt(15)")
        e(f"s_cmp_eq_u32 s{sDMA}, 1")
        e(f"s_cbranch_scc1 {lb}")
        e("s_waitcnt vmcnt(0)")
        lab(lb)
        e(f"v_lshlrev_b32 v{T+10}, 4, v{vLane}")
        e(f"s_add_u32 s3, s{sWPW}, {TS}")
        e(f"v_add_u32 v{T+11}, s3, v{T+10}")
        e(f"ds_write_b128 v{T+11}, {vr(WT,4)}")
        e("s_waitcnt lgkmcnt(0)")
        e(f"ds_read_b64_tr_b16 {vr(WT,2)}, v{vTA1}")
        e(f"ds_read_b64_tr_b16 {vr(WT+2,2)}, v{vTA2}")
        e(f"s_lshl_b32 s3, s{sID}, 10")
        e("s_waitcnt lgkmcnt(0)")
        e(f"buffer_store_dwordx4 {vr(WT,4)}, v{T+10}, {sr(S_W2F,4)}, s3 offen")
        stamp(1)
        lab(f"K1_LOOP{nm}")
        INLOOP[0] = True
        for a_ in x_addrs() + chunk_addrs(sRWA, 0, role9): e(a_)
        e("s_waitcnt lgkmcnt(0)")
        vwait(16, 12, [(7, 3)])
        e("s_barrier")
        dma_loop(True, 1, 5)
        group(1, 3, role9, reads(0, 0, role9))
        e("s_waitcnt lgkmcnt(0)")
        group(0, 0, role9, reads(1, 1, role9) + side_reads(role9))
        for a_ in chunk_addrs(sRWB, 1, role9): e(a_)
        e("s_waitcnt lgkmcnt(0)")
        vwait(None, 15, [(6, 9), (7, 0)])
        e("s_barrier")
        dma_loop(False, 0, 5)
        group(1, 1, role9, reads(0, 2, role9))
        e("s_waitcnt lgkmcnt(0)")
        group(0, 2, role9, reads(1, 3, role9) + side_reads(role9))
        adv(sRWA, 2 * WSLOT, NW * WSLOT)
        adv(sRWB, 2 * WSLOT, NW * WSLOT)
        e(f"s_add_u32 s{sRX}, s{sRX}, {XSLOT}")
        e(f"s_cmp_ge_u32 s{sRX}, {XBASE+NX*XSLOT}")
        e(f"s_cselect_b32 s{sRX}, {XBASE}, s{sRX}")
        INLOOP[0] = False
        if STAMP:
            e("s_memtime s[92:93]")
            e(f"s_add_u32 m0, s{sIT}, 32")
            e("s_waitcnt lgkmcnt(0)")
            e(f"v_writelane_b32 v{STV}, s92, m0")
        e(f"s_add_u32 s{sIT}, s{sIT}, 1")
        e(f"s_cmp_lt_u32 s{sIT}, 8")
        e(f"s_cbranch_scc1 K1_LOOP{nm}")
        e("s_waitcnt lgkmcnt(0)")
        group(1, 3, role9, [])
        stamp(4)
        e(f"v_and_b32 v{T}, 15, v{vLane}")
        e(f"v_lshrrev_b32 v{T+1}, 4, v{vLane}")
        e(f"v_lshlrev_b32 v{T+2}, 6, v{T}")
        e(f"v_lshl_add_u32 v{T+2}, v{T+1}, 4, v{T+2}")
        e(f"s_lshl_b32 s3, s{sG}, 8")
        e(f"s_add_u32 s3, s3, {CS + (0 if role9 else 128)}")
        e(f"v_add_u32 v{T+3}, s3, v{T+2}")
        e(f"s_lshl_b32 s3, s{sG}, 7")
        e(f"s_add_u32 s3, s3, {CS9}")
        e(f"v_add_u32 v{T+4}, s3, v{T+2}")
        e(f"v_and_b32 v{T+5}, 3, v{vLane}")
        e(f"v_lshlrev_b32 v{T+6}, 2, v{vLane}")
        e(f"s_lshl_b32 s3, s{sW}, 8")
        e(f"s_add_u32 s3, s3, {SQ}")
        e(f"v_add_u32 v{T+7}, s3, v{T+6}")
        def diag(dst, src):
            e(f"v_cmp_eq_u32 vcc, 1, v{T+5}")
            e(f"v_cmp_eq_u32 {sr(sMK,2)}, 2, v{T+5}")
            e(f"v_cmp_eq_u32 s[4:5], 3, v{T+5}")
            e(f"v_cndmask_b32 v{dst}, v{src}, v{src+1}, vcc")
            e(f"v_cndmask_b32 v{dst}, v{dst}, v{src+2}, {sr(sMK,2)}")
            e(f"v_cndmask_b32 v{dst}, v{dst}, v{src+3}, s[4:5]")
        diag(T + 8, SQA)
        e(f"ds_write_b32 v{T+7}, v{T+8}")
        if not role9:
            diag(T + 9, HST)
            e(f"s_lshl_b32 s3, s{sG}, 9")
            e(f"s_add_u32 s3, s3, {HSC}")
            e(f"v_add_u32 v{T+10}, s3, v{T+6}")
            e(f"ds_write_b32 v{T+10}, v{T+9}")
            e(f"ds_write_b32 v{T+10}, v{HST} offset:256")
        e(f"v_cmp_gt_u32 vcc, 2, v{T}")
        e("s_and_saveexec_b64 s[4:5], vcc")
        e(f"ds_write_b128 v{T+3}, {vr(CSA,4)}")
        if role9:
            e(f"ds_write_b128 v{T+4}, {vr(CS9A,4)}")
        e("s_mov_b64 exec, s[4:5]")
        e(f"v_and_b32 v{T}, 31, v{vLane}")
        e(f"v_lshlrev_b32 v{T}, 2, v{T}")
        e(f"s_lshl_b32 s3, s{sMT0}, 7")
        e(f"s_lshl_b32 s4, s{sMT1}, 7")
        e(f"v_add_u32 v{T+2}, s3, v{T}")
        e(f"v_add_u32 v{T+3}, s4, v{T}")
        if role9:
            e(f"v_add_u32 v{T+6}, {RS}, v{T+2}")
            e(f"ds_write_b32 v{T+6}, v{ACC9+8}")
        e(f"s_mov_b32 s{sT3}, {1 if role9 else 0}")
        e("s_waitcnt vmcnt(0)")
        e("s_branch K1_EPI")

    mainloop(True)
    lab("K1_ROLEH")
    mainloop(False)

    lab("K1_EPI")
    sROLE = sT3
    CA, CB = 80, 96
    C9 = 112
    ST = 120
    RAW = 132
    e("s_waitcnt lgkmcnt(0)")
    e("s_barrier")
    stamp(5)
    e(f"v_add_u32 v{T+4}, {RS}, v{T+2}")
    e(f"v_add_u32 v{T+5}, {RS}, v{T+3}")
    e(f"ds_read_b32 v{RAW}, v{T+4}")
    e(f"ds_read_b32 v{RAW+1}, v{T+5}")
    e(f"v_and_b32 v{T+6}, 15, v{vLane}")
    e(f"v_lshrrev_b32 v{T+7}, 2, v{T+6}")
    e(f"v_lshl_add_u32 v{T+6}, v{T+7}, 4, v{T+6}")
    e(f"v_lshlrev_b32 v{T+6}, 2, v{T+6}")
    e(f"v_bfe_u32 v{T+7}, v{vLane}, 4, 1")
    e(f"v_lshl_add_u32 v{T+7}, v{T+7}, 8, v{T+6}")
    e(f"s_lshl_b32 s3, s{sMT0}, 9")
    e(f"s_add_u32 s3, s3, {SQ}")
    e(f"s_lshl_b32 s4, s{sMT1}, 9")
    e(f"s_add_u32 s4, s4, {SQ}")
    e(f"v_add_u32 v{T+8}, s3, v{T+7}")
    e(f"v_add_u32 v{T+7}, s4, v{T+7}")
    e(f"ds_read_b32 v{RAW+2}, v{T+8}")
    e(f"ds_read_b32 v{RAW+3}, v{T+7}")
    e(f"s_lshl_b32 s3, s{sG}, 9")
    e(f"s_add_u32 s3, s3, {HSC}")
    e(f"v_add_u32 v{T+6}, s3, v{T+6}")
    e(f"v_and_b32 v{T+8}, 15, v{vLane}")
    e(f"v_lshlrev_b32 v{T+8}, 2, v{T+8}")
    e(f"v_add_u32 v{T+8}, s3, v{T+8}")
    e(f"ds_read_b32 v{RAW+4}, v{T+8} offset:256")
    e(f"ds_read_b32 v{RAW+5}, v{T+6}")
    e(f"v_lshrrev_b32 v{T+9}, 5, v{vLane}")
    e(f"v_lshlrev_b32 v{T+10}, 4, v{T+9}")
    e(f"s_lshl_b32 s3, s{sG}, 8")
    e(f"s_add_u32 s3, s3, {CS}")
    e(f"v_add_u32 v{T+11}, s3, v{T+10}")
    for q in range(4):
        e(f"ds_read_b128 {vr(CA+4*q,4)}, v{T+11} offset:{32*q}")
    for q in range(4):
        e(f"ds_read_b128 {vr(CB+4*q,4)}, v{T+11} offset:{128+32*q}")
    e("s_waitcnt lgkmcnt(8)")
    e(f"s_cmp_eq_u32 s{sROLE}, 1")
    e("s_cbranch_scc0 K1_E_CH")
    e(f"v_add_u32 v{T+12}, {CS9}, v{T+10}")
    for p in range(4):
        e(f"ds_read_b128 {vr(vTMP+8+8*p,4)}, v{T+12} offset:{128*p}")
        e(f"ds_read_b128 {vr(vTMP+12+8*p,4)}, v{T+12} offset:{128*p+32}")
    e("s_waitcnt lgkmcnt(0)")
    for i in range(8):
        e(f"v_add_f32 v{C9+i}, v{vTMP+8+i}, v{vTMP+16+i}")
        e(f"v_add_f32 v{vTMP+24+i}, v{vTMP+24+i}, v{vTMP+32+i}")
    for i in range(8):
        e(f"v_add_f32 v{C9+i}, v{C9+i}, v{vTMP+24+i}")
    e("s_branch K1_E_CD")
    lab("K1_E_CH")
    e(f"v_lshrrev_b32 v{T+13}, 4, v{vLane}")
    e(f"v_lshlrev_b32 v{T+13}, 4, v{T+13}")
    e(f"s_lshl_b32 s3, s{sG}, 6")
    e(f"s_add_u32 s3, s3, {CS+128}")
    e(f"v_add_u32 v{T+13}, s3, v{T+13}")
    e(f"ds_read_b128 {vr(C9,4)}, v{T+13}")
    lab("K1_E_CD")
    def stats(rs, sq, o):
        t = vTMP
        e(f"v_mul_f32 v{t}, {f2u(1/512):#x}, v{rs}")
        e(f"v_mul_f32 v{t+1}, {f2u(1/512):#x}, v{sq}")
        e(f"v_fma_f32 v{t+1}, -v{t}, v{t}, v{t+1}")
        e(f"v_max_f32 v{t+1}, 0, v{t+1}")
        e(f"v_cvt_pk_bf16_f32 v{t+2}, v{t}, v{t+1}")
        e(f"v_lshlrev_b32 v{t}, 16, v{t+2}")
        e(f"v_and_b32 v{t+1}, 0xffff0000, v{t+2}")
        e(f"v_add_f32 v{t+1}, {f2u(1e-5):#x}, v{t+1}")
        e(f"v_cvt_pk_bf16_f32 v{t+2}, v{t+1}, v{t+1}")
        e(f"v_and_b32 v{t+1}, 0xffff0000, v{t+2}")
        e(f"v_sqrt_f32 v{t+1}, v{t+1}")
        e(f"v_xor_b32 v{o+1}, 0x80000000, v{t}")
        e(f"v_cvt_pk_bf16_f32 v{t+2}, v{t+1}, v{t+1}")
        e(f"v_and_b32 v{t+1}, 0xffff0000, v{t+2}")
        e(f"v_rcp_f32 v{o}, v{t+1}")
        e(f"v_mul_f32 v{o+3}, v{t+1}, v{t+1}")
        e(f"v_mul_f32 v{o+2}, {f2u(-LOG2E):#x}, v{o}")
    stats(RAW, RAW + 2, ST)
    stats(RAW + 1, RAW + 3, ST + 4)
    stats(RAW + 4, RAW + 5, ST + 8)
    e(f"v_and_b32 v{T}, 31, v{vLane}")
    e(f"v_mul_u32_u24 v{T}, {SPITCH}, v{T}")
    e(f"v_lshl_add_u32 v{T+1}, v{T+9}, 3, v{T}")
    e(f"v_lshl_add_u32 v{T+2}, v{T+9}, 4, v{T}")
    e(f"s_mul_i32 s3, s{sMT0}, {32*SPITCH}")
    e(f"s_add_u32 s3, s3, {STG+16*SPITCH}")
    e(f"s_mul_i32 s4, s{sMT1}, {32*SPITCH}")
    e(f"s_add_u32 s4, s4, {STG+16*SPITCH}")
    e(f"v_add_u32 v{T+3}, s3, v{T+1}")
    e(f"v_add_u32 v{T+4}, s4, v{T+1}")
    e(f"v_add_u32 v{T+5}, s3, v{T+2}")
    e(f"v_add_u32 v{T+6}, s4, v{T+2}")
    e(f"v_lshlrev_b32 v{T+7}, 4, v{vLane}")
    e(f"s_lshl_b32 s5, s{sRB}, 2")
    e(f"s_add_u32 s{sT1}, s5, s{sMT0}")
    e(f"s_add_u32 s{sT2}, s5, s{sMT1}")
    e("s_waitcnt lgkmcnt(0)")
    def ln16(R, C, st, n, dst):
        for i in range(n):
            e(f"v_fma_f32 v{dst+i}, v{C+i}, v{st+1}, v{R+i}")
        for i in range(n):
            e(f"v_mul_f32 v{dst+i}, v{st}, v{dst+i}")
    def tile_qk(R, C, st, addr, sec):
        t = vTMP
        ln16(R, C, st, 16, t)
        for q in range(4):
            e(f"v_cvt_pk_bf16_f32 v{t+16+2*q}, v{t+4*q}, v{t+4*q+1}")
            e(f"v_cvt_pk_bf16_f32 v{t+17+2*q}, v{t+4*q+2}, v{t+4*q+3}")
        for q in range(4):
            e(f"ds_write_b64 v{addr}, {vr(t+16+2*q,2)} offset:{sec*64+16*q}")
    def tile_v(R, C, st, addr):
        t = vTMP + 24
        ln16(R, C, st, 16, t)
        for q in range(4):
            e(f"ds_write_b128 v{addr}, {vr(t+4*q,4)} offset:{128+32*q}")
    def silu(R, C, st, n, goff, uoff, t):
        for i in range(n):
            e(f"v_fma_f32 v{t+i}, v{C+goff+i}, v{st+1}, v{R+goff+i}")
        for i in range(n):
            e(f"v_mul_f32 v{t+n+i}, v{st+2}, v{t+i}")
        for i in range(n):
            e(f"v_exp_f32 v{t+n+i}, v{t+n+i}")
        for i in range(n):
            e(f"v_fma_f32 v{t+2*n+i}, v{C+uoff+i}, v{st+1}, v{R+uoff+i}")
        for i in range(n):
            e(f"v_fma_f32 v{t+n+i}, v{t+n+i}, v{st+3}, v{st+3}")
        for i in range(n):
            e(f"v_rcp_f32 v{t+n+i}, v{t+n+i}")
        for i in range(n):
            e(f"v_mul_f32 v{t+i}, v{t+i}, v{t+2*n+i}")
        for i in range(n):
            e(f"v_mul_f32 v{t+i}, v{t+i}, v{t+n+i}")
        for i in range(n // 2):
            e(f"v_cvt_pk_bf16_f32 v{t+3*n+i}, v{t+2*i}, v{t+2*i+1}")
    def tile_ffn(R, C, st, smt, tau_s, tbase):
        silu(R, C, st, 8, 0, 8, tbase)
        e(f"s_add_u32 s3, s{tau_s}, s{smt}")
        e("s_lshl_b32 s3, s3, 10")
        e(f"buffer_store_dwordx4 {vr(tbase+24,4)}, v{T+7}, {sr(S_HF,4)}, s3 offen")
    e(f"s_lshl_b32 s6, s{sG}, 1")
    e(f"s_add_u32 s6, s6, s{sTF}")
    e("s_add_u32 s6, s6, 29")
    e("s_lshl_b32 s6, s6, 6")
    e("s_add_u32 s7, s6, 64")
    e(f"s_cmp_eq_u32 s{sG}, 0")
    e("s_cbranch_scc1 K1_E_G0")
    e(f"s_cmp_eq_u32 s{sG}, 1")
    e("s_cbranch_scc1 K1_E_G1")
    tile_ffn(ACC, CA, ST, sT1, 6, vTMP)
    tile_ffn(ACC + 16, CA, ST + 4, sT2, 6, vTMP - 54)
    e("s_branch K1_E_B")
    lab("K1_E_G1")
    tile_v(ACC, CA, ST, T + 5)
    e("s_nop 1")
    tile_v(ACC + 16, CA, ST + 4, T + 6)
    lab("K1_E_B")
    tile_ffn(ACC + 32, CB, ST, sT1, 7, vTMP)
    tile_ffn(ACC + 48, CB, ST + 4, sT2, 7, vTMP - 54)
    e("s_branch K1_E_C")
    lab("K1_E_G0")
    tile_qk(ACC, CA, ST, T + 3, 0)
    tile_qk(ACC + 16, CA, ST + 4, T + 4, 0)
    tile_qk(ACC + 32, CB, ST, T + 3, 1)
    tile_qk(ACC + 48, CB, ST + 4, T + 4, 1)
    lab("K1_E_C")
    e(f"s_cmp_eq_u32 s{sROLE}, 1")
    e("s_cbranch_scc0 K1_E_HALO")
    e(f"s_cmp_eq_u32 s{sHAS}, 1")
    e("s_cbranch_scc0 K1_E_D")
    e("s_nop 1")
    silu(ACC9, C9, ST, 4, 0, 4, vTMP)
    e(f"s_add_u32 s3, s{sTH}, 32")
    e("s_lshl_b32 s3, s3, 6")
    e(f"s_add_u32 s3, s3, s{sT1}")
    e("s_lshl_b32 s3, s3, 10")
    e(f"s_lshl_b32 s4, s{sHSEL}, 3")
    e("s_add_u32 s3, s3, s4")
    e(f"buffer_store_dwordx2 {vr(vTMP+12,2)}, v{T+7}, {sr(S_HF,4)}, s3 offen")
    e("s_branch K1_E_D")
    lab("K1_E_HALO")
    t = vTMP + 40
    ln16(ACC9, C9, ST + 8, 4, t)
    e(f"v_and_b32 v{T}, 63, v0") if False else None
    e(f"v_lshrrev_b32 v{T+8}, 4, v{T+7}")
    e(f"v_and_b32 v{T}, 15, v{T+8}")
    e(f"v_mul_u32_u24 v{T}, {SPITCH}, v{T}")
    e(f"v_lshrrev_b32 v{T+1}, 4, v{T+8}")
    e(f"s_cmp_lt_u32 s{sG}, 2")
    e("s_cbranch_scc0 K1_E_HV")
    e(f"v_cvt_pk_bf16_f32 v{t+4}, v{t}, v{t+1}")
    e(f"v_cvt_pk_bf16_f32 v{t+5}, v{t+2}, v{t+3}")
    e(f"v_lshl_add_u32 v{T}, v{T+1}, 3, v{T}")
    e(f"s_lshl_b32 s3, s{sG}, 5")
    e(f"s_add_u32 s3, s3, {STG+64}")
    e(f"v_add_u32 v{T}, s3, v{T}")
    e(f"ds_write_b64 v{T}, {vr(t+4,2)}")
    e("s_branch K1_E_D")
    lab("K1_E_HV")
    e(f"v_lshl_add_u32 v{T}, v{T+1}, 4, v{T}")
    e(f"s_lshl_b32 s3, s{sG}, 6")
    e(f"s_add_u32 s3, s3, {STG+128-128}")
    e(f"v_add_u32 v{T}, s3, v{T}")
    e(f"ds_write_b128 v{T}, {vr(t,4)}")
    lab("K1_E_D")
    Q = 0; KK = 4; VV = 36; P = 100; O = 112; A2 = 120
    e(f"v_lshrrev_b32 v{T+8}, 4, v{T+7}")
    e(f"v_and_b32 v{T}, 31, v{T+8}")
    e(f"v_lshrrev_b32 v{T+1}, 5, v{T+8}")
    e(f"s_lshr_b32 s3, s{sW}, 1")
    e(f"s_and_b32 s4, s{sW}, 1")
    e(f"v_mul_u32_u24 v{T+2}, {SPITCH}, v{T}")
    e(f"s_mul_i32 s5, s3, {32*SPITCH}")
    e(f"s_add_u32 s5, s5, {STG+2*SPITCH}")
    e("s_lshl_b32 s6, s4, 5")
    e("s_add_u32 s6, s6, s5")
    e(f"v_lshl_add_u32 v{T+3}, v{T+1}, 4, v{T+2}")
    e(f"v_add_u32 v{T+3}, s6, v{T+3}")
    e("s_lshl_b32 s6, s4, 6")
    e("s_add_u32 s6, s6, s5")
    e(f"v_lshl_add_u32 v{T+4}, v{T+1}, 5, v{T+2}")
    e(f"v_add_u32 v{T+4}, s6, v{T+4}")
    e("s_lshl_b32 s5, s3, 5")
    e(f"s_add_u32 s5, s5, s{sM0}")
    e(f"v_add_u32 v{T+5}, s5, v{T}")
    e(f"v_lshlrev_b32 v{T+6}, 1, v{T+1}")
    e(f"v_sub_u32 v{T+5}, v{T+5}, v{T+6}")
    e(f"s_lshl_b32 s5, s{sCG}, 1")
    e("s_add_u32 s5, s5, s4")
    e("s_lshl_b32 s5, s5, 6")
    e(f"s_lshl_b32 s6, s{sRB}, 2")
    e("s_add_u32 s5, s5, s6")
    e("s_add_u32 s5, s5, s3")
    e(f"s_lshl_b32 s{sT1}, s5, 10")
    stamp(6)
    e("s_waitcnt lgkmcnt(0)")
    e("s_barrier")
    stamp(7)
    e(f"ds_read_b128 {vr(Q,4)}, v{T+3} offset:{14*SPITCH}")
    for w in range(8):
        e(f"ds_read_b128 {vr(KK+4*w,4)}, v{T+3} offset:{(14-2*w)*SPITCH+64}")
    for w in range(3):
        e(f"ds_read_b128 {vr(VV+8*w,4)}, v{T+4} offset:{(14-2*w)*SPITCH+128}")
        e(f"ds_read_b128 {vr(VV+8*w+4,4)}, v{T+4} offset:{(14-2*w)*SPITCH+144}")
    for w in range(8):
        e(f"s_waitcnt lgkmcnt({min(15, 13-w)})")
        e(f"v_dot2_f32_bf16 v{P+w}, v{Q}, v{KK+4*w}, 0")
        for i in range(1, 4):
            e(f"v_dot2_f32_bf16 v{P+w}, v{Q+i}, v{KK+4*w+i}, v{P+w}")
    for w in range(3, 8):
        e(f"ds_read_b128 {vr(VV+8*w,4)}, v{T+4} offset:{(14-2*w)*SPITCH+128}")
        e(f"ds_read_b128 {vr(VV+8*w+4,4)}, v{T+4} offset:{(14-2*w)*SPITCH+144}")
    e("s_nop 2")
    for i in range(4):
        e(f"v_permlane32_swap_b32 v{P+2*i}, v{P+2*i+1}")
    e(f"v_mov_b32 v{T+9}, {f2u(-1e9):#x}")
    for i in range(4):
        e(f"v_add_f32 v{P+2*i}, v{P+2*i}, v{P+2*i+1}")
    for i in range(4):
        e(f"v_cmp_le_i32 vcc, {4*i}, v{T+5}")
        e(f"v_mul_f32 v{P+2*i}, 0.25, v{P+2*i}") if False else e(f"v_mul_f32 v{P+2*i}, {f2u(0.25):#x}, v{P+2*i}")
        e("s_nop 0")
        e(f"v_cndmask_b32 v{P+2*i}, v{T+9}, v{P+2*i}, vcc")
    e(f"v_max3_f32 v{P+1}, v{P}, v{P+2}, v{P+4}")
    e(f"v_max_f32 v{P+1}, v{P+1}, v{P+6}")
    e(f"v_mov_b32 v{P+3}, v{P+1}")
    e("s_nop 1")
    e(f"v_permlane32_swap_b32 v{P+1}, v{P+3}")
    e("s_nop 0")
    e(f"v_max_f32 v{P+1}, v{P+1}, v{P+3}")
    for i in range(4):
        e(f"v_sub_f32 v{P+2*i}, v{P+2*i}, v{P+1}")
    for i in range(4):
        e(f"v_mul_f32 v{P+2*i}, {f2u(LOG2E):#x}, v{P+2*i}")
    for i in range(4):
        e(f"v_exp_f32 v{P+2*i}, v{P+2*i}")
    e("s_nop 0")
    e(f"v_add_f32 v{P+1}, v{P}, v{P+2}")
    e(f"v_add_f32 v{P+3}, v{P+4}, v{P+6}")
    e(f"v_add_f32 v{P+1}, v{P+1}, v{P+3}")
    e(f"v_mov_b32 v{P+3}, v{P+1}")
    e("s_nop 1")
    e(f"v_permlane32_swap_b32 v{P+1}, v{P+3}")
    e("s_nop 0")
    e(f"v_add_f32 v{P+8}, v{P+1}, v{P+3}")
    e(f"v_rcp_f32 v{P+8}, v{P+8}")
    e("s_nop 0")
    for i in range(4):
        e(f"v_mul_f32 v{P+2*i}, v{P+2*i}, v{P+8}")
    for i in range(4):
        e(f"v_mov_b32 v{P+2*i+1}, v{P+2*i}")
    e("s_nop 1")
    for i in range(4):
        e(f"v_permlane32_swap_b32 v{P+2*i}, v{P+2*i+1}")
    e("s_nop 0")
    for w in range(8):
        e(f"s_waitcnt lgkmcnt({14-2*w})")
        for d in range(8):
            if w == 0:
                e(f"v_mul_f32 v{O+d}, v{P}, v{VV+d}")
            else:
                e(f"v_fmac_f32 v{O+d}, v{P+w}, v{VV+8*w+d}")
    for i in range(4):
        e(f"v_cvt_pk_bf16_f32 v{A2+i}, v{O+2*i}, v{O+2*i+1}")
    e(f"buffer_store_dwordx4 {vr(A2,4)}, v{T+7}, {sr(S_HF,4)}, s{sT1} offen")
    stamp(8)
    if STAMP: e("s_waitcnt vmcnt(0)")
    stamp(9)
    stamp_flush(50, 0x1000000, sW)
    lab("K1_END")
    e("s_endpgm")

def kernel2():
    S_HF, S_W2F, S_X, S_O = 8, 12, 16, 20
    sW, sMB, sNB, sKH, sKW = 30, 31, 32, 33, 34
    ACC = 0
    vLane, vH0, vH1, vW0, vW1, vXO = 64, 65, 66, 67, 68, 69
    XR = 72
    T = 80
    RD = 96
    NK = 30; D = int(os.environ.get('K2D', '15')); ROT = int(os.environ.get('K2ROT', '0'))
    L.append(".globl k2_kernel\n.p2align 8\n.type k2_kernel,@function\nk2_kernel:")
    e("s_cmp_ge_u32 s2, 256")
    e("s_cbranch_scc1 K2_END")
    e("s_load_dwordx2 s[36:37], s[0:1], 0")
    e("s_load_dwordx2 s[38:39], s[0:1], 56")
    e("s_load_dwordx2 s[40:41], s[0:1], 72")
    stamp(0)
    e(f"v_and_b32 v{vLane}, 63, v0")
    e(f"v_lshrrev_b32 v{T}, 6, v0")
    e("s_and_b32 s3, s2, 7")
    e(f"v_readfirstlane_b32 s{sW}, v{T}")
    e("s_lshr_b32 s4, s2, 3")
    e("s_and_b32 s5, s3, 1")
    e("s_lshl_b32 s5, s5, 1")
    e("s_bfe_u32 s6, s3, 0x10001")
    e("s_add_u32 s5, s5, s6")
    e("s_lshl_b32 s5, s5, 3")
    e("s_and_b32 s6, s4, 7")
    e(f"s_add_u32 s{sMB}, s5, s6")
    e("s_lshr_b32 s5, s3, 2")
    e("s_lshl_b32 s5, s5, 2")
    e("s_lshr_b32 s6, s4, 3")
    e(f"s_add_u32 s{sNB}, s5, s6")
    e(f"v_lshlrev_b32 v{T}, 4, v{vLane}")
    e(f"s_lshr_b32 s3, s{sW}, 1")
    e(f"s_and_b32 s4, s{sW}, 1")
    e(f"s_lshl_b32 s5, s{sMB}, 1")
    e("s_add_u32 s5, s5, s3")
    e("s_lshl_b32 s6, s5, 10")
    e(f"v_add_u32 v{vH0}, s6, v{T}")
    e("s_xor_b32 s6, s6, 1024")
    e(f"v_add_u32 v{vH1}, s6, v{T}")
    e(f"s_lshl_b32 s7, s{sNB}, 1")
    e("s_add_u32 s7, s7, s4")
    e("s_lshl_b32 s6, s7, 10")
    e(f"v_add_u32 v{vW0}, s6, v{T}")
    e("s_xor_b32 s6, s6, 1024")
    e(f"v_add_u32 v{vW1}, s6, v{T}")
    e(f"v_and_b32 v{T+1}, 31, v{vLane}")
    e(f"v_lshrrev_b32 v{T+2}, 5, v{vLane}")
    e(f"v_lshlrev_b32 v{T+1}, 10, v{T+1}")
    e(f"v_lshl_add_u32 v{T+1}, v{T+2}, 3, v{T+1}")
    e("s_lshl_b32 s5, s5, 15")
    e("s_lshl_b32 s7, s7, 6")
    e("s_add_u32 s5, s5, s7")
    e(f"v_add_u32 v{vXO}, s5, v{T+1}")
    e("s_lshr_b32 s4, s2, 3")
    e("s_lshr_b32 s5, s4, 3")
    e("s_lshl_b32 s5, s5, 1")
    e("s_add_u32 s4, s4, s5")
    e("s_and_b32 s4, s4, 7")
    e(f"s_mul_i32 s4, s4, {4*ROT}")
    e(f"s_add_u32 s4, s4, s{sW}")
    e(f"s_lshl_b32 s{sKH}, s4, 16")
    e(f"s_lshl_b32 s{sKW}, s4, 14")
    e("s_waitcnt lgkmcnt(0)")
    e(f"s_mov_b32 s{S_HF}, s40")
    e(f"s_and_b32 s{S_HF+1}, s41, 0xffff")
    e(f"s_mov_b32 s{S_HF+2}, {HF_BYTES}")
    e(f"s_mov_b32 s{S_HF+3}, 0x00020000")
    e(f"s_add_u32 s{S_W2F}, s40, {W2F_OFF}")
    e(f"s_addc_u32 s{S_W2F+1}, s41, 0")
    e(f"s_and_b32 s{S_W2F+1}, s{S_W2F+1}, 0xffff")
    e(f"s_mov_b32 s{S_W2F+2}, {W2F_BYTES}")
    e(f"s_mov_b32 s{S_W2F+3}, 0x00020000")
    srd(S_X, 36, 2048 * 1024)
    srd(S_O, 38, 2048 * 1024)
    def loads(i):
        b = 16 * (i % D)
        e(f"buffer_load_dwordx4 {ar(b,4)}, v{vW0}, {sr(S_W2F,4)}, s{sKW} offen")
        e(f"buffer_load_dwordx4 {ar(b+4,4)}, v{vH0}, {sr(S_HF,4)}, s{sKH} offen")
        e(f"buffer_load_dwordx4 {ar(b+8,4)}, v{vH1}, {sr(S_HF,4)}, s{sKH} offen")
        e(f"buffer_load_dwordx4 {ar(b+12,4)}, v{vW1}, {sr(S_W2F,4)}, s{sKW} offen")
        e(f"s_add_u32 s{sKW}, s{sKW}, {4*16384}")
        if ROT:
            e(f"s_sub_u32 s3, s{sKW}, {120*16384}")
            e(f"s_cmp_ge_u32 s{sKW}, {120*16384}")
            e(f"s_cselect_b32 s{sKW}, s3, s{sKW}")
        e(f"s_lshl_b32 s{sKH}, s{sKW}, 2")
    for q in range(4):
        e(f"buffer_load_dwordx2 {vr(XR+2*q,2)}, v{vXO}, {sr(S_X,4)}, 0 offen offset:{16*q}")
    for i in range(D): loads(i)
    issued = D
    stamp(1)
    for i in range(NK):
        b = 16 * (i % D)
        out = 4 * (issued - i - 1)
        if i == NK - 6:
            pass
        e(f"s_waitcnt vmcnt({min(63, out + 2)})")
        c = (lambda r: "0") if i == 0 else (lambda r: vr(r, 16))
        e(f"v_mfma_f32_32x32x16_bf16 {vr(ACC,16)}, {ar(b,4)}, {ar(b+4,4)}, {c(ACC)}")
        e(f"s_waitcnt vmcnt({min(63, out + 1)})")
        e(f"v_mfma_f32_32x32x16_bf16 {vr(ACC+32,16)}, {ar(b,4)}, {ar(b+8,4)}, {c(ACC+32)}")
        e(f"s_waitcnt vmcnt({out})")
        e(f"v_mfma_f32_32x32x16_bf16 {vr(ACC+16,16)}, {ar(b+12,4)}, {ar(b+4,4)}, {c(ACC+16)}")
        e(f"v_mfma_f32_32x32x16_bf16 {vr(ACC+48,16)}, {ar(b+12,4)}, {ar(b+8,4)}, {c(ACC+48)}")
        if i in (0, 7, 14, 22): stamp(2 + (0, 7, 14, 22).index(i))
        if issued < NK:
            loads(issued); issued += 1
    stamp(6)
    for a in range(1, 4):
        e(f"s_xor_b32 s3, s{sW}, {a}")
        e("s_mul_i32 s3, s3, 12288")
        e(f"s_add_u32 s3, s3, {(a-1)*4096}")
        e(f"v_add_u32 v{T+a}, s3, v{T}")
    e(f"s_mul_i32 s3, s{sW}, 12288")
    e(f"v_add_u32 v{T+4}, s3, v{T}")
    e("s_nop 7")
    for a in (2, 1, 3):
        for q in range(4):
            e(f"ds_write_b128 v{T+a}, {vr(ACC+16*a+4*q,4)} offset:{1024*q}")
    e("s_waitcnt lgkmcnt(0)")
    e("s_barrier")
    for s in range(3):
        for q in range(4):
            e(f"ds_read_b128 {vr(RD+16*s+4*q,4)}, v{T+4} offset:{4096*s+1024*q}")
    e("s_waitcnt vmcnt(0)")
    for q in range(4):
        for i in range(2):
            e(f"v_lshlrev_b32 v{T+8}, 16, v{XR+2*q+i}")
            e(f"v_and_b32 v{T+9}, 0xffff0000, v{XR+2*q+i}")
            e(f"v_add_f32 v{ACC+4*q+2*i}, v{ACC+4*q+2*i}, v{T+8}")
            e(f"v_add_f32 v{ACC+4*q+2*i+1}, v{ACC+4*q+2*i+1}, v{T+9}")
    for s in range(3):
        e(f"s_waitcnt lgkmcnt({8-4*s})")
        for r in range(16):
            e(f"v_add_f32 v{ACC+r}, v{ACC+r}, v{RD+16*s+r}")
    for q in range(4):
        e(f"v_cvt_pk_bf16_f32 v{XR+2*q}, v{ACC+4*q}, v{ACC+4*q+1}")
        e(f"v_cvt_pk_bf16_f32 v{XR+2*q+1}, v{ACC+4*q+2}, v{ACC+4*q+3}")
    for q in range(4):
        e(f"buffer_store_dwordx2 {vr(XR+2*q,2)}, v{vXO}, {sr(S_O,4)}, 0 offen offset:{16*q}")
    stamp(7)
    if STAMP: e("s_waitcnt vmcnt(0)")
    stamp(8)
    stamp_flush(40, 0x1100000, sW)
    lab("K2_END")
    e("s_endpgm")

def desc(name, nv, acc):
    L.append(f""".amdhsa_kernel {name}
  .amdhsa_next_free_vgpr {nv}
  .amdhsa_next_free_sgpr 102
  .amdhsa_accum_offset {acc}
  .amdhsa_group_segment_fixed_size 0
  .amdhsa_kernarg_size 80
  .amdhsa_user_sgpr_count 2
  .amdhsa_user_sgpr_kernarg_segment_ptr 1
  .amdhsa_system_sgpr_workgroup_id_x 1
.end_amdhsa_kernel""")

L.append(HEADER.rstrip())
L.append("; @launch kernel=k1_kernel grid=(256,1,1) block=(512,1,1) lds=163840")
L.append("; @launch kernel=k2_kernel grid=(256,1,1) block=(256,1,1) lds=49152")
L.append('.amdgcn_target "amdgcn-amd-amdhsa--gfx950"\n.text')
kernel1()
kernel2()
L.append('.section .rodata,"a"\n.p2align 6')
desc("k1_kernel", 256, 256)
L.append(".p2align 6")
desc("k2_kernel", 496, 256)
open(OUT, "w").write("\n".join(x for x in L if x is not None) + "\n")
print("wrote", OUT, len(L), "lines")
```

```python
import sys
OUT = sys.argv[1] if len(sys.argv) > 1 else "parallel_sum__sliding_local_dilated__glu_gated_swiglu__prompt.s"
L = []
import os
EXP = os.environ.get("EXP", "")
INLOOP = [False]
def e(s):
    if INLOOP[0]:
        if "nodma" in EXP and ("offen lds" in s): return
        if "nomfma" in EXP and s.startswith("v_mfma"): return
        if "nolds" in EXP and s.startswith("ds_read"): return
        if "novalu" in EXP and (s.startswith("v_lshlrev_b32") or s.startswith("v_and_b32") or s.startswith("v_add_f32") or s.startswith("v_fmac")): return
        if "nox" in EXP and ("offen lds" in s) and "s[8:11]" in s: return
        if "noqkv" in EXP and ("offen lds" in s) and "s[20:23]" in s: return
        if "now13" in EXP and ("offen lds" in s) and ("s[12:15]" in s or "s[16:19]" in s): return
    L.append("    " + s)
def lab(s): L.append(s + ":")
def capture(fn):
    n = len(L); fn(); r = [x.strip() for x in L[n:]]; del L[n:]
    return r
def vr(b, n): return f"v[{b}:{b+n-1}]"
def ar(b, n): return f"a[{b}:{b+n-1}]"
def sr(b, n): return f"s[{b}:{b+n-1}]"

WSLOT = 18496; NW = 3
W1OFF = 0; QKVOFF = 6144; W3OFF = 12320
XBASE = 92544; XSLOT = 18432; NX = 2
MISC = XBASE + 3 * XSLOT
ONES = MISC
TS = MISC + 4096
CS = MISC + 12288
CS9 = CS + 1024
RS = CS9 + 512
SQ = MISC + 1024
HSC = RS + 512
HSC = TS
assert RS + 512 <= 163840
STG = 0; SPITCH = 272
HF_BYTES = 118 * 64 * 1024
W2F_OFF = 0x800000; W2F_BYTES = 118 * 16 * 1024
LOG2E = 1.4426950408889634
import struct
def f2u(x): return struct.unpack("<I", struct.pack("<f", x))[0]

HEADER = open("parallel_sum__sliding_local_dilated__glu_gated_swiglu__prompt.s.ref").read().split("; Override launch")[0]

def srd(d, base, nbytes):
    e(f"s_mov_b32 s{d}, s{base}")
    e(f"s_and_b32 s{d+1}, s{base+1}, 0xffff")
    e(f"s_mov_b32 s{d+2}, {nbytes}")
    e(f"s_mov_b32 s{d+3}, 0x00020000")

import os
STAMP = int(os.environ.get("STAMP", "0"))
def stamp(idx, sbase=90):
    if not STAMP: return
    e(f"s_memrealtime s[{sbase}:{sbase+1}]")
    e(f"s_memtime s[{sbase+2}:{sbase+3}]")
    e("s_waitcnt lgkmcnt(0)")
    e(f"v_writelane_b32 v{STV}, s{sbase}, {2*idx}")
    e(f"v_writelane_b32 v{STV}, s{sbase+2}, {2*idx+1}")
def stamp_flush(wsreg, off, swave, lanereg_x16=None):
    if not STAMP: return
    e(f"s_add_u32 s92, s{wsreg}, {off}")
    e(f"s_addc_u32 s93, s{wsreg+1}, 0")
    e("s_and_b32 s93, s93, 0xffff")
    e("s_mov_b32 s94, 0x100000")
    e("s_mov_b32 s95, 0x00020000")
    e(f"s_lshl_b32 s90, s2, 3")
    e(f"s_add_u32 s90, s90, s{swave}")
    e("s_lshl_b32 s90, s90, 8")
    e("v_mbcnt_lo_u32_b32 v1, -1, 0")
    e("v_mbcnt_hi_u32_b32 v1, -1, v1")
    e("v_lshlrev_b32 v1, 2, v1")
    e(f"buffer_store_dword v{STV}, v1, s[92:95], s90 offen")
STV = 255
def weave(mf, va):
    out = []
    n = len(mf);
    per = [len(va) * (i + 1) // n - len(va) * i // n for i in range(n)]
    k = 0
    for i, m in enumerate(mf):
        out.append(m)
        out.extend(va[k:k + per[i]]); k += per[i]
    return out

def kernel1():
    ROT1 = int(os.environ.get("K1ROT", "1"))
    S_X, S_W1, S_W3, S_QKV, S_WT, S_HF, S_W2F = 8, 12, 16, 20, 24, 28, 32
    sW, sG, sMH, sRB, sCG, sM0, sTF, sTH, sFW, sOF, sOH, sHSEL, sHAS = 52, 53, 54, 55, 56, 57, 58, 59, 60, 61, 62, 63, 64
    sRWA, sRWB, sRX, sKC, sKD, sKO1, sKOQ, sKOX, sIT, sT0, sT1, sT2, sT3 = 65, 66, 67, 68, 69, 70, 71, 72, 73, 74, 75, 76, 77
    sDMA, sMT0, sMT1, sID = 78, 79, 80, 81
    sDWs, sDXs = 83, 84
    sMK = 86
    sWPW, sWPX, sWPD = 88, 89, 85
    ACC = 0
    ACC9 = 64
    HST = 68
    CSA, CS9A, SQA = 80, 84, 88
    FX = [92, 100]
    FW = [108, 120]
    FHX, FHX1, FHW, FSQ, SEL = 132, 136, 140, 144, 148
    vLane, vTid = 152, 153
    vDW13, vDQKV, vDX = 154, 155, 156
    vXa0, vXa1 = 159, 160
    vWA, vWB, vB9, vM9 = 161, 162, 163, 164
    vHXa, vHWa, vMH1, vCH1, vSQa = 165, 166, 167, 168, 169
    aX = 170
    aWA, aWB, a9 = 178, 179, 180
    aHX, aHX1, aHW, aSQ = 181, 182, 183, 184
    T = 186
    WT = 200
    vTA1, vTA2 = 204, 205
    vTMP = 206
    PF = int(os.environ.get("PF", "0")); LA = int(os.environ.get("LA", "2")); PFO = int(os.environ.get("PFO", "1")); PFB = int(os.environ.get("PFB", "2")); PV = 210

    L.append(".globl k1_kernel\n.p2align 8\n.type k1_kernel,@function\nk1_kernel:")
    e("s_cmp_ge_u32 s2, 256")
    e("s_cbranch_scc1 K1_END")
    e("s_load_dwordx4 s[36:39], s[0:1], 0")
    e("s_load_dwordx2 s[40:41], s[0:1], 16")
    e("s_load_dwordx4 s[44:47], s[0:1], 32")
    e("s_load_dwordx2 s[48:49], s[0:1], 48")
    e("s_load_dwordx2 s[50:51], s[0:1], 72")
    stamp(0)
    e(f"v_mov_b32 v{vTid}, v0")
    e(f"v_and_b32 v{vLane}, 63, v0")
    e(f"v_lshrrev_b32 v{T}, 6, v0")
    e("s_and_b32 s3, s2, 7")
    e(f"v_readfirstlane_b32 s{sW}, v{T}")
    e("s_lshr_b32 s4, s2, 3")
    e("s_and_b32 s5, s3, 1")
    e("s_lshl_b32 s5, s5, 3")
    e("s_and_b32 s6, s4, 7")
    e(f"s_add_u32 s{sRB}, s5, s6")
    e("s_lshr_b32 s5, s3, 1")
    e("s_lshl_b32 s5, s5, 2")
    e("s_lshr_b32 s6, s4, 3")
    e(f"s_add_u32 s{sCG}, s5, s6")
    RC, RR, RXC = [int(t) for t in os.environ.get("K1R", "4,4,1").split(",")]
    e(f"s_mul_i32 s6, s6, {RC}")
    e(f"s_mul_i32 s5, s4, {RR}")
    e("s_add_u32 s6, s6, s5")
    if RXC:
        e(f"s_mul_i32 s5, s3, {RXC}")
        e("s_add_u32 s6, s6, s5")
    e(f"s_and_b32 s{sKD}, s6, 7")
    e(f"s_lshl_b32 s{sKC}, s{sKD}, 1")
    e(f"s_lshl_b32 s{sM0}, s{sRB}, 7")
    e(f"s_and_b32 s{sG}, s{sW}, 3")
    e(f"s_lshr_b32 s{sMH}, s{sW}, 2")
    e(f"s_lshr_b32 s3, s{sCG}, 1")
    e("s_mul_i32 s3, s3, 11")
    e(f"s_and_b32 s4, s{sCG}, 1")
    e(f"s_mul_i32 s5, s{sCG}, 5")
    e("s_add_u32 s5, s5, 6")
    e(f"s_cmp_lt_u32 s{sCG}, 12")
    e("s_cselect_b32 s3, s3, s5")
    e(f"s_cselect_b32 s{sHSEL}, s4, 0")
    e(f"s_cselect_b32 s{sHAS}, 1, 0")
    e(f"s_add_u32 s{sTH}, s3, 5")
    e(f"s_mul_i32 s4, s{sHSEL}, 6")
    e(f"s_add_u32 s{sTF}, s3, s4")
    e(f"s_lshl_b32 s5, s3, 5")
    e(f"s_mul_i32 s4, s{sHSEL}, 176")
    e(f"s_add_u32 s{sFW}, s5, s4")
    e(f"s_lshl_b32 s{sOF}, s{sHSEL}, 4")
    e(f"s_mul_i32 s4, s{sHSEL}, 160")
    e(f"s_sub_u32 s{sOH}, 160, s4")
    e(f"v_mul_u32_u24 v{T}, 43691, v{vTid}")
    e(f"v_lshrrev_b32 v{T}, 19, v{T}")
    e(f"v_mul_u32_u24 v{T+1}, 12, v{T}")
    e(f"v_sub_u32 v{T+1}, v{vTid}, v{T+1}")
    e(f"v_mul_u32_u24 v{vDW13}, 2752, v{T}")
    e(f"v_lshl_add_u32 v{vDW13}, v{T+1}, 4, v{vDW13}")
    e(f"v_add_u32 v{vDW13}, s{sFW}, v{vDW13}")
    e(f"v_mul_u32_u24 v{vDQKV}, 3072, v{T}")
    e(f"v_lshrrev_b32 v{T+2}, 2, v{T+1}")
    e(f"v_lshl_add_u32 v{vDQKV}, v{T+2}, 10, v{vDQKV}")
    e(f"v_and_b32 v{T+2}, 3, v{T+1}")
    e(f"v_lshl_add_u32 v{vDQKV}, v{T+2}, 4, v{vDQKV}")
    e(f"s_lshl_b32 s3, s{sCG}, 6")
    e(f"v_add_u32 v{vDQKV}, s3, v{vDQKV}")
    e(f"s_mul_i32 s3, s{sW}, 24")
    e(f"v_lshrrev_b32 v{T}, 3, v{vLane}")
    e(f"v_add_u32 v{T}, s3, v{T}")
    e(f"v_and_b32 v{T+1}, 7, v{vLane}")
    e(f"s_sub_u32 s4, s{sM0}, 16")
    e(f"v_bfe_u32 v{T+3}, v{T}, 1, 3")
    e(f"v_xor_b32 v{T+3}, v{T+3}, v{T+1}")
    e(f"v_add_u32 v{T+2}, s4, v{T}")
    e(f"v_lshlrev_b32 v{T+4}, 10, v{T+2}")
    e(f"v_lshl_add_u32 v{vDX}, v{T+3}, 4, v{T+4}")
    e(f"v_xor_b32 v{vDX+1}, 64, v{vDX}")
    e(f"v_add_u32 v{vDX+1}, 0x2000, v{vDX+1}")
    e(f"v_add_u32 v{vDX+2}, 0x4000, v{vDX}")
    e(f"s_lshl_b32 s{sID}, s2, 3")
    e(f"s_add_u32 s{sID}, s{sID}, s{sW}")
    e(f"s_lshr_b32 s3, s{sID}, 4")
    e(f"s_and_b32 s4, s{sID}, 15")
    e("s_sub_u32 s5, s3, 32")
    e("s_cmp_lt_u32 s3, 32")
    e("s_cselect_b32 s5, s3, s5")
    e(f"s_cselect_b32 s{sT0}, 1, 0")
    e("s_lshl_b32 s5, s5, 14")
    e("s_lshl_b32 s4, s4, 6")
    e("s_add_u32 s5, s5, s4")
    e(f"v_lshrrev_b32 v{T}, 2, v{vLane}")
    e(f"v_lshlrev_b32 v{T}, 10, v{T}")
    e(f"v_and_b32 v{T+1}, 3, v{vLane}")
    e(f"v_lshl_add_u32 v{T}, v{T+1}, 4, v{T}")
    e(f"v_add_u32 v{T+6}, s5, v{T}")
    e(f"s_lshl_b32 s{sWPW}, s{sW}, 10")
    e(f"s_mul_i32 s{sWPX}, s{sW}, 3072")
    e(f"s_add_u32 s{sWPX}, s{sWPX}, {XBASE}")
    e(f"s_mov_b32 s{sDWs}, s{sWPW}")
    e(f"s_mov_b32 s{sWPD}, s{sWPW}")
    e(f"s_mov_b32 s{sDXs}, s{sWPX}")
    e("s_waitcnt lgkmcnt(0)")
    srd(S_X, 36, 2048 * 1024)
    srd(S_QKV, 38, 512 * 3072)
    srd(S_W1, 44, 512 * 2752)
    srd(S_W3, 46, 512 * 2752)
    def dmaW():
        e(f"s_mul_i32 s{sKO1}, s{sKC}, {32*2752}")
        e(f"s_mul_i32 s{sKOQ}, s{sKC}, {32*3072}")
        e(f"s_add_u32 m0, s{sDWs}, {W1OFF}")
        e(f"s_add_u32 s{sKC}, s{sKC}, 1")
        e(f"buffer_load_dwordx4 v{vDW13}, {sr(S_W1,4)}, s{sKO1} offen lds")
        e(f"s_add_u32 m0, s{sDWs}, {QKVOFF}")
        e(f"s_and_b32 s{sKC}, s{sKC}, 15")
        e(f"buffer_load_dwordx4 v{vDQKV}, {sr(S_QKV,4)}, s{sKOQ} offen lds")
        e(f"s_add_u32 m0, s{sDWs}, {W3OFF}")
        e(f"s_add_u32 s{sDWs}, s{sDWs}, {WSLOT}")
        e(f"buffer_load_dwordx4 v{vDW13}, {sr(S_W3,4)}, s{sKO1} offen lds")
        e(f"s_cmp_ge_u32 s{sDWs}, {NW*WSLOT}")
        e(f"s_cselect_b32 s{sDWs}, s{sWPD}, s{sDWs}")
    def dmaX():
        e(f"s_lshl_b32 s{sKOX}, s{sKD}, 7")
        e(f"s_add_u32 m0, s{sDXs}, 0")
        e(f"s_add_u32 s{sKD}, s{sKD}, 1")
        e(f"buffer_load_dwordx4 v{vDX}, {sr(S_X,4)}, s{sKOX} offen lds")
        e(f"s_add_u32 m0, s{sDXs}, 1024")
        e(f"s_and_b32 s{sKD}, s{sKD}, 7")
        e(f"buffer_load_dwordx4 v{vDX+1}, {sr(S_X,4)}, s{sKOX} offen lds")
        e(f"s_add_u32 m0, s{sDXs}, 2048")
        e(f"s_add_u32 s{sDXs}, s{sDXs}, {XSLOT}")
        e(f"buffer_load_dwordx4 v{vDX+2}, {sr(S_X,4)}, s{sKOX} offen lds")
        e(f"s_cmp_ge_u32 s{sDXs}, {XBASE+NX*XSLOT}")
        e(f"s_cselect_b32 s{sDXs}, s{sWPX}, s{sDXs}")
    e(f"s_cmp_eq_u32 s{sT0}, 1")
    e(f"s_cselect_b32 s{S_WT}, s40, s48")
    e(f"s_cselect_b32 s{S_WT+1}, s41, s49")
    e(f"s_mov_b32 s3, {1376*1024}")
    e(f"s_cselect_b32 s{S_WT+2}, {512*1024}, s3")
    e(f"s_and_b32 s{S_WT+1}, s{S_WT+1}, 0xffff")
    e(f"s_mov_b32 s{S_WT+3}, 0x00020000")
    e(f"buffer_load_dwordx4 {vr(WT,4)}, v{T+6}, {sr(S_WT,4)}, 0 offen")
    e(f"s_cmp_lt_u32 s{sW}, 6")
    e(f"s_cselect_b32 s{sDMA}, 1, 0")
    e("s_cbranch_scc0 K1_PRO_PF")
    dmaW(); dmaX()
    if PF:
        e("s_branch K1_PRO_NODMA0")
    lab("K1_PRO_PF")
    if PF:
        e("s_and_b32 s3, s2, 7")
        e("s_lshr_b32 s4, s2, 3")
        e(f"s_mul_i32 s5, s3, {RXC}")
        e(f"s_add_u32 s5, s5, {PFO}")
        e(f"s_cmp_eq_u32 s{sW}, 6")
        e("s_cbranch_scc1 K1_PRO_PFW")
        e(f"v_lshrrev_b32 v{PV+8}, 5, v{vLane}")
        e(f"v_add_u32 v{PV+8}, s5, v{PV+8}")
        e(f"v_and_b32 v{PV+9}, 31, v{vLane}")
        e("s_and_b32 s6, s3, 1")
        e("s_lshl_b32 s6, s6, 5")
        e("s_add_u32 s6, s6, s4")
        e("s_lshl_b32 s6, s6, 5")
        e(f"v_add_u32 v{PV+9}, s6, v{PV+9}")
        e(f"v_lshlrev_b32 v{PV+9}, 10, v{PV+9}")
        for i in range(4):
            e(f"v_add_u32 v{PV+10}, {2*i}, v{PV+8}")
            e(f"v_and_b32 v{PV+10}, 7, v{PV+10}")
            e(f"v_lshl_add_u32 v{PV+i}, v{PV+10}, 7, v{PV+9}")
            if i < 2: e(f"buffer_load_dword v{PV+12}, v{PV+i}, {sr(S_X,4)}, 0 offen")
        e("s_branch K1_PRO_NODMA0")
        lab("K1_PRO_PFW")
        e(f"v_lshrrev_b32 v{PV+8}, 4, v{vLane}")
        e(f"v_add_u32 v{PV+8}, s5, v{PV+8}")
        e(f"v_bfe_u32 v{PV+9}, v{vLane}, 3, 1")
        e("s_lshl_b32 s4, s4, 1")
        e(f"v_add_u32 v{PV+9}, s4, v{PV+9}")
        e(f"v_and_b32 v{PV+10}, 7, v{vLane}")
        e(f"v_lshlrev_b32 v{PV+11}, 7, v{PV+10}")
        e(f"v_min_u32 v{PV+11}, 700, v{PV+11}")
        e("s_lshr_b32 s3, s3, 1")
        e("s_mul_i32 s6, s3, 704")
        e(f"v_add_u32 v{PV+11}, s6, v{PV+11}")
        e(f"v_lshrrev_b32 v{PV+13}, 1, v{PV+10}")
        e(f"v_lshlrev_b32 v{PV+13}, 10, v{PV+13}")
        e(f"v_and_b32 v{PV+10}, 1, v{PV+10}")
        e(f"v_lshl_add_u32 v{PV+13}, v{PV+10}, 7, v{PV+13}")
        e("s_lshl_b32 s6, s3, 8")
        e(f"v_add_u32 v{PV+13}, s6, v{PV+13}")
        e("s_movk_i32 s5, 2752")
        e("s_movk_i32 s6, 3072")
        for i in range(2):
            e(f"v_add_u32 v{PV+10}, {4*i}, v{PV+8}")
            e(f"v_and_b32 v{PV+10}, 7, v{PV+10}")
            e(f"v_lshl_add_u32 v{PV+10}, v{PV+10}, 6, v{PV+9}")
            e(f"v_mad_u32_u24 v{PV+2*i}, v{PV+10}, s5, v{PV+11}")
            e(f"v_mad_u32_u24 v{PV+2*i+1}, v{PV+10}, s6, v{PV+13}")
            if i == 0:
                e(f"buffer_load_dword v{PV+12}, v{PV}, {sr(S_W1,4)}, 0 offen")
                e(f"buffer_load_dword v{PV+12}, v{PV+1}, {sr(S_QKV,4)}, 0 offen")
                e(f"buffer_load_dword v{PV+12}, v{PV}, {sr(S_W3,4)}, 0 offen")
    lab("K1_PRO_NODMA0")
    e("s_barrier")
    stamp(2)
    e(f"s_cmp_eq_u32 s{sDMA}, 1")
    e("s_cbranch_scc0 K1_PRO_NODMA1")
    dmaW()
    e("s_branch K1_PRO_DMA1")
    lab("K1_PRO_NODMA1")
    for d in (S_X, S_W1, S_W3, S_QKV): e(f"s_mov_b32 s{d+2}, 0")
    e(f"s_mov_b32 s{sDWs}, {NW*WSLOT}")
    e(f"s_mov_b32 s{sDXs}, {XBASE+NX*XSLOT}")
    e(f"s_mov_b32 s{sWPD}, {NW*WSLOT}")
    e(f"s_mov_b32 s{sWPX}, {XBASE+NX*XSLOT}")
    lab("K1_PRO_DMA1")
    e(f"s_mov_b32 s{S_HF}, s50")
    e(f"s_and_b32 s{S_HF+1}, s51, 0xffff")
    e(f"s_mov_b32 s{S_HF+2}, {HF_BYTES}")
    e(f"s_mov_b32 s{S_HF+3}, 0x00020000")
    e(f"s_add_u32 s{S_W2F}, s50, {W2F_OFF}")
    e(f"s_addc_u32 s{S_W2F+1}, s51, 0")
    e(f"s_and_b32 s{S_W2F+1}, s{S_W2F+1}, 0xffff")
    e(f"s_mov_b32 s{S_W2F+2}, {W2F_BYTES}")
    e(f"s_mov_b32 s{S_W2F+3}, 0x00020000")
    for i in range(4): e(f"v_mov_b32 v{T+8+i}, 0x3f803f80")
    e(f"v_mov_b32 v{T+4}, {ONES}")
    e(f"ds_write_b128 v{T+4}, {vr(T+8,4)}")
    for o in (768, 3072, 3840):
        e(f"ds_write_b64 v{T+4}, {vr(T+8,2)} offset:{o}")
    e(f"v_and_b32 v{T}, 31, v{vLane}")
    e(f"v_lshrrev_b32 v{T+1}, 5, v{vLane}")
    e(f"v_bfe_u32 v{T+2}, v{vLane}, 1, 3")
    e(f"v_xor_b32 v{T+2}, v{T+2}, v{T+1}")
    e(f"v_lshlrev_b32 v{T+2}, 4, v{T+2}")
    e(f"v_lshl_add_u32 v{T+2}, v{T}, 7, v{T+2}")
    e(f"s_and_b32 s3, s{sG}, 1")
    e(f"s_lshl_b32 s4, s{sMH}, 1")
    e(f"s_add_u32 s{sMT0}, s4, s3")
    e(f"s_xor_b32 s{sMT1}, s{sMT0}, 1")
    e(f"s_lshl_b32 s3, s{sMT0}, 12")
    e(f"s_add_u32 s3, s3, {16*128}")
    e(f"v_add_u32 v{vXa0}, s3, v{T+2}")
    e(f"s_lshl_b32 s3, s{sMT1}, 12")
    e(f"s_add_u32 s3, s3, {16*128}")
    e(f"v_add_u32 v{vXa1}, s3, v{T+2}")
    e(f"v_bfe_u32 v{T}, v{vLane}, 4, 1")
    e(f"v_bfe_u32 v{T+2}, v{vLane}, 2, 2")
    e(f"v_lshl_add_u32 v{T+2}, v{T+1}, 3, v{T+2}")
    e(f"v_mul_u32_u24 v{T+2}, 192, v{T+2}")
    e(f"v_and_b32 v{T+3}, 3, v{vLane}")
    e(f"v_lshl_add_u32 v{T+4}, v{T+3}, 3, v{T+2}")
    e(f"v_lshl_add_u32 v{T+5}, v{T}, 5, v{T+4}")
    e(f"v_add_u32 v{T+5}, {QKVOFF}, v{T+5}")
    e(f"v_mul_u32_u24 v{T+7}, {W3OFF}, v{T}")
    e(f"v_add_u32 v{T+7}, v{T+7}, v{T+4}")
    e(f"v_add_u32 v{T+7}, s{sOF}, v{T+7}")
    for slot, dst in ((0, vWA), (1, vWB)):
        e(f"s_lshl_b32 s3, s{sG}, 1")
        e(f"s_add_u32 s3, s3, {slot}")
        e("s_lshl_b32 s4, s3, 6")
        e("s_sub_u32 s5, s3, 3")
        e("s_lshl_b32 s5, s5, 5")
        e("s_cmp_lt_u32 s3, 3")
        e("s_cselect_b32 s4, s4, s5")
        e(f"s_cselect_b64 {sr(sMK,2)}, -1, 0")
        e(f"v_cndmask_b32 v{dst}, v{T+7}, v{T+5}, {sr(sMK,2)}")
        e(f"v_add_u32 v{dst}, s4, v{dst}")
    e(f"v_lshrrev_b32 v{T+8}, 1, v{T+3}")
    e(f"v_mul_u32_u24 v{T+8}, {W3OFF}, v{T+8}")
    e(f"v_and_b32 v{T+9}, 1, v{T+3}")
    e(f"v_lshl_add_u32 v{T+8}, v{T+9}, 3, v{T+8}")
    e(f"v_add_u32 v{T+8}, v{T+8}, v{T+2}")
    e(f"v_add_u32 v{T+8}, s{sOH}, v{T+8}")
    e(f"v_mov_b32 v{T+9}, {ONES}")
    e(f"v_cmp_eq_u32 vcc, 1, v{T}")
    e(f"v_xor_b32 v{vM9}, 1, v{T}")
    e("s_nop 0")
    e(f"v_cndmask_b32 v{vB9}, v{T+8}, v{T+9}, vcc")
    stamp(3)
    e(f"v_and_b32 v{T}, 15, v{vLane}")
    e(f"v_lshrrev_b32 v{T+1}, 4, v{vLane}")
    e(f"v_bfe_u32 v{T+2}, v{vLane}, 1, 3")
    e(f"v_xor_b32 v{T+2}, v{T+2}, v{T+1}")
    e(f"v_lshlrev_b32 v{T+2}, 4, v{T+2}")
    e(f"v_lshl_add_u32 v{vHXa}, v{T}, 7, v{T+2}")
    e(f"s_lshl_b32 s3, s{sW}, 11")
    e(f"s_add_u32 s3, s3, 2048")
    e(f"v_add_u32 v{vSQa}, s3, v{vHXa}")
    e(f"v_cmp_eq_u32 vcc, 0, v{T}")
    e(f"v_mov_b32 v{T+4}, 0")
    e(f"v_mov_b32 v{T+5}, 1")
    e(f"v_cndmask_b32 v{vCH1}, v{T+4}, v{T+9}, vcc")
    e(f"v_cndmask_b32 v{vMH1}, v{T+5}, v{T+4}, vcc")
    e(f"v_and_b32 v{T+5}, 1, v{T+1}")
    e(f"v_cmp_eq_u32 vcc, v{T+5}, v{T}")
    e(f"v_mov_b32 v{T+5}, 0x3f803f80")
    e("s_nop 0")
    for i in range(4): e(f"v_cndmask_b32 v{SEL+i}, v{T+4}, v{T+5}, vcc")
    e(f"v_bfe_u32 v{T+2}, v{vLane}, 2, 2")
    e(f"v_lshl_add_u32 v{T+2}, v{T+1}, 3, v{T+2}")
    e(f"v_mul_u32_u24 v{T+2}, 192, v{T+2}")
    e(f"v_lshl_add_u32 v{T+2}, v{T+3}, 3, v{T+2}")
    e(f"s_lshl_b32 s3, s{sG}, 5")
    e(f"s_add_u32 s3, s3, {QKVOFF+64}")
    e(f"v_add_u32 v{vHWa}, s3, v{T+2}")
    e(f"v_bfe_u32 v{T}, v{vLane}, 4, 1")
    e(f"v_lshrrev_b32 v{T+1}, 5, v{vLane}")
    e(f"v_bfe_u32 v{T+2}, v{vLane}, 2, 2")
    e(f"s_cmp_eq_u32 s{sT0}, 1")
    e("s_cselect_b32 s3, 3, 2")
    e("s_movk_i32 s4, 512")
    e("s_cselect_b32 s4, 256, s4")
    e(f"v_lshlrev_b32 v{T+1}, s3, v{T+1}")
    e(f"v_add_u32 v{T+1}, v{T+1}, v{T+2}")
    e(f"v_lshlrev_b32 v{T+1}, 6, v{T+1}")
    e(f"v_lshl_add_u32 v{T+1}, v{T}, 5, v{T+1}")
    e(f"v_lshl_add_u32 v{T+1}, v{T+3}, 3, v{T+1}")
    e(f"s_add_u32 s5, s{sWPW}, {TS}")
    e(f"v_add_u32 v{vTA1}, s5, v{T+1}")
    e(f"v_add_u32 v{vTA2}, s4, v{vTA1}")
    for i in range(4): e(f"v_mov_b32 v{96+i}, 0")
    e("s_nop 1")
    for r in (0, 16, 32, 48, 64, 80, 100, 116, 132):
        e(f"v_mfma_f32_32x32x16_bf16 {vr(r,16)}, {vr(96,4)}, {vr(96,4)}, 0")
    e(f"s_mov_b32 s{sRWA}, 0")
    e(f"s_mov_b32 s{sRWB}, {WSLOT}")
    e(f"s_mov_b32 s{sRX}, {XBASE}")
    e(f"s_mov_b32 s{sIT}, 1")
    e(f"s_lshr_b32 s3, s{sG}, 1")
    e(f"s_cmp_eq_u32 s3, s{sMH}")
    e("s_cbranch_scc0 K1_ROLEH")

    uid = [0]
    DL = 6 if LA == 4 else 7
    def adv(sreg, step, lim):
        e(f"s_add_u32 s{sreg}, s{sreg}, {step}")
        e(f"s_sub_u32 s{sT1}, s{sreg}, {lim}")
        e(f"s_cmp_ge_u32 s{sreg}, {lim}")
        e(f"s_cselect_b32 s{sreg}, s{sT1}, s{sreg}")
    def dma_loop(even, role9):
        uid[0] += 1
        lb = f"K1_ND{uid[0]}"
        lim = {4: (6, 6), 3: (7, 6), 2: (7, 7)}[LA][0 if even else 1]
        e(f"s_cmp_{'gt' if lim == DL else 'ge'}_u32 s{sIT}, s{sDMA}")
        e(f"s_cbranch_scc1 {lb}")
        dmaW()
        if even: dmaX()
        lab(lb)
        if even and role9 and PF:
            e(f"s_lshl_b32 s{sT2}, s{sIT}, 3")
            e(f"s_add_u32 s{sT2}, s{sT2}, s{sW}")
            e(f"s_cmp_eq_u32 s{sT2}, {8*PFB+7}")
            e(f"s_cbranch_scc0 {lb}x")
            e(f"buffer_load_dword v{PV+12}, v{PV+2}, {sr(S_X,4)}, 0 offen")
            e(f"buffer_load_dword v{PV+12}, v{PV+3}, {sr(S_X,4)}, 0 offen")
            lab(lb + "x")
            e(f"s_cmp_eq_u32 s{sT2}, {8*PFB+6}")
            e(f"s_cbranch_scc0 {lb}w")
            e(f"buffer_load_dword v{PV+12}, v{PV+2}, {sr(S_W1,4)}, 0 offen")
            e(f"buffer_load_dword v{PV+12}, v{PV+3}, {sr(S_QKV,4)}, 0 offen")
            e(f"buffer_load_dword v{PV+12}, v{PV+2}, {sr(S_W3,4)}, 0 offen")
            lab(lb + "w")
    def vwait(steady, th, n, last0):
        uid[0] += 1
        lb = f"K1_VW{uid[0]}"
        e(f"s_waitcnt vmcnt({steady})")
        e(f"s_cmp_le_u32 s{sIT}, {th}")
        e(f"s_cbranch_scc1 {lb}")
        e(f"s_waitcnt vmcnt({n})")
        if last0:
            e(f"s_cmp_lt_u32 s{sIT}, 8")
            e(f"s_cbranch_scc1 {lb}")
            e("s_waitcnt vmcnt(0)")
        lab(lb)
    def x_addrs():
        r = [f"v_add_u32 v{aX}, s{sRX}, v{vXa0}", f"v_add_u32 v{aX+4}, s{sRX}, v{vXa1}"]
        for ks in range(1, 4):
            r.append(f"v_xor_b32 v{aX+ks}, {32*ks}, v{aX}")
            r.append(f"v_xor_b32 v{aX+4+ks}, {32*ks}, v{aX+4}")
        return r
    def chunk_addrs(srw, c2, role9):
        r = [f"v_add_u32 v{aWA}, s{srw}, v{vWA}", f"v_add_u32 v{aWB}, s{srw}, v{vWB}"]
        if role9:
            r.append(f"v_mad_u32_u24 v{a9}, v{vM9}, s{srw}, v{vB9}")
        else:
            r.append(f"v_add_u32 v{aHW}, s{srw}, v{vHWa}")
            r.append(f"v_add_u32 v{aHX}, s{sRX}, v{vHXa}")
            if c2: r.append(f"v_xor_b32 v{aHX}, 64, v{aHX}")
            r.append(f"v_mad_u32_u24 v{aHX1}, v{vMH1}, v{aHX}, v{vCH1}")
        r.append(f"v_add_u32 v{aSQ}, s{sRX}, v{vSQa}")
        if c2: r.append(f"v_xor_b32 v{aSQ}, 64, v{aSQ}")
        return r
    def reads(st, ks4, role9):
        ks = ks4 & 1
        o = 3072 * ks
        r = [f"ds_read_b128 {vr(FX[st],4)}, v{aX+ks4}",
             f"ds_read_b64_tr_b16 {vr(FW[st],2)}, v{aWA} offset:{o}",
             f"ds_read_b64_tr_b16 {vr(FW[st]+2,2)}, v{aWA} offset:{o+768}",
             f"ds_read_b128 {vr(FX[st]+4,4)}, v{aX+4+ks4}",
             f"ds_read_b64_tr_b16 {vr(FW[st]+4,2)}, v{aWB} offset:{o}",
             f"ds_read_b64_tr_b16 {vr(FW[st]+6,2)}, v{aWB} offset:{o+768}"]
        if role9:
            r += [f"ds_read_b64_tr_b16 {vr(FW[st]+8,2)}, v{a9} offset:{o}",
                  f"ds_read_b64_tr_b16 {vr(FW[st]+10,2)}, v{a9} offset:{o+768}"]
        return r
    def side_reads(role9):
        r = [f"ds_read_b128 {vr(FSQ,4)}, v{aSQ}"]
        if not role9:
            r += [f"ds_read_b128 {vr(FHX,4)}, v{aHX}", f"ds_read_b128 {vr(FHX1,4)}, v{aHX1}",
                  f"ds_read_b64_tr_b16 {vr(FHW,2)}, v{aHW}", f"ds_read_b64_tr_b16 {vr(FHW+2,2)}, v{aHW} offset:768"]
        return r
    def mfma_list(st, ks4, role9):
        mf = [f"v_mfma_f32_32x32x16_bf16 {vr(ACC,16)}, {vr(FW[st],4)}, {vr(FX[st],4)}, {vr(ACC,16)}",
              f"v_mfma_f32_32x32x16_bf16 {vr(ACC+16,16)}, {vr(FW[st],4)}, {vr(FX[st]+4,4)}, {vr(ACC+16,16)}",
              f"v_mfma_f32_32x32x16_bf16 {vr(ACC+32,16)}, {vr(FW[st]+4,4)}, {vr(FX[st],4)}, {vr(ACC+32,16)}",
              f"v_mfma_f32_32x32x16_bf16 {vr(ACC+48,16)}, {vr(FW[st]+4,4)}, {vr(FX[st]+4,4)}, {vr(ACC+48,16)}"]
        small = []
        if role9:
            mf.append(f"v_mfma_f32_32x32x16_bf16 {vr(ACC9,16)}, {vr(FW[st]+8,4)}, {vr(FX[st],4)}, {vr(ACC9,16)}")
            small.append(f"v_mfma_f32_16x16x32_bf16 {vr(CSA,4)}, {vr(FW[st],4)}, {vr(SEL,4)}, {vr(CSA,4)}")
        else:
            small.append(f"v_mfma_f32_16x16x32_bf16 {vr(CSA,4)}, {vr(FW[st]+4,4)}, {vr(SEL,4)}, {vr(CSA,4)}")
        if ks4 & 1:
            small.append(f"v_mfma_f32_16x16x32_bf16 {vr(SQA,4)}, {vr(FSQ,4)}, {vr(FSQ,4)}, {vr(SQA,4)}")
            if not role9:
                small.append(f"v_mfma_f32_16x16x32_bf16 {vr(ACC9,4)}, {vr(FHW,4)}, {vr(FHX,4)}, {vr(ACC9,4)}")
                small.append(f"v_mfma_f32_16x16x32_bf16 {vr(HST,4)}, {vr(FHX1,4)}, {vr(FHX,4)}, {vr(HST,4)}")
        return small, mf
    def group(st, ks4, role9, fill):
        small, mf = mfma_list(st, ks4, role9)
        MODE = os.environ.get("GMODE", "weave")
        def c9():
            if role9:
                uid[0] += 1
                lb = f"K1_C9{uid[0]}"
                e(f"s_cmp_eq_u32 s{sG}, {ks4}")
                e(f"s_cbranch_scc0 {lb}")
                e(f"v_mfma_f32_16x16x32_bf16 {vr(CS9A,4)}, {vr(FW[st]+8,4)}, {vr(SEL,4)}, {vr(CS9A,4)}")
                lab(lb)
        if MODE == "weave":
            for m in small: e(m)
            c9()
            n = len(mf) - 1
            per = [len(fill) * (i + 1) // n - len(fill) * i // n for i in range(n)] + [0]
            k = 0
            for i, m in enumerate(mf):
                e(m)
                for f in fill[k:k + per[i]]: e(f)
                k += per[i]
        elif MODE == "first":
            for f in fill: e(f)
            for m in mf: e(m)
            for m in small: e(m)
            c9()
        elif MODE == "one":
            e(mf[0])
            for f in fill: e(f)
            for m in mf[1:]: e(m)
            for m in small: e(m)
            c9()
        elif MODE == "two":
            e(mf[0])
            h = len(fill) // 2
            for f in fill[:h]: e(f)
            e(mf[1])
            for f in fill[h:]: e(f)
            for m in mf[2:]: e(m)
            for m in small: e(m)
            c9()

    def mainloop(role9):
        nm = "9" if role9 else "H"
        uid[0] += 1
        lb = f"K1_TJ{uid[0]}"
        e("s_waitcnt vmcnt(9)")
        e(f"s_cmp_eq_u32 s{sDMA}, 1")
        e(f"s_cbranch_scc1 {lb}")
        e(f"s_waitcnt vmcnt({2 if PF else 0})")
        lab(lb)
        e(f"s_mul_i32 s{sDMA}, s{sDMA}, {DL}")
        e(f"v_lshlrev_b32 v{T+10}, 4, v{vLane}")
        e(f"s_add_u32 s3, s{sWPW}, {TS}")
        e(f"v_add_u32 v{T+11}, s3, v{T+10}")
        e(f"ds_write_b128 v{T+11}, {vr(WT,4)}")
        e("s_waitcnt lgkmcnt(0)")
        e(f"ds_read_b64_tr_b16 {vr(WT,2)}, v{vTA1}")
        e(f"ds_read_b64_tr_b16 {vr(WT+2,2)}, v{vTA2}")
        e(f"s_lshl_b32 s3, s{sID}, 10")
        e("s_waitcnt lgkmcnt(0)")
        e(f"buffer_store_dwordx4 {vr(WT,4)}, v{T+10}, {sr(S_W2F,4)}, s3 offen")
        PB = int(os.environ.get("PB", "1"))
        if LA == 4:
            e("s_barrier")
            e(f"s_cmp_eq_u32 s{sDMA}, 0")
            e(f"s_cbranch_scc1 K1_PND{nm}")
            dmaW(); dmaX()
            lab(f"K1_PND{nm}")
        if LA >= 3:
            e("s_barrier")
            e(f"s_cmp_eq_u32 s{sDMA}, 0")
            e(f"s_cbranch_scc1 K1_PNE{nm}")
            dmaW()
            lab(f"K1_PNE{nm}")
        stamp(1)
        lab(f"K1_LOOP{nm}")
        INLOOP[0] = True
        for a_ in x_addrs() + chunk_addrs(sRWA, 0, role9): e(a_)
        e("s_waitcnt vmcnt(3) lgkmcnt(0)")
        e("s_barrier")
        if STAMP == 2:
            e("s_memtime s[92:93]")
            e(f"s_lshl_b32 s94, s{sIT}, 1")
            e("s_add_u32 m0, s94, 38")
            e("s_waitcnt lgkmcnt(0)")
            e(f"v_writelane_b32 v{STV}, s92, m0")
        DW = os.environ.get("DW", "AB")
        dE = capture(lambda: (dmaW(), dmaX())); dO = capture(dmaW)
        def split(d):
            if DW == "A": return d, []
            if DW == "B": return [], d
            k = 13 if len(d) > 13 else 8
            return d[:k], d[k:]
        d1, d2 = split(dE)
        group(1, 3, role9, reads(0, 0, role9) + d1)
        e("s_waitcnt lgkmcnt(0)")
        group(0, 0, role9, reads(1, 1, role9) + side_reads(role9) + d2)
        for a_ in chunk_addrs(sRWB, 1, role9): e(a_)
        e("s_waitcnt vmcnt(6) lgkmcnt(0)")
        e("s_barrier")
        if STAMP == 2:
            e("s_memtime s[92:93]")
            e(f"s_lshl_b32 s94, s{sIT}, 1")
            e("s_add_u32 m0, s94, 39")
            e("s_waitcnt lgkmcnt(0)")
            e(f"v_writelane_b32 v{STV}, s92, m0")
        d1, d2 = split(dO)
        group(1, 1, role9, reads(0, 2, role9) + d1)
        e("s_waitcnt lgkmcnt(0)")
        tail = [f"s_cmp_eq_u32 s{sIT}, 7"] + [f"s_cselect_b32 s{d+2}, 0, s{d+2}" for d in (S_X, S_W1, S_W3, S_QKV)]
        group(0, 2, role9, reads(1, 3, role9) + side_reads(role9) + d2 + tail)
        adv(sRWA, 2 * WSLOT, NW * WSLOT)
        adv(sRWB, 2 * WSLOT, NW * WSLOT)
        e(f"s_add_u32 s{sRX}, s{sRX}, {XSLOT}")
        e(f"s_cmp_ge_u32 s{sRX}, {XBASE+NX*XSLOT}")
        e(f"s_cselect_b32 s{sRX}, {XBASE}, s{sRX}")
        INLOOP[0] = False
        if STAMP:
            e("s_memtime s[92:93]")
            e(f"s_add_u32 m0, s{sIT}, 31")
            e("s_waitcnt lgkmcnt(0)")
            e(f"v_writelane_b32 v{STV}, s92, m0")
        e(f"s_add_u32 s{sIT}, s{sIT}, 1")
        e(f"s_cmp_lt_u32 s{sIT}, 9")
        e(f"s_cbranch_scc1 K1_LOOP{nm}")
        e("s_waitcnt lgkmcnt(0)")
        group(1, 3, role9, [])
        stamp(4)
        e(f"v_and_b32 v{T}, 15, v{vLane}")
        e(f"v_lshrrev_b32 v{T+1}, 4, v{vLane}")
        e(f"v_lshlrev_b32 v{T+2}, 6, v{T}")
        e(f"v_lshl_add_u32 v{T+2}, v{T+1}, 4, v{T+2}")
        e(f"s_lshl_b32 s3, s{sG}, 8")
        e(f"s_add_u32 s3, s3, {CS + (0 if role9 else 128)}")
        e(f"v_add_u32 v{T+3}, s3, v{T+2}")
        e(f"s_lshl_b32 s3, s{sG}, 7")
        e(f"s_add_u32 s3, s3, {CS9}")
        e(f"v_add_u32 v{T+4}, s3, v{T+2}")
        e(f"v_and_b32 v{T+5}, 3, v{vLane}")
        e(f"v_lshlrev_b32 v{T+6}, 2, v{vLane}")
        e(f"s_lshl_b32 s3, s{sW}, 8")
        e(f"s_add_u32 s3, s3, {SQ}")
        e(f"v_add_u32 v{T+7}, s3, v{T+6}")
        def diag(dst, src):
            e(f"v_cmp_eq_u32 vcc, 1, v{T+5}")
            e(f"v_cmp_eq_u32 {sr(sMK,2)}, 2, v{T+5}")
            e(f"v_cmp_eq_u32 s[4:5], 3, v{T+5}")
            e(f"v_cndmask_b32 v{dst}, v{src}, v{src+1}, vcc")
            e(f"v_cndmask_b32 v{dst}, v{dst}, v{src+2}, {sr(sMK,2)}")
            e(f"v_cndmask_b32 v{dst}, v{dst}, v{src+3}, s[4:5]")
        diag(T + 8, SQA)
        e(f"ds_write_b32 v{T+7}, v{T+8}")
        if not role9:
            diag(T + 9, HST)
            e(f"s_lshl_b32 s3, s{sG}, 9")
            e(f"s_add_u32 s3, s3, {HSC}")
            e(f"v_add_u32 v{T+10}, s3, v{T+6}")
            e(f"ds_write_b32 v{T+10}, v{T+9}")
            e(f"ds_write_b32 v{T+10}, v{HST} offset:256")
        e(f"v_cmp_gt_u32 vcc, 2, v{T}")
        e("s_and_saveexec_b64 s[4:5], vcc")
        e(f"ds_write_b128 v{T+3}, {vr(CSA,4)}")
        if role9:
            e(f"ds_write_b128 v{T+4}, {vr(CS9A,4)}")
        e("s_mov_b64 exec, s[4:5]")
        e(f"v_and_b32 v{T}, 31, v{vLane}")
        e(f"v_lshlrev_b32 v{T}, 2, v{T}")
        e(f"s_lshl_b32 s3, s{sMT0}, 7")
        e(f"s_lshl_b32 s4, s{sMT1}, 7")
        e(f"v_add_u32 v{T+2}, s3, v{T}")
        e(f"v_add_u32 v{T+3}, s4, v{T}")
        if role9:
            e(f"v_add_u32 v{T+6}, {RS}, v{T+2}")
            e(f"ds_write_b32 v{T+6}, v{ACC9+8}")
        e(f"s_mov_b32 s{sT3}, {1 if role9 else 0}")
        e("s_waitcnt vmcnt(0)")
        e("s_branch K1_EPI")

    mainloop(True)
    lab("K1_ROLEH")
    mainloop(False)

    lab("K1_EPI")
    sROLE = sT3
    CA, CB = 80, 96
    C9 = 112
    ST = 120
    RAW = 132
    e("s_waitcnt lgkmcnt(0)")
    e("s_barrier")
    stamp(5)
    e(f"v_add_u32 v{T+4}, {RS}, v{T+2}")
    e(f"v_add_u32 v{T+5}, {RS}, v{T+3}")
    e(f"ds_read_b32 v{RAW}, v{T+4}")
    e(f"ds_read_b32 v{RAW+1}, v{T+5}")
    e(f"v_and_b32 v{T+6}, 15, v{vLane}")
    e(f"v_lshrrev_b32 v{T+7}, 2, v{T+6}")
    e(f"v_lshl_add_u32 v{T+6}, v{T+7}, 4, v{T+6}")
    e(f"v_lshlrev_b32 v{T+6}, 2, v{T+6}")
    e(f"v_bfe_u32 v{T+7}, v{vLane}, 4, 1")
    e(f"v_lshl_add_u32 v{T+7}, v{T+7}, 8, v{T+6}")
    e(f"s_lshl_b32 s3, s{sMT0}, 9")
    e(f"s_add_u32 s3, s3, {SQ}")
    e(f"s_lshl_b32 s4, s{sMT1}, 9")
    e(f"s_add_u32 s4, s4, {SQ}")
    e(f"v_add_u32 v{T+8}, s3, v{T+7}")
    e(f"v_add_u32 v{T+7}, s4, v{T+7}")
    e(f"ds_read_b32 v{RAW+2}, v{T+8}")
    e(f"ds_read_b32 v{RAW+3}, v{T+7}")
    e(f"s_lshl_b32 s3, s{sG}, 9")
    e(f"s_add_u32 s3, s3, {HSC}")
    e(f"v_add_u32 v{T+6}, s3, v{T+6}")
    e(f"v_and_b32 v{T+8}, 15, v{vLane}")
    e(f"v_lshlrev_b32 v{T+8}, 2, v{T+8}")
    e(f"v_add_u32 v{T+8}, s3, v{T+8}")
    e(f"ds_read_b32 v{RAW+4}, v{T+8} offset:256")
    e(f"ds_read_b32 v{RAW+5}, v{T+6}")
    e(f"v_lshrrev_b32 v{T+9}, 5, v{vLane}")
    e(f"v_lshlrev_b32 v{T+10}, 4, v{T+9}")
    e(f"s_lshl_b32 s3, s{sG}, 8")
    e(f"s_add_u32 s3, s3, {CS}")
    e(f"v_add_u32 v{T+11}, s3, v{T+10}")
    for q in range(4):
        e(f"ds_read_b128 {vr(CA+4*q,4)}, v{T+11} offset:{32*q}")
    for q in range(4):
        e(f"ds_read_b128 {vr(CB+4*q,4)}, v{T+11} offset:{128+32*q}")
    e("s_waitcnt lgkmcnt(8)")
    e(f"s_cmp_eq_u32 s{sROLE}, 1")
    e("s_cbranch_scc0 K1_E_CH")
    e(f"v_add_u32 v{T+12}, {CS9}, v{T+10}")
    for p in range(4):
        e(f"ds_read_b128 {vr(vTMP+8+8*p,4)}, v{T+12} offset:{128*p}")
        e(f"ds_read_b128 {vr(vTMP+12+8*p,4)}, v{T+12} offset:{128*p+32}")
    e("s_waitcnt lgkmcnt(0)")
    for i in range(8):
        e(f"v_add_f32 v{C9+i}, v{vTMP+8+i}, v{vTMP+16+i}")
        e(f"v_add_f32 v{vTMP+24+i}, v{vTMP+24+i}, v{vTMP+32+i}")
    for i in range(8):
        e(f"v_add_f32 v{C9+i}, v{C9+i}, v{vTMP+24+i}")
    e("s_branch K1_E_CD")
    lab("K1_E_CH")
    e(f"v_lshrrev_b32 v{T+13}, 4, v{vLane}")
    e(f"v_lshlrev_b32 v{T+13}, 4, v{T+13}")
    e(f"s_lshl_b32 s3, s{sG}, 6")
    e(f"s_add_u32 s3, s3, {CS+128}")
    e(f"v_add_u32 v{T+13}, s3, v{T+13}")
    e(f"ds_read_b128 {vr(C9,4)}, v{T+13}")
    lab("K1_E_CD")
    def stats(rs, sq, o):
        t = vTMP
        e(f"v_mul_f32 v{t}, {f2u(1/512):#x}, v{rs}")
        e(f"v_mul_f32 v{t+1}, {f2u(1/512):#x}, v{sq}")
        e(f"v_fma_f32 v{t+1}, -v{t}, v{t}, v{t+1}")
        e(f"v_max_f32 v{t+1}, 0, v{t+1}")
        e(f"v_cvt_pk_bf16_f32 v{t+2}, v{t}, v{t+1}")
        e(f"v_lshlrev_b32 v{t}, 16, v{t+2}")
        e(f"v_and_b32 v{t+1}, 0xffff0000, v{t+2}")
        e(f"v_add_f32 v{t+1}, {f2u(1e-5):#x}, v{t+1}")
        e(f"v_cvt_pk_bf16_f32 v{t+2}, v{t+1}, v{t+1}")
        e(f"v_and_b32 v{t+1}, 0xffff0000, v{t+2}")
        e(f"v_sqrt_f32 v{t+1}, v{t+1}")
        e(f"v_xor_b32 v{o+1}, 0x80000000, v{t}")
        e(f"v_cvt_pk_bf16_f32 v{t+2}, v{t+1}, v{t+1}")
        e(f"v_and_b32 v{t+1}, 0xffff0000, v{t+2}")
        e(f"v_rcp_f32 v{o}, v{t+1}")
        e(f"v_mul_f32 v{o+3}, v{t+1}, v{t+1}")
        e(f"v_mul_f32 v{o+2}, {f2u(-LOG2E):#x}, v{o}")
    stats(RAW, RAW + 2, ST)
    stats(RAW + 1, RAW + 3, ST + 4)
    stats(RAW + 4, RAW + 5, ST + 8)
    e(f"v_and_b32 v{T}, 31, v{vLane}")
    e(f"v_mul_u32_u24 v{T}, {SPITCH}, v{T}")
    e(f"v_lshl_add_u32 v{T+1}, v{T+9}, 3, v{T}")
    e(f"v_lshl_add_u32 v{T+2}, v{T+9}, 4, v{T}")
    e(f"s_mul_i32 s3, s{sMT0}, {32*SPITCH}")
    e(f"s_add_u32 s3, s3, {STG+16*SPITCH}")
    e(f"s_mul_i32 s4, s{sMT1}, {32*SPITCH}")
    e(f"s_add_u32 s4, s4, {STG+16*SPITCH}")
    e(f"v_add_u32 v{T+3}, s3, v{T+1}")
    e(f"v_add_u32 v{T+4}, s4, v{T+1}")
    e(f"v_add_u32 v{T+5}, s3, v{T+2}")
    e(f"v_add_u32 v{T+6}, s4, v{T+2}")
    e(f"v_lshlrev_b32 v{T+7}, 4, v{vLane}")
    e(f"s_lshl_b32 s5, s{sRB}, 2")
    e(f"s_add_u32 s{sT1}, s5, s{sMT0}")
    e(f"s_add_u32 s{sT2}, s5, s{sMT1}")
    e("s_waitcnt lgkmcnt(0)")
    def ln16(R, C, st, n, dst):
        for i in range(n):
            e(f"v_fma_f32 v{dst+i}, v{C+i}, v{st+1}, v{R+i}")
        for i in range(n):
            e(f"v_mul_f32 v{dst+i}, v{st}, v{dst+i}")
    def tile_qk(R, C, st, addr, sec):
        t = vTMP
        ln16(R, C, st, 16, t)
        for q in range(4):
            e(f"v_cvt_pk_bf16_f32 v{t+16+2*q}, v{t+4*q}, v{t+4*q+1}")
            e(f"v_cvt_pk_bf16_f32 v{t+17+2*q}, v{t+4*q+2}, v{t+4*q+3}")
        for q in range(4):
            e(f"ds_write_b64 v{addr}, {vr(t+16+2*q,2)} offset:{sec*64+16*q}")
    def tile_v(R, C, st, addr):
        t = vTMP + 24
        ln16(R, C, st, 16, t)
        for q in range(4):
            e(f"ds_write_b128 v{addr}, {vr(t+4*q,4)} offset:{128+32*q}")
    def silu(R, C, st, n, goff, uoff, t):
        for i in range(n):
            e(f"v_fma_f32 v{t+i}, v{C+goff+i}, v{st+1}, v{R+goff+i}")
        for i in range(n):
            e(f"v_mul_f32 v{t+n+i}, v{st+2}, v{t+i}")
        for i in range(n):
            e(f"v_exp_f32 v{t+n+i}, v{t+n+i}")
        for i in range(n):
            e(f"v_fma_f32 v{t+2*n+i}, v{C+uoff+i}, v{st+1}, v{R+uoff+i}")
        for i in range(n):
            e(f"v_fma_f32 v{t+n+i}, v{t+n+i}, v{st+3}, v{st+3}")
        for i in range(n):
            e(f"v_rcp_f32 v{t+n+i}, v{t+n+i}")
        for i in range(n):
            e(f"v_mul_f32 v{t+i}, v{t+i}, v{t+2*n+i}")
        for i in range(n):
            e(f"v_mul_f32 v{t+i}, v{t+i}, v{t+n+i}")
        for i in range(n // 2):
            e(f"v_cvt_pk_bf16_f32 v{t+3*n+i}, v{t+2*i}, v{t+2*i+1}")
    def tile_ffn(R, C, st, smt, tau_s, tbase):
        silu(R, C, st, 8, 0, 8, tbase)
        e(f"s_add_u32 s3, s{tau_s}, s{smt}")
        e("s_lshl_b32 s3, s3, 10")
        e(f"buffer_store_dwordx4 {vr(tbase+24,4)}, v{T+7}, {sr(S_HF,4)}, s3 offen")
    e(f"s_lshl_b32 s6, s{sG}, 1")
    e(f"s_add_u32 s6, s6, s{sTF}")
    e("s_add_u32 s6, s6, 29")
    e("s_lshl_b32 s6, s6, 6")
    e("s_add_u32 s7, s6, 64")
    e(f"s_cmp_eq_u32 s{sG}, 0")
    e("s_cbranch_scc1 K1_E_G0")
    e(f"s_cmp_eq_u32 s{sG}, 1")
    e("s_cbranch_scc1 K1_E_G1")
    tile_ffn(ACC, CA, ST, sT1, 6, vTMP)
    tile_ffn(ACC + 16, CA, ST + 4, sT2, 6, vTMP - 54)
    e("s_branch K1_E_B")
    lab("K1_E_G1")
    tile_v(ACC, CA, ST, T + 5)
    e("s_nop 1")
    tile_v(ACC + 16, CA, ST + 4, T + 6)
    lab("K1_E_B")
    tile_ffn(ACC + 32, CB, ST, sT1, 7, vTMP)
    tile_ffn(ACC + 48, CB, ST + 4, sT2, 7, vTMP - 54)
    e("s_branch K1_E_C")
    lab("K1_E_G0")
    tile_qk(ACC, CA, ST, T + 3, 0)
    tile_qk(ACC + 16, CA, ST + 4, T + 4, 0)
    tile_qk(ACC + 32, CB, ST, T + 3, 1)
    tile_qk(ACC + 48, CB, ST + 4, T + 4, 1)
    lab("K1_E_C")
    e(f"s_cmp_eq_u32 s{sROLE}, 1")
    e("s_cbranch_scc0 K1_E_HALO")
    e(f"s_cmp_eq_u32 s{sHAS}, 1")
    e("s_cbranch_scc0 K1_E_D")
    e("s_nop 1")
    silu(ACC9, C9, ST, 4, 0, 4, vTMP)
    e(f"s_add_u32 s3, s{sTH}, 32")
    e("s_lshl_b32 s3, s3, 6")
    e(f"s_add_u32 s3, s3, s{sT1}")
    e("s_lshl_b32 s3, s3, 10")
    e(f"s_lshl_b32 s4, s{sHSEL}, 3")
    e("s_add_u32 s3, s3, s4")
    e(f"buffer_store_dwordx2 {vr(vTMP+12,2)}, v{T+7}, {sr(S_HF,4)}, s3 offen")
    e("s_branch K1_E_D")
    lab("K1_E_HALO")
    t = vTMP + 40
    ln16(ACC9, C9, ST + 8, 4, t)
    e(f"v_and_b32 v{T}, 63, v0") if False else None
    e(f"v_lshrrev_b32 v{T+8}, 4, v{T+7}")
    e(f"v_and_b32 v{T}, 15, v{T+8}")
    e(f"v_mul_u32_u24 v{T}, {SPITCH}, v{T}")
    e(f"v_lshrrev_b32 v{T+1}, 4, v{T+8}")
    e(f"s_cmp_lt_u32 s{sG}, 2")
    e("s_cbranch_scc0 K1_E_HV")
    e(f"v_cvt_pk_bf16_f32 v{t+4}, v{t}, v{t+1}")
    e(f"v_cvt_pk_bf16_f32 v{t+5}, v{t+2}, v{t+3}")
    e(f"v_lshl_add_u32 v{T}, v{T+1}, 3, v{T}")
    e(f"s_lshl_b32 s3, s{sG}, 5")
    e(f"s_add_u32 s3, s3, {STG+64}")
    e(f"v_add_u32 v{T}, s3, v{T}")
    e(f"ds_write_b64 v{T}, {vr(t+4,2)}")
    e("s_branch K1_E_D")
    lab("K1_E_HV")
    e(f"v_lshl_add_u32 v{T}, v{T+1}, 4, v{T}")
    e(f"s_lshl_b32 s3, s{sG}, 6")
    e(f"s_add_u32 s3, s3, {STG+128-128}")
    e(f"v_add_u32 v{T}, s3, v{T}")
    e(f"ds_write_b128 v{T}, {vr(t,4)}")
    lab("K1_E_D")
    Q = 0; KK = 4; VV = 36; P = 100; O = 112; A2 = 120
    e(f"v_lshrrev_b32 v{T+8}, 4, v{T+7}")
    e(f"v_and_b32 v{T}, 31, v{T+8}")
    e(f"v_lshrrev_b32 v{T+1}, 5, v{T+8}")
    e(f"s_lshr_b32 s3, s{sW}, 1")
    e(f"s_and_b32 s4, s{sW}, 1")
    e(f"v_mul_u32_u24 v{T+2}, {SPITCH}, v{T}")
    e(f"s_mul_i32 s5, s3, {32*SPITCH}")
    e(f"s_add_u32 s5, s5, {STG+2*SPITCH}")
    e("s_lshl_b32 s6, s4, 5")
    e("s_add_u32 s6, s6, s5")
    e(f"v_lshl_add_u32 v{T+3}, v{T+1}, 4, v{T+2}")
    e(f"v_add_u32 v{T+3}, s6, v{T+3}")
    e("s_lshl_b32 s6, s4, 6")
    e("s_add_u32 s6, s6, s5")
    e(f"v_lshl_add_u32 v{T+4}, v{T+1}, 5, v{T+2}")
    e(f"v_add_u32 v{T+4}, s6, v{T+4}")
    e("s_lshl_b32 s5, s3, 5")
    e(f"s_add_u32 s5, s5, s{sM0}")
    e(f"v_add_u32 v{T+5}, s5, v{T}")
    e(f"v_lshlrev_b32 v{T+6}, 1, v{T+1}")
    e(f"v_sub_u32 v{T+5}, v{T+5}, v{T+6}")
    e(f"s_lshl_b32 s5, s{sCG}, 1")
    e("s_add_u32 s5, s5, s4")
    e("s_lshl_b32 s5, s5, 6")
    e(f"s_lshl_b32 s6, s{sRB}, 2")
    e("s_add_u32 s5, s5, s6")
    e("s_add_u32 s5, s5, s3")
    e(f"s_lshl_b32 s{sT1}, s5, 10")
    stamp(6)
    e("s_waitcnt lgkmcnt(0)")
    e("s_barrier")
    stamp(7)
    e(f"ds_read_b128 {vr(Q,4)}, v{T+3} offset:{14*SPITCH}")
    for w in range(8):
        e(f"ds_read_b128 {vr(KK+4*w,4)}, v{T+3} offset:{(14-2*w)*SPITCH+64}")
    for w in range(3):
        e(f"ds_read_b128 {vr(VV+8*w,4)}, v{T+4} offset:{(14-2*w)*SPITCH+128}")
        e(f"ds_read_b128 {vr(VV+8*w+4,4)}, v{T+4} offset:{(14-2*w)*SPITCH+144}")
    for w in range(8):
        e(f"s_waitcnt lgkmcnt({min(15, 13-w)})")
        e(f"v_dot2_f32_bf16 v{P+w}, v{Q}, v{KK+4*w}, 0")
        for i in range(1, 4):
            e(f"v_dot2_f32_bf16 v{P+w}, v{Q+i}, v{KK+4*w+i}, v{P+w}")
    for w in range(3, 8):
        e(f"ds_read_b128 {vr(VV+8*w,4)}, v{T+4} offset:{(14-2*w)*SPITCH+128}")
        e(f"ds_read_b128 {vr(VV+8*w+4,4)}, v{T+4} offset:{(14-2*w)*SPITCH+144}")
    e("s_nop 2")
    for i in range(4):
        e(f"v_permlane32_swap_b32 v{P+2*i}, v{P+2*i+1}")
    e(f"v_mov_b32 v{T+9}, {f2u(-1e9):#x}")
    for i in range(4):
        e(f"v_add_f32 v{P+2*i}, v{P+2*i}, v{P+2*i+1}")
    for i in range(4):
        e(f"v_cmp_le_i32 vcc, {4*i}, v{T+5}")
        e(f"v_mul_f32 v{P+2*i}, 0.25, v{P+2*i}") if False else e(f"v_mul_f32 v{P+2*i}, {f2u(0.25):#x}, v{P+2*i}")
        e("s_nop 0")
        e(f"v_cndmask_b32 v{P+2*i}, v{T+9}, v{P+2*i}, vcc")
    e(f"v_max3_f32 v{P+1}, v{P}, v{P+2}, v{P+4}")
    e(f"v_max_f32 v{P+1}, v{P+1}, v{P+6}")
    e(f"v_mov_b32 v{P+3}, v{P+1}")
    e("s_nop 1")
    e(f"v_permlane32_swap_b32 v{P+1}, v{P+3}")
    e("s_nop 0")
    e(f"v_max_f32 v{P+1}, v{P+1}, v{P+3}")
    for i in range(4):
        e(f"v_sub_f32 v{P+2*i}, v{P+2*i}, v{P+1}")
    for i in range(4):
        e(f"v_mul_f32 v{P+2*i}, {f2u(LOG2E):#x}, v{P+2*i}")
    for i in range(4):
        e(f"v_exp_f32 v{P+2*i}, v{P+2*i}")
    e("s_nop 0")
    e(f"v_add_f32 v{P+1}, v{P}, v{P+2}")
    e(f"v_add_f32 v{P+3}, v{P+4}, v{P+6}")
    e(f"v_add_f32 v{P+1}, v{P+1}, v{P+3}")
    e(f"v_mov_b32 v{P+3}, v{P+1}")
    e("s_nop 1")
    e(f"v_permlane32_swap_b32 v{P+1}, v{P+3}")
    e("s_nop 0")
    e(f"v_add_f32 v{P+8}, v{P+1}, v{P+3}")
    e(f"v_rcp_f32 v{P+8}, v{P+8}")
    e("s_nop 0")
    for i in range(4):
        e(f"v_mul_f32 v{P+2*i}, v{P+2*i}, v{P+8}")
    for i in range(4):
        e(f"v_mov_b32 v{P+2*i+1}, v{P+2*i}")
    e("s_nop 1")
    for i in range(4):
        e(f"v_permlane32_swap_b32 v{P+2*i}, v{P+2*i+1}")
    e("s_nop 0")
    for w in range(8):
        e(f"s_waitcnt lgkmcnt({14-2*w})")
        for d in range(8):
            if w == 0:
                e(f"v_mul_f32 v{O+d}, v{P}, v{VV+d}")
            else:
                e(f"v_fmac_f32 v{O+d}, v{P+w}, v{VV+8*w+d}")
    for i in range(4):
        e(f"v_cvt_pk_bf16_f32 v{A2+i}, v{O+2*i}, v{O+2*i+1}")
    e(f"buffer_store_dwordx4 {vr(A2,4)}, v{T+7}, {sr(S_HF,4)}, s{sT1} offen")
    stamp(8)
    if STAMP: e("s_waitcnt vmcnt(0)")
    stamp(9)
    stamp_flush(50, 0x1000000, sW)
    lab("K1_END")
    e("s_endpgm")

def kernel2():
    S_HF, S_W2F, S_X, S_O = 8, 12, 16, 20
    sW, sMB, sNB, sKH, sKW = 30, 31, 32, 33, 34
    ACC = 0
    vLane, vH0, vH1, vW0, vW1, vXO = 64, 65, 66, 67, 68, 69
    XR = 72
    T = 80
    RD = 96
    NK = 30; D = int(os.environ.get('K2D', '15')); ROT = int(os.environ.get('K2ROT', '0'))
    L.append(".globl k2_kernel\n.p2align 8\n.type k2_kernel,@function\nk2_kernel:")
    e("s_cmp_ge_u32 s2, 256")
    e("s_cbranch_scc1 K2_END")
    e("s_load_dwordx2 s[36:37], s[0:1], 0")
    e("s_load_dwordx2 s[38:39], s[0:1], 56")
    e("s_load_dwordx2 s[40:41], s[0:1], 72")
    stamp(0)
    e(f"v_and_b32 v{vLane}, 63, v0")
    e(f"v_lshrrev_b32 v{T}, 6, v0")
    e("s_and_b32 s3, s2, 7")
    e(f"v_readfirstlane_b32 s{sW}, v{T}")
    e("s_lshr_b32 s4, s2, 3")
    e("s_and_b32 s5, s3, 1")
    e("s_lshl_b32 s5, s5, 1")
    e("s_bfe_u32 s6, s3, 0x10001")
    e("s_add_u32 s5, s5, s6")
    e("s_lshl_b32 s5, s5, 3")
    e("s_and_b32 s6, s4, 7")
    e(f"s_add_u32 s{sMB}, s5, s6")
    e("s_lshr_b32 s5, s3, 2")
    e("s_lshl_b32 s5, s5, 2")
    e("s_lshr_b32 s6, s4, 3")
    e(f"s_add_u32 s{sNB}, s5, s6")
    e(f"v_lshlrev_b32 v{T}, 4, v{vLane}")
    e(f"s_lshr_b32 s3, s{sW}, 1")
    e(f"s_and_b32 s4, s{sW}, 1")
    e(f"s_lshl_b32 s5, s{sMB}, 1")
    e("s_add_u32 s5, s5, s3")
    e("s_lshl_b32 s6, s5, 10")
    e(f"v_add_u32 v{vH0}, s6, v{T}")
    e("s_xor_b32 s6, s6, 1024")
    e(f"v_add_u32 v{vH1}, s6, v{T}")
    e(f"s_lshl_b32 s7, s{sNB}, 1")
    e("s_add_u32 s7, s7, s4")
    e("s_lshl_b32 s6, s7, 10")
    e(f"v_add_u32 v{vW0}, s6, v{T}")
    e("s_xor_b32 s6, s6, 1024")
    e(f"v_add_u32 v{vW1}, s6, v{T}")
    e(f"v_and_b32 v{T+1}, 31, v{vLane}")
    e(f"v_lshrrev_b32 v{T+2}, 5, v{vLane}")
    e(f"v_lshlrev_b32 v{T+1}, 10, v{T+1}")
    e(f"v_lshl_add_u32 v{T+1}, v{T+2}, 3, v{T+1}")
    e("s_lshl_b32 s5, s5, 15")
    e("s_lshl_b32 s7, s7, 6")
    e("s_add_u32 s5, s5, s7")
    e(f"v_add_u32 v{vXO}, s5, v{T+1}")
    e("s_lshr_b32 s4, s2, 3")
    e("s_lshr_b32 s5, s4, 3")
    e("s_lshl_b32 s5, s5, 1")
    e("s_add_u32 s4, s4, s5")
    e("s_and_b32 s4, s4, 7")
    e(f"s_mul_i32 s4, s4, {4*ROT}")
    e(f"s_add_u32 s4, s4, s{sW}")
    e(f"s_lshl_b32 s{sKH}, s4, 16")
    e(f"s_lshl_b32 s{sKW}, s4, 14")
    e("s_waitcnt lgkmcnt(0)")
    e(f"s_mov_b32 s{S_HF}, s40")
    e(f"s_and_b32 s{S_HF+1}, s41, 0xffff")
    e(f"s_mov_b32 s{S_HF+2}, {HF_BYTES}")
    e(f"s_mov_b32 s{S_HF+3}, 0x00020000")
    e(f"s_add_u32 s{S_W2F}, s40, {W2F_OFF}")
    e(f"s_addc_u32 s{S_W2F+1}, s41, 0")
    e(f"s_and_b32 s{S_W2F+1}, s{S_W2F+1}, 0xffff")
    e(f"s_mov_b32 s{S_W2F+2}, {W2F_BYTES}")
    e(f"s_mov_b32 s{S_W2F+3}, 0x00020000")
    srd(S_X, 36, 2048 * 1024)
    srd(S_O, 38, 2048 * 1024)
    def loads(i):
        b = 16 * (i % D)
        e(f"buffer_load_dwordx4 {ar(b,4)}, v{vW0}, {sr(S_W2F,4)}, s{sKW} offen")
        e(f"buffer_load_dwordx4 {ar(b+4,4)}, v{vH0}, {sr(S_HF,4)}, s{sKH} offen")
        e(f"buffer_load_dwordx4 {ar(b+8,4)}, v{vH1}, {sr(S_HF,4)}, s{sKH} offen")
        e(f"buffer_load_dwordx4 {ar(b+12,4)}, v{vW1}, {sr(S_W2F,4)}, s{sKW} offen")
        e(f"s_add_u32 s{sKW}, s{sKW}, {4*16384}")
        if ROT:
            e(f"s_sub_u32 s3, s{sKW}, {120*16384}")
            e(f"s_cmp_ge_u32 s{sKW}, {120*16384}")
            e(f"s_cselect_b32 s{sKW}, s3, s{sKW}")
        e(f"s_lshl_b32 s{sKH}, s{sKW}, 2")
    for q in range(4):
        e(f"buffer_load_dwordx2 {vr(XR+2*q,2)}, v{vXO}, {sr(S_X,4)}, 0 offen offset:{16*q}")
    for i in range(D): loads(i)
    issued = D
    stamp(1)
    for i in range(NK):
        b = 16 * (i % D)
        out = 4 * (issued - i - 1)
        if i == NK - 6:
            pass
        e(f"s_waitcnt vmcnt({min(63, out + 2)})")
        c = (lambda r: "0") if i == 0 else (lambda r: vr(r, 16))
        e(f"v_mfma_f32_32x32x16_bf16 {vr(ACC,16)}, {ar(b,4)}, {ar(b+4,4)}, {c(ACC)}")
        e(f"s_waitcnt vmcnt({min(63, out + 1)})")
        e(f"v_mfma_f32_32x32x16_bf16 {vr(ACC+32,16)}, {ar(b,4)}, {ar(b+8,4)}, {c(ACC+32)}")
        e(f"s_waitcnt vmcnt({out})")
        e(f"v_mfma_f32_32x32x16_bf16 {vr(ACC+16,16)}, {ar(b+12,4)}, {ar(b+4,4)}, {c(ACC+16)}")
        e(f"v_mfma_f32_32x32x16_bf16 {vr(ACC+48,16)}, {ar(b+12,4)}, {ar(b+8,4)}, {c(ACC+48)}")
        if i in (0, 7, 14, 22): stamp(2 + (0, 7, 14, 22).index(i))
        if issued < NK:
            loads(issued); issued += 1
    stamp(6)
    for a in range(1, 4):
        e(f"s_xor_b32 s3, s{sW}, {a}")
        e("s_mul_i32 s3, s3, 12288")
        e(f"s_add_u32 s3, s3, {(a-1)*4096}")
        e(f"v_add_u32 v{T+a}, s3, v{T}")
    e(f"s_mul_i32 s3, s{sW}, 12288")
    e(f"v_add_u32 v{T+4}, s3, v{T}")
    e("s_nop 7")
    for a in (2, 1, 3):
        for q in range(4):
            e(f"ds_write_b128 v{T+a}, {vr(ACC+16*a+4*q,4)} offset:{1024*q}")
    e("s_waitcnt lgkmcnt(0)")
    e("s_barrier")
    for s in range(3):
        for q in range(4):
            e(f"ds_read_b128 {vr(RD+16*s+4*q,4)}, v{T+4} offset:{4096*s+1024*q}")
    e("s_waitcnt vmcnt(0)")
    for q in range(4):
        for i in range(2):
            e(f"v_lshlrev_b32 v{T+8}, 16, v{XR+2*q+i}")
            e(f"v_and_b32 v{T+9}, 0xffff0000, v{XR+2*q+i}")
            e(f"v_add_f32 v{ACC+4*q+2*i}, v{ACC+4*q+2*i}, v{T+8}")
            e(f"v_add_f32 v{ACC+4*q+2*i+1}, v{ACC+4*q+2*i+1}, v{T+9}")
    for s in range(3):
        e(f"s_waitcnt lgkmcnt({8-4*s})")
        for r in range(16):
            e(f"v_add_f32 v{ACC+r}, v{ACC+r}, v{RD+16*s+r}")
    for q in range(4):
        e(f"v_cvt_pk_bf16_f32 v{XR+2*q}, v{ACC+4*q}, v{ACC+4*q+1}")
        e(f"v_cvt_pk_bf16_f32 v{XR+2*q+1}, v{ACC+4*q+2}, v{ACC+4*q+3}")
    for q in range(4):
        e(f"buffer_store_dwordx2 {vr(XR+2*q,2)}, v{vXO}, {sr(S_O,4)}, 0 offen offset:{16*q}")
    stamp(7)
    if STAMP: e("s_waitcnt vmcnt(0)")
    stamp(8)
    stamp_flush(40, 0x1100000, sW)
    lab("K2_END")
    e("s_endpgm")

def desc(name, nv, acc):
    L.append(f""".amdhsa_kernel {name}
  .amdhsa_next_free_vgpr {nv}
  .amdhsa_next_free_sgpr 102
  .amdhsa_accum_offset {acc}
  .amdhsa_group_segment_fixed_size 0
  .amdhsa_kernarg_size 80
  .amdhsa_user_sgpr_count 2
  .amdhsa_user_sgpr_kernarg_segment_ptr 1
  .amdhsa_system_sgpr_workgroup_id_x 1
.end_amdhsa_kernel""")

L.append(HEADER.rstrip())
L.append("; @launch kernel=k1_kernel grid=(256,1,1) block=(512,1,1) lds=163840")
L.append("; @launch kernel=k2_kernel grid=(256,1,1) block=(256,1,1) lds=49152")
L.append('.amdgcn_target "amdgcn-amd-amdhsa--gfx950"\n.text')
kernel1()
kernel2()
L.append('.section .rodata,"a"\n.p2align 6')
desc("k1_kernel", 256, 256)
L.append(".p2align 6")
desc("k2_kernel", 496, 256)
open(OUT, "w").write("\n".join(x for x in L if x is not None) + "\n")
print("wrote", OUT, len(L), "lines")
```

```python
import sys
OUT = sys.argv[1] if len(sys.argv) > 1 else "parallel_sum__sliding_local_dilated__glu_gated_swiglu__prompt.s"
L = []
import os
EXP = os.environ.get("EXP", "")
INLOOP = [False]
def e(s):
    if INLOOP[0]:
        if "nodma" in EXP and ("offen lds" in s): return
        if "nomfma" in EXP and s.startswith("v_mfma"): return
        if "nolds" in EXP and s.startswith("ds_read"): return
        if "novalu" in EXP and (s.startswith("v_lshlrev_b32") or s.startswith("v_and_b32") or s.startswith("v_add_f32") or s.startswith("v_fmac")): return
        if "nox" in EXP and ("offen lds" in s) and "s[8:11]" in s: return
        if "noqkv" in EXP and ("offen lds" in s) and "s[20:23]" in s: return
        if "now13" in EXP and ("offen lds" in s) and ("s[12:15]" in s or "s[16:19]" in s): return
    L.append("    " + s)
def lab(s): L.append(s + ":")
def capture(fn):
    n = len(L); fn(); r = [x.strip() for x in L[n:]]; del L[n:]
    return r
def vr(b, n): return f"v[{b}:{b+n-1}]"
def ar(b, n): return f"a[{b}:{b+n-1}]"
def sr(b, n): return f"s[{b}:{b+n-1}]"

WSLOT = 18496; NW = 3
W1OFF = 0; QKVOFF = 6144; W3OFF = 12320
XBASE = 92544; XSLOT = 18432; NX = 2
MISC = XBASE + 3 * XSLOT
ONES = MISC
TS = MISC + 4096
CS = MISC + 12288
CS9 = CS + 1024
RS = CS9 + 512
SQ = MISC + 1024
HSC = RS + 512
HSC = TS
assert RS + 512 <= 163840
STG = 0; SPITCH = 272
HF_BYTES = 118 * 64 * 1024
W2F_OFF = 0x800000; W2F_BYTES = 118 * 16 * 1024
LOG2E = 1.4426950408889634
import struct
def f2u(x): return struct.unpack("<I", struct.pack("<f", x))[0]

HEADER = open("parallel_sum__sliding_local_dilated__glu_gated_swiglu__prompt.s.ref").read().split("; Override launch")[0]

def srd(d, base, nbytes):
    e(f"s_mov_b32 s{d}, s{base}")
    e(f"s_and_b32 s{d+1}, s{base+1}, 0xffff")
    e(f"s_mov_b32 s{d+2}, {nbytes}")
    e(f"s_mov_b32 s{d+3}, 0x00020000")

import os
STAMP = int(os.environ.get("STAMP", "0"))
def stamp(idx, sbase=90):
    if not STAMP: return
    e(f"s_memrealtime s[{sbase}:{sbase+1}]")
    e(f"s_memtime s[{sbase+2}:{sbase+3}]")
    e("s_waitcnt lgkmcnt(0)")
    e(f"v_writelane_b32 v{STV}, s{sbase}, {2*idx}")
    e(f"v_writelane_b32 v{STV}, s{sbase+2}, {2*idx+1}")
def stamp_flush(wsreg, off, swave, lanereg_x16=None):
    if not STAMP: return
    e(f"s_add_u32 s92, s{wsreg}, {off}")
    e(f"s_addc_u32 s93, s{wsreg+1}, 0")
    e("s_and_b32 s93, s93, 0xffff")
    e("s_mov_b32 s94, 0x100000")
    e("s_mov_b32 s95, 0x00020000")
    e(f"s_lshl_b32 s90, s2, 3")
    e(f"s_add_u32 s90, s90, s{swave}")
    e("s_lshl_b32 s90, s90, 8")
    e("v_mbcnt_lo_u32_b32 v1, -1, 0")
    e("v_mbcnt_hi_u32_b32 v1, -1, v1")
    e("v_lshlrev_b32 v1, 2, v1")
    e(f"buffer_store_dword v{STV}, v1, s[92:95], s90 offen")
STV = 255
def weave(mf, va):
    out = []
    n = len(mf);
    per = [len(va) * (i + 1) // n - len(va) * i // n for i in range(n)]
    k = 0
    for i, m in enumerate(mf):
        out.append(m)
        out.extend(va[k:k + per[i]]); k += per[i]
    return out

def kernel1():
    ROT1 = int(os.environ.get("K1ROT", "1"))
    S_X, S_W1, S_W3, S_QKV, S_WT, S_HF, S_W2F = 8, 12, 16, 20, 24, 28, 32
    sW, sG, sMH, sRB, sCG, sM0, sTF, sTH, sFW, sOF, sOH, sHSEL, sHAS = 52, 53, 54, 55, 56, 57, 58, 59, 60, 61, 62, 63, 64
    sRWA, sRWB, sRX, sKC, sKD, sKO1, sKOQ, sKOX, sIT, sT0, sT1, sT2, sT3 = 65, 66, 67, 68, 69, 70, 71, 72, 73, 74, 75, 76, 77
    sDMA, sMT0, sMT1, sID = 78, 79, 80, 81
    sDWs, sDXs = 83, 84
    sMK = 86
    sWPW, sWPX, sWPD = 88, 89, 85
    ACC = 0
    ACC9 = 64
    HST = 68
    CSA, CS9A, SQA = 80, 84, 88
    FX = [92, 100]
    FW = [108, 120]
    FHX, FHX1, FHW, FSQ, SEL = 132, 136, 140, 144, 148
    vLane, vTid = 152, 153
    vDW13, vDQKV, vDX = 154, 155, 156
    vXa0, vXa1 = 159, 160
    vWA, vWB, vB9, vM9 = 161, 162, 163, 164
    vHXa, vHWa, vMH1, vCH1, vSQa = 165, 166, 167, 168, 169
    aX = 170
    aWA, aWB, a9 = 178, 179, 180
    aHX, aHX1, aHW, aSQ = 181, 182, 183, 184
    T = 186
    WT = 200
    vTA1, vTA2 = 204, 205
    vTMP = 206
    PF = int(os.environ.get("PF", "0")); LA = int(os.environ.get("LA", "2")); PFO = int(os.environ.get("PFO", "1")); PFB = int(os.environ.get("PFB", "2")); PV = 210

    L.append(".globl k1_kernel\n.p2align 8\n.type k1_kernel,@function\nk1_kernel:")
    e("s_cmp_ge_u32 s2, 256")
    e("s_cbranch_scc1 K1_END")
    e("s_load_dwordx4 s[36:39], s[0:1], 0")
    e("s_load_dwordx2 s[40:41], s[0:1], 16")
    e("s_load_dwordx4 s[44:47], s[0:1], 32")
    e("s_load_dwordx2 s[48:49], s[0:1], 48")
    e("s_load_dwordx2 s[50:51], s[0:1], 72")
    stamp(0)
    e(f"v_mov_b32 v{vTid}, v0")
    e(f"v_and_b32 v{vLane}, 63, v0")
    e(f"v_lshrrev_b32 v{T}, 6, v0")
    e("s_and_b32 s3, s2, 7")
    e(f"v_readfirstlane_b32 s{sW}, v{T}")
    e("s_lshr_b32 s4, s2, 3")
    e("s_and_b32 s5, s3, 1")
    e("s_lshl_b32 s5, s5, 3")
    e("s_and_b32 s6, s4, 7")
    e(f"s_add_u32 s{sRB}, s5, s6")
    e("s_lshr_b32 s5, s3, 1")
    e("s_lshl_b32 s5, s5, 2")
    e("s_lshr_b32 s6, s4, 3")
    e(f"s_add_u32 s{sCG}, s5, s6")
    RC, RR, RXC = [int(t) for t in os.environ.get("K1R", "4,4,1").split(",")]
    e(f"s_mul_i32 s6, s6, {RC}")
    e(f"s_mul_i32 s5, s4, {RR}")
    e("s_add_u32 s6, s6, s5")
    if RXC:
        e(f"s_mul_i32 s5, s3, {RXC}")
        e("s_add_u32 s6, s6, s5")
    e(f"s_and_b32 s{sKD}, s6, 7")
    e(f"s_lshl_b32 s{sKC}, s{sKD}, 1")
    e(f"s_lshl_b32 s{sM0}, s{sRB}, 7")
    e(f"s_and_b32 s{sG}, s{sW}, 3")
    e(f"s_lshr_b32 s{sMH}, s{sW}, 2")
    e(f"s_lshr_b32 s3, s{sCG}, 1")
    e("s_mul_i32 s3, s3, 11")
    e(f"s_and_b32 s4, s{sCG}, 1")
    e(f"s_mul_i32 s5, s{sCG}, 5")
    e("s_add_u32 s5, s5, 6")
    e(f"s_cmp_lt_u32 s{sCG}, 12")
    e("s_cselect_b32 s3, s3, s5")
    e(f"s_cselect_b32 s{sHSEL}, s4, 0")
    e(f"s_cselect_b32 s{sHAS}, 1, 0")
    e(f"s_add_u32 s{sTH}, s3, 5")
    e(f"s_mul_i32 s4, s{sHSEL}, 6")
    e(f"s_add_u32 s{sTF}, s3, s4")
    e(f"s_lshl_b32 s5, s3, 5")
    e(f"s_mul_i32 s4, s{sHSEL}, 176")
    e(f"s_add_u32 s{sFW}, s5, s4")
    e(f"s_lshl_b32 s{sOF}, s{sHSEL}, 4")
    e(f"s_mul_i32 s4, s{sHSEL}, 160")
    e(f"s_sub_u32 s{sOH}, 160, s4")
    e(f"v_mul_u32_u24 v{T}, 43691, v{vTid}")
    e(f"v_lshrrev_b32 v{T}, 19, v{T}")
    e(f"v_mul_u32_u24 v{T+1}, 12, v{T}")
    e(f"v_sub_u32 v{T+1}, v{vTid}, v{T+1}")
    e(f"v_mul_u32_u24 v{vDW13}, 2752, v{T}")
    e(f"v_lshl_add_u32 v{vDW13}, v{T+1}, 4, v{vDW13}")
    e(f"v_add_u32 v{vDW13}, s{sFW}, v{vDW13}")
    e(f"v_mul_u32_u24 v{vDQKV}, 3072, v{T}")
    e(f"v_lshrrev_b32 v{T+2}, 2, v{T+1}")
    e(f"v_lshl_add_u32 v{vDQKV}, v{T+2}, 10, v{vDQKV}")
    e(f"v_and_b32 v{T+2}, 3, v{T+1}")
    e(f"v_lshl_add_u32 v{vDQKV}, v{T+2}, 4, v{vDQKV}")
    e(f"s_lshl_b32 s3, s{sCG}, 6")
    e(f"v_add_u32 v{vDQKV}, s3, v{vDQKV}")
    e(f"s_mul_i32 s3, s{sW}, 24")
    e(f"v_lshrrev_b32 v{T}, 3, v{vLane}")
    e(f"v_add_u32 v{T}, s3, v{T}")
    e(f"v_and_b32 v{T+1}, 7, v{vLane}")
    e(f"s_sub_u32 s4, s{sM0}, 16")
    e(f"v_bfe_u32 v{T+3}, v{T}, 1, 3")
    e(f"v_xor_b32 v{T+3}, v{T+3}, v{T+1}")
    e(f"v_add_u32 v{T+2}, s4, v{T}")
    e(f"v_lshlrev_b32 v{T+4}, 10, v{T+2}")
    e(f"v_lshl_add_u32 v{vDX}, v{T+3}, 4, v{T+4}")
    e(f"v_xor_b32 v{vDX+1}, 64, v{vDX}")
    e(f"v_add_u32 v{vDX+1}, 0x2000, v{vDX+1}")
    e(f"v_add_u32 v{vDX+2}, 0x4000, v{vDX}")
    e(f"s_lshl_b32 s{sID}, s2, 3")
    e(f"s_add_u32 s{sID}, s{sID}, s{sW}")
    e(f"s_lshr_b32 s3, s{sID}, 4")
    e(f"s_and_b32 s4, s{sID}, 15")
    e("s_sub_u32 s5, s3, 32")
    e("s_cmp_lt_u32 s3, 32")
    e("s_cselect_b32 s5, s3, s5")
    e(f"s_cselect_b32 s{sT0}, 1, 0")
    e("s_lshl_b32 s5, s5, 14")
    e("s_lshl_b32 s4, s4, 6")
    e("s_add_u32 s5, s5, s4")
    e(f"v_lshrrev_b32 v{T}, 2, v{vLane}")
    e(f"v_lshlrev_b32 v{T}, 10, v{T}")
    e(f"v_and_b32 v{T+1}, 3, v{vLane}")
    e(f"v_lshl_add_u32 v{T}, v{T+1}, 4, v{T}")
    e(f"v_add_u32 v{T+6}, s5, v{T}")
    e(f"s_lshl_b32 s{sWPW}, s{sW}, 10")
    e(f"s_mul_i32 s{sWPX}, s{sW}, 3072")
    e(f"s_add_u32 s{sWPX}, s{sWPX}, {XBASE}")
    e(f"s_mov_b32 s{sDWs}, s{sWPW}")
    e(f"s_mov_b32 s{sWPD}, s{sWPW}")
    e(f"s_mov_b32 s{sDXs}, s{sWPX}")
    e("s_waitcnt lgkmcnt(0)")
    srd(S_X, 36, 2048 * 1024)
    srd(S_QKV, 38, 512 * 3072)
    srd(S_W1, 44, 512 * 2752)
    srd(S_W3, 46, 512 * 2752)
    def dmaW():
        e(f"s_mul_i32 s{sKO1}, s{sKC}, {32*2752}")
        e(f"s_mul_i32 s{sKOQ}, s{sKC}, {32*3072}")
        e(f"s_add_u32 m0, s{sDWs}, {W1OFF}")
        e(f"s_add_u32 s{sKC}, s{sKC}, 1")
        e(f"buffer_load_dwordx4 v{vDW13}, {sr(S_W1,4)}, s{sKO1} offen lds")
        e(f"s_add_u32 m0, s{sDWs}, {QKVOFF}")
        e(f"s_and_b32 s{sKC}, s{sKC}, 15")
        e(f"buffer_load_dwordx4 v{vDQKV}, {sr(S_QKV,4)}, s{sKOQ} offen lds")
        e(f"s_add_u32 m0, s{sDWs}, {W3OFF}")
        e(f"s_add_u32 s{sDWs}, s{sDWs}, {WSLOT}")
        e(f"buffer_load_dwordx4 v{vDW13}, {sr(S_W3,4)}, s{sKO1} offen lds")
        e(f"s_cmp_ge_u32 s{sDWs}, {NW*WSLOT}")
        e(f"s_cselect_b32 s{sDWs}, s{sWPD}, s{sDWs}")
    def dmaX():
        e(f"s_lshl_b32 s{sKOX}, s{sKD}, 7")
        e(f"s_add_u32 m0, s{sDXs}, 0")
        e(f"s_add_u32 s{sKD}, s{sKD}, 1")
        e(f"buffer_load_dwordx4 v{vDX}, {sr(S_X,4)}, s{sKOX} offen lds")
        e(f"s_add_u32 m0, s{sDXs}, 1024")
        e(f"s_and_b32 s{sKD}, s{sKD}, 7")
        e(f"buffer_load_dwordx4 v{vDX+1}, {sr(S_X,4)}, s{sKOX} offen lds")
        e(f"s_add_u32 m0, s{sDXs}, 2048")
        e(f"s_add_u32 s{sDXs}, s{sDXs}, {XSLOT}")
        e(f"buffer_load_dwordx4 v{vDX+2}, {sr(S_X,4)}, s{sKOX} offen lds")
        e(f"s_cmp_ge_u32 s{sDXs}, {XBASE+NX*XSLOT}")
        e(f"s_cselect_b32 s{sDXs}, s{sWPX}, s{sDXs}")
    e(f"s_cmp_eq_u32 s{sT0}, 1")
    e(f"s_cselect_b32 s{S_WT}, s40, s48")
    e(f"s_cselect_b32 s{S_WT+1}, s41, s49")
    e(f"s_mov_b32 s3, {1376*1024}")
    e(f"s_cselect_b32 s{S_WT+2}, {512*1024}, s3")
    e(f"s_and_b32 s{S_WT+1}, s{S_WT+1}, 0xffff")
    e(f"s_mov_b32 s{S_WT+3}, 0x00020000")
    e(f"buffer_load_dwordx4 {vr(WT,4)}, v{T+6}, {sr(S_WT,4)}, 0 offen")
    e(f"s_cmp_lt_u32 s{sW}, 6")
    e(f"s_cselect_b32 s{sDMA}, 1, 0")
    e("s_cbranch_scc0 K1_PRO_PF")
    dmaW(); dmaX()
    if PF:
        e("s_branch K1_PRO_NODMA0")
    lab("K1_PRO_PF")
    if PF >= 2:
        e(f"v_lshlrev_b32 v{PV}, {PF}, v{vLane}")
        e(f"s_cmp_eq_u32 s{sW}, 6")
        e("s_cbranch_scc1 K1_PRO_PFW")
        e(f"buffer_load_dword v{PV+12}, v{PV}, {sr(S_QKV,4)}, 0 offen")
        e(f"buffer_load_dword v{PV+12}, v{PV}, {sr(S_W3,4)}, 0 offen")
        e("s_branch K1_PRO_NODMA0")
        lab("K1_PRO_PFW")
        e(f"buffer_load_dword v{PV+12}, v{PV}, {sr(S_W1,4)}, 0 offen")
        e(f"buffer_load_dword v{PV+12}, v{PV}, {sr(S_X,4)}, 0 offen")
    if PF == 1:
        e("s_and_b32 s3, s2, 7")
        e("s_lshr_b32 s4, s2, 3")
        e(f"s_mul_i32 s5, s3, {RXC}")
        e(f"s_add_u32 s5, s5, {PFO}")
        e(f"s_cmp_eq_u32 s{sW}, 6")
        e("s_cbranch_scc1 K1_PRO_PFW")
        e(f"v_lshrrev_b32 v{PV+8}, 5, v{vLane}")
        e(f"v_add_u32 v{PV+8}, s5, v{PV+8}")
        e(f"v_and_b32 v{PV+9}, 31, v{vLane}")
        e("s_and_b32 s6, s3, 1")
        e("s_lshl_b32 s6, s6, 5")
        e("s_add_u32 s6, s6, s4")
        e("s_lshl_b32 s6, s6, 5")
        e(f"v_add_u32 v{PV+9}, s6, v{PV+9}")
        e(f"v_lshlrev_b32 v{PV+9}, 10, v{PV+9}")
        for i in range(4):
            e(f"v_add_u32 v{PV+10}, {2*i}, v{PV+8}")
            e(f"v_and_b32 v{PV+10}, 7, v{PV+10}")
            e(f"v_lshl_add_u32 v{PV+i}, v{PV+10}, 7, v{PV+9}")
            if i < 2: e(f"buffer_load_dword v{PV+12}, v{PV+i}, {sr(S_X,4)}, 0 offen")
        e("s_branch K1_PRO_NODMA0")
        lab("K1_PRO_PFW")
        e(f"v_lshrrev_b32 v{PV+8}, 4, v{vLane}")
        e(f"v_add_u32 v{PV+8}, s5, v{PV+8}")
        e(f"v_bfe_u32 v{PV+9}, v{vLane}, 3, 1")
        e("s_lshl_b32 s4, s4, 1")
        e(f"v_add_u32 v{PV+9}, s4, v{PV+9}")
        e(f"v_and_b32 v{PV+10}, 7, v{vLane}")
        e(f"v_lshlrev_b32 v{PV+11}, 7, v{PV+10}")
        e(f"v_min_u32 v{PV+11}, 700, v{PV+11}")
        e("s_lshr_b32 s3, s3, 1")
        e("s_mul_i32 s6, s3, 704")
        e(f"v_add_u32 v{PV+11}, s6, v{PV+11}")
        e(f"v_lshrrev_b32 v{PV+13}, 1, v{PV+10}")
        e(f"v_lshlrev_b32 v{PV+13}, 10, v{PV+13}")
        e(f"v_and_b32 v{PV+10}, 1, v{PV+10}")
        e(f"v_lshl_add_u32 v{PV+13}, v{PV+10}, 7, v{PV+13}")
        e("s_lshl_b32 s6, s3, 8")
        e(f"v_add_u32 v{PV+13}, s6, v{PV+13}")
        e("s_movk_i32 s5, 2752")
        e("s_movk_i32 s6, 3072")
        for i in range(2):
            e(f"v_add_u32 v{PV+10}, {4*i}, v{PV+8}")
            e(f"v_and_b32 v{PV+10}, 7, v{PV+10}")
            e(f"v_lshl_add_u32 v{PV+10}, v{PV+10}, 6, v{PV+9}")
            e(f"v_mad_u32_u24 v{PV+2*i}, v{PV+10}, s5, v{PV+11}")
            e(f"v_mad_u32_u24 v{PV+2*i+1}, v{PV+10}, s6, v{PV+13}")
            if i == 0:
                e(f"buffer_load_dword v{PV+12}, v{PV}, {sr(S_W1,4)}, 0 offen")
                e(f"buffer_load_dword v{PV+12}, v{PV+1}, {sr(S_QKV,4)}, 0 offen")
                e(f"buffer_load_dword v{PV+12}, v{PV}, {sr(S_W3,4)}, 0 offen")
    lab("K1_PRO_NODMA0")
    e("s_barrier")
    stamp(2)
    e(f"s_cmp_eq_u32 s{sDMA}, 1")
    e("s_cbranch_scc0 K1_PRO_NODMA1")
    dmaW()
    e("s_branch K1_PRO_DMA1")
    lab("K1_PRO_NODMA1")
    for d in (S_X, S_W1, S_W3, S_QKV): e(f"s_mov_b32 s{d+2}, 0")
    e(f"s_mov_b32 s{sDWs}, {NW*WSLOT}")
    e(f"s_mov_b32 s{sDXs}, {XBASE+NX*XSLOT}")
    e(f"s_mov_b32 s{sWPD}, {NW*WSLOT}")
    e(f"s_mov_b32 s{sWPX}, {XBASE+NX*XSLOT}")
    lab("K1_PRO_DMA1")
    e(f"s_mov_b32 s{S_HF}, s50")
    e(f"s_and_b32 s{S_HF+1}, s51, 0xffff")
    e(f"s_mov_b32 s{S_HF+2}, {HF_BYTES}")
    e(f"s_mov_b32 s{S_HF+3}, 0x00020000")
    e(f"s_add_u32 s{S_W2F}, s50, {W2F_OFF}")
    e(f"s_addc_u32 s{S_W2F+1}, s51, 0")
    e(f"s_and_b32 s{S_W2F+1}, s{S_W2F+1}, 0xffff")
    e(f"s_mov_b32 s{S_W2F+2}, {W2F_BYTES}")
    e(f"s_mov_b32 s{S_W2F+3}, 0x00020000")
    for i in range(4): e(f"v_mov_b32 v{T+8+i}, 0x3f803f80")
    e(f"v_mov_b32 v{T+4}, {ONES}")
    e(f"ds_write_b128 v{T+4}, {vr(T+8,4)}")
    for o in (768, 3072, 3840):
        e(f"ds_write_b64 v{T+4}, {vr(T+8,2)} offset:{o}")
    e(f"v_and_b32 v{T}, 31, v{vLane}")
    e(f"v_lshrrev_b32 v{T+1}, 5, v{vLane}")
    e(f"v_bfe_u32 v{T+2}, v{vLane}, 1, 3")
    e(f"v_xor_b32 v{T+2}, v{T+2}, v{T+1}")
    e(f"v_lshlrev_b32 v{T+2}, 4, v{T+2}")
    e(f"v_lshl_add_u32 v{T+2}, v{T}, 7, v{T+2}")
    e(f"s_and_b32 s3, s{sG}, 1")
    e(f"s_lshl_b32 s4, s{sMH}, 1")
    e(f"s_add_u32 s{sMT0}, s4, s3")
    e(f"s_xor_b32 s{sMT1}, s{sMT0}, 1")
    e(f"s_lshl_b32 s3, s{sMT0}, 12")
    e(f"s_add_u32 s3, s3, {16*128}")
    e(f"v_add_u32 v{vXa0}, s3, v{T+2}")
    e(f"s_lshl_b32 s3, s{sMT1}, 12")
    e(f"s_add_u32 s3, s3, {16*128}")
    e(f"v_add_u32 v{vXa1}, s3, v{T+2}")
    e(f"v_bfe_u32 v{T}, v{vLane}, 4, 1")
    e(f"v_bfe_u32 v{T+2}, v{vLane}, 2, 2")
    e(f"v_lshl_add_u32 v{T+2}, v{T+1}, 3, v{T+2}")
    e(f"v_mul_u32_u24 v{T+2}, 192, v{T+2}")
    e(f"v_and_b32 v{T+3}, 3, v{vLane}")
    e(f"v_lshl_add_u32 v{T+4}, v{T+3}, 3, v{T+2}")
    e(f"v_lshl_add_u32 v{T+5}, v{T}, 5, v{T+4}")
    e(f"v_add_u32 v{T+5}, {QKVOFF}, v{T+5}")
    e(f"v_mul_u32_u24 v{T+7}, {W3OFF}, v{T}")
    e(f"v_add_u32 v{T+7}, v{T+7}, v{T+4}")
    e(f"v_add_u32 v{T+7}, s{sOF}, v{T+7}")
    for slot, dst in ((0, vWA), (1, vWB)):
        e(f"s_lshl_b32 s3, s{sG}, 1")
        e(f"s_add_u32 s3, s3, {slot}")
        e("s_lshl_b32 s4, s3, 6")
        e("s_sub_u32 s5, s3, 3")
        e("s_lshl_b32 s5, s5, 5")
        e("s_cmp_lt_u32 s3, 3")
        e("s_cselect_b32 s4, s4, s5")
        e(f"s_cselect_b64 {sr(sMK,2)}, -1, 0")
        e(f"v_cndmask_b32 v{dst}, v{T+7}, v{T+5}, {sr(sMK,2)}")
        e(f"v_add_u32 v{dst}, s4, v{dst}")
    e(f"v_lshrrev_b32 v{T+8}, 1, v{T+3}")
    e(f"v_mul_u32_u24 v{T+8}, {W3OFF}, v{T+8}")
    e(f"v_and_b32 v{T+9}, 1, v{T+3}")
    e(f"v_lshl_add_u32 v{T+8}, v{T+9}, 3, v{T+8}")
    e(f"v_add_u32 v{T+8}, v{T+8}, v{T+2}")
    e(f"v_add_u32 v{T+8}, s{sOH}, v{T+8}")
    e(f"v_mov_b32 v{T+9}, {ONES}")
    e(f"v_cmp_eq_u32 vcc, 1, v{T}")
    e(f"v_xor_b32 v{vM9}, 1, v{T}")
    e("s_nop 0")
    e(f"v_cndmask_b32 v{vB9}, v{T+8}, v{T+9}, vcc")
    stamp(3)
    e(f"v_and_b32 v{T}, 15, v{vLane}")
    e(f"v_lshrrev_b32 v{T+1}, 4, v{vLane}")
    e(f"v_bfe_u32 v{T+2}, v{vLane}, 1, 3")
    e(f"v_xor_b32 v{T+2}, v{T+2}, v{T+1}")
    e(f"v_lshlrev_b32 v{T+2}, 4, v{T+2}")
    e(f"v_lshl_add_u32 v{vHXa}, v{T}, 7, v{T+2}")
    e(f"s_lshl_b32 s3, s{sW}, 11")
    e(f"s_add_u32 s3, s3, 2048")
    e(f"v_add_u32 v{vSQa}, s3, v{vHXa}")
    e(f"v_cmp_eq_u32 vcc, 0, v{T}")
    e(f"v_mov_b32 v{T+4}, 0")
    e(f"v_mov_b32 v{T+5}, 1")
    e(f"v_cndmask_b32 v{vCH1}, v{T+4}, v{T+9}, vcc")
    e(f"v_cndmask_b32 v{vMH1}, v{T+5}, v{T+4}, vcc")
    e(f"v_and_b32 v{T+5}, 1, v{T+1}")
    e(f"v_cmp_eq_u32 vcc, v{T+5}, v{T}")
    e(f"v_mov_b32 v{T+5}, 0x3f803f80")
    e("s_nop 0")
    for i in range(4): e(f"v_cndmask_b32 v{SEL+i}, v{T+4}, v{T+5}, vcc")
    e(f"v_bfe_u32 v{T+2}, v{vLane}, 2, 2")
    e(f"v_lshl_add_u32 v{T+2}, v{T+1}, 3, v{T+2}")
    e(f"v_mul_u32_u24 v{T+2}, 192, v{T+2}")
    e(f"v_lshl_add_u32 v{T+2}, v{T+3}, 3, v{T+2}")
    e(f"s_lshl_b32 s3, s{sG}, 5")
    e(f"s_add_u32 s3, s3, {QKVOFF+64}")
    e(f"v_add_u32 v{vHWa}, s3, v{T+2}")
    e(f"v_bfe_u32 v{T}, v{vLane}, 4, 1")
    e(f"v_lshrrev_b32 v{T+1}, 5, v{vLane}")
    e(f"v_bfe_u32 v{T+2}, v{vLane}, 2, 2")
    e(f"s_cmp_eq_u32 s{sT0}, 1")
    e("s_cselect_b32 s3, 3, 2")
    e("s_movk_i32 s4, 512")
    e("s_cselect_b32 s4, 256, s4")
    e(f"v_lshlrev_b32 v{T+1}, s3, v{T+1}")
    e(f"v_add_u32 v{T+1}, v{T+1}, v{T+2}")
    e(f"v_lshlrev_b32 v{T+1}, 6, v{T+1}")
    e(f"v_lshl_add_u32 v{T+1}, v{T}, 5, v{T+1}")
    e(f"v_lshl_add_u32 v{T+1}, v{T+3}, 3, v{T+1}")
    e(f"s_add_u32 s5, s{sWPW}, {TS}")
    e(f"v_add_u32 v{vTA1}, s5, v{T+1}")
    e(f"v_add_u32 v{vTA2}, s4, v{vTA1}")
    for i in range(4): e(f"v_mov_b32 v{96+i}, 0")
    e("s_nop 1")
    for r in (0, 16, 32, 48, 64, 80, 100, 116, 132):
        e(f"v_mfma_f32_32x32x16_bf16 {vr(r,16)}, {vr(96,4)}, {vr(96,4)}, 0")
    e(f"s_mov_b32 s{sRWA}, 0")
    e(f"s_mov_b32 s{sRWB}, {WSLOT}")
    e(f"s_mov_b32 s{sRX}, {XBASE}")
    e(f"s_mov_b32 s{sIT}, 1")
    e(f"s_lshr_b32 s3, s{sG}, 1")
    e(f"s_cmp_eq_u32 s3, s{sMH}")
    e("s_cbranch_scc0 K1_ROLEH")

    uid = [0]
    DL = 6 if LA == 4 else 7
    def adv(sreg, step, lim):
        e(f"s_add_u32 s{sreg}, s{sreg}, {step}")
        e(f"s_sub_u32 s{sT1}, s{sreg}, {lim}")
        e(f"s_cmp_ge_u32 s{sreg}, {lim}")
        e(f"s_cselect_b32 s{sreg}, s{sT1}, s{sreg}")
    def dma_loop(even, role9):
        uid[0] += 1
        lb = f"K1_ND{uid[0]}"
        lim = {4: (6, 6), 3: (7, 6), 2: (7, 7)}[LA][0 if even else 1]
        e(f"s_cmp_{'gt' if lim == DL else 'ge'}_u32 s{sIT}, s{sDMA}")
        e(f"s_cbranch_scc1 {lb}")
        dmaW()
        if even: dmaX()
        lab(lb)
        if even and role9 and PF == 1:
            e(f"s_lshl_b32 s{sT2}, s{sIT}, 3")
            e(f"s_add_u32 s{sT2}, s{sT2}, s{sW}")
            e(f"s_cmp_eq_u32 s{sT2}, {8*PFB+7}")
            e(f"s_cbranch_scc0 {lb}x")
            e(f"buffer_load_dword v{PV+12}, v{PV+2}, {sr(S_X,4)}, 0 offen")
            e(f"buffer_load_dword v{PV+12}, v{PV+3}, {sr(S_X,4)}, 0 offen")
            lab(lb + "x")
            e(f"s_cmp_eq_u32 s{sT2}, {8*PFB+6}")
            e(f"s_cbranch_scc0 {lb}w")
            e(f"buffer_load_dword v{PV+12}, v{PV+2}, {sr(S_W1,4)}, 0 offen")
            e(f"buffer_load_dword v{PV+12}, v{PV+3}, {sr(S_QKV,4)}, 0 offen")
            e(f"buffer_load_dword v{PV+12}, v{PV+2}, {sr(S_W3,4)}, 0 offen")
            lab(lb + "w")
    def vwait(steady, th, n, last0):
        uid[0] += 1
        lb = f"K1_VW{uid[0]}"
        e(f"s_waitcnt vmcnt({steady})")
        e(f"s_cmp_le_u32 s{sIT}, {th}")
        e(f"s_cbranch_scc1 {lb}")
        e(f"s_waitcnt vmcnt({n})")
        if last0:
            e(f"s_cmp_lt_u32 s{sIT}, 8")
            e(f"s_cbranch_scc1 {lb}")
            e("s_waitcnt vmcnt(0)")
        lab(lb)
    def x_addrs():
        r = [f"v_add_u32 v{aX}, s{sRX}, v{vXa0}", f"v_add_u32 v{aX+4}, s{sRX}, v{vXa1}"]
        for ks in range(1, 4):
            r.append(f"v_xor_b32 v{aX+ks}, {32*ks}, v{aX}")
            r.append(f"v_xor_b32 v{aX+4+ks}, {32*ks}, v{aX+4}")
        return r
    def chunk_addrs(srw, c2, role9):
        r = [f"v_add_u32 v{aWA}, s{srw}, v{vWA}", f"v_add_u32 v{aWB}, s{srw}, v{vWB}"]
        if role9:
            r.append(f"v_mad_u32_u24 v{a9}, v{vM9}, s{srw}, v{vB9}")
        else:
            r.append(f"v_add_u32 v{aHW}, s{srw}, v{vHWa}")
            r.append(f"v_add_u32 v{aHX}, s{sRX}, v{vHXa}")
            if c2: r.append(f"v_xor_b32 v{aHX}, 64, v{aHX}")
            r.append(f"v_mad_u32_u24 v{aHX1}, v{vMH1}, v{aHX}, v{vCH1}")
        r.append(f"v_add_u32 v{aSQ}, s{sRX}, v{vSQa}")
        if c2: r.append(f"v_xor_b32 v{aSQ}, 64, v{aSQ}")
        return r
    def reads(st, ks4, role9):
        ks = ks4 & 1
        o = 3072 * ks
        r = [f"ds_read_b128 {vr(FX[st],4)}, v{aX+ks4}",
             f"ds_read_b64_tr_b16 {vr(FW[st],2)}, v{aWA} offset:{o}",
             f"ds_read_b64_tr_b16 {vr(FW[st]+2,2)}, v{aWA} offset:{o+768}",
             f"ds_read_b128 {vr(FX[st]+4,4)}, v{aX+4+ks4}",
             f"ds_read_b64_tr_b16 {vr(FW[st]+4,2)}, v{aWB} offset:{o}",
             f"ds_read_b64_tr_b16 {vr(FW[st]+6,2)}, v{aWB} offset:{o+768}"]
        if role9:
            r += [f"ds_read_b64_tr_b16 {vr(FW[st]+8,2)}, v{a9} offset:{o}",
                  f"ds_read_b64_tr_b16 {vr(FW[st]+10,2)}, v{a9} offset:{o+768}"]
        return r
    def side_reads(role9):
        r = [f"ds_read_b128 {vr(FSQ,4)}, v{aSQ}"]
        if not role9:
            r += [f"ds_read_b128 {vr(FHX,4)}, v{aHX}", f"ds_read_b128 {vr(FHX1,4)}, v{aHX1}",
                  f"ds_read_b64_tr_b16 {vr(FHW,2)}, v{aHW}", f"ds_read_b64_tr_b16 {vr(FHW+2,2)}, v{aHW} offset:768"]
        return r
    def mfma_list(st, ks4, role9):
        mf = [f"v_mfma_f32_32x32x16_bf16 {vr(ACC,16)}, {vr(FW[st],4)}, {vr(FX[st],4)}, {vr(ACC,16)}",
              f"v_mfma_f32_32x32x16_bf16 {vr(ACC+16,16)}, {vr(FW[st],4)}, {vr(FX[st]+4,4)}, {vr(ACC+16,16)}",
              f"v_mfma_f32_32x32x16_bf16 {vr(ACC+32,16)}, {vr(FW[st]+4,4)}, {vr(FX[st],4)}, {vr(ACC+32,16)}",
              f"v_mfma_f32_32x32x16_bf16 {vr(ACC+48,16)}, {vr(FW[st]+4,4)}, {vr(FX[st]+4,4)}, {vr(ACC+48,16)}"]
        small = []
        if role9:
            mf.append(f"v_mfma_f32_32x32x16_bf16 {vr(ACC9,16)}, {vr(FW[st]+8,4)}, {vr(FX[st],4)}, {vr(ACC9,16)}")
            small.append(f"v_mfma_f32_16x16x32_bf16 {vr(CSA,4)}, {vr(FW[st],4)}, {vr(SEL,4)}, {vr(CSA,4)}")
        else:
            small.append(f"v_mfma_f32_16x16x32_bf16 {vr(CSA,4)}, {vr(FW[st]+4,4)}, {vr(SEL,4)}, {vr(CSA,4)}")
        if ks4 & 1:
            small.append(f"v_mfma_f32_16x16x32_bf16 {vr(SQA,4)}, {vr(FSQ,4)}, {vr(FSQ,4)}, {vr(SQA,4)}")
            if not role9:
                small.append(f"v_mfma_f32_16x16x32_bf16 {vr(ACC9,4)}, {vr(FHW,4)}, {vr(FHX,4)}, {vr(ACC9,4)}")
                small.append(f"v_mfma_f32_16x16x32_bf16 {vr(HST,4)}, {vr(FHX1,4)}, {vr(FHX,4)}, {vr(HST,4)}")
        return small, mf
    def group(st, ks4, role9, fill):
        small, mf = mfma_list(st, ks4, role9)
        MODE = os.environ.get("GMODE", "w21")
        def c9():
            if role9:
                uid[0] += 1
                lb = f"K1_C9{uid[0]}"
                e(f"s_cmp_eq_u32 s{sG}, {ks4}")
                e(f"s_cbranch_scc0 {lb}")
                e(f"v_mfma_f32_16x16x32_bf16 {vr(CS9A,4)}, {vr(FW[st]+8,4)}, {vr(SEL,4)}, {vr(CS9A,4)}")
                lab(lb)
        if MODE == "weave":
            for m in small: e(m)
            c9()
            n = len(mf) - 1
            per = [len(fill) * (i + 1) // n - len(fill) * i // n for i in range(n)] + [0]
            k = 0
            for i, m in enumerate(mf):
                e(m)
                for f in fill[k:k + per[i]]: e(f)
                k += per[i]
        elif MODE.startswith("w2"):
            seq = [(mf[0], 2), (mf[1], 2)]
            rest = mf[2:]; sm = list(small)
            while rest or sm:
                if sm: seq.append((sm.pop(0), 1))
                if rest: seq.append((rest.pop(0), 2))
            c9()
            last = int(MODE[2:] or 1)
            wts = [w_ for _, w_ in seq]
            for i in range(last): wts[-1 - i] = 0
            tot = sum(wts); acc = 0; k = 0
            for (m, _), w_ in zip(seq, wts):
                e(m)
                acc += w_
                k2 = len(fill) * acc // tot
                for f in fill[k:k2]: e(f)
                k = k2
        elif MODE == "first":
            for f in fill: e(f)
            for m in mf: e(m)
            for m in small: e(m)
            c9()
        elif MODE == "one":
            e(mf[0])
            for f in fill: e(f)
            for m in mf[1:]: e(m)
            for m in small: e(m)
            c9()
        elif MODE == "two":
            e(mf[0])
            h = len(fill) // 2
            for f in fill[:h]: e(f)
            e(mf[1])
            for f in fill[h:]: e(f)
            for m in mf[2:]: e(m)
            for m in small: e(m)
            c9()

    def mainloop(role9):
        nm = "9" if role9 else "H"
        uid[0] += 1
        lb = f"K1_TJ{uid[0]}"
        e("s_waitcnt vmcnt(9)")
        e(f"s_cmp_eq_u32 s{sDMA}, 1")
        e(f"s_cbranch_scc1 {lb}")
        e(f"s_waitcnt vmcnt({2 if PF else 0})")
        lab(lb)
        e(f"s_mul_i32 s{sDMA}, s{sDMA}, {DL}")
        e(f"v_lshlrev_b32 v{T+10}, 4, v{vLane}")
        e(f"s_add_u32 s3, s{sWPW}, {TS}")
        e(f"v_add_u32 v{T+11}, s3, v{T+10}")
        e(f"ds_write_b128 v{T+11}, {vr(WT,4)}")
        e("s_waitcnt lgkmcnt(0)")
        e(f"ds_read_b64_tr_b16 {vr(WT,2)}, v{vTA1}")
        e(f"ds_read_b64_tr_b16 {vr(WT+2,2)}, v{vTA2}")
        e(f"s_lshl_b32 s3, s{sID}, 10")
        e("s_waitcnt lgkmcnt(0)")
        e(f"buffer_store_dwordx4 {vr(WT,4)}, v{T+10}, {sr(S_W2F,4)}, s3 offen")
        PB = int(os.environ.get("PB", "1"))
        if LA == 4:
            e("s_barrier")
            e(f"s_cmp_eq_u32 s{sDMA}, 0")
            e(f"s_cbranch_scc1 K1_PND{nm}")
            dmaW(); dmaX()
            lab(f"K1_PND{nm}")
        if LA >= 3:
            e("s_barrier")
            e(f"s_cmp_eq_u32 s{sDMA}, 0")
            e(f"s_cbranch_scc1 K1_PNE{nm}")
            dmaW()
            lab(f"K1_PNE{nm}")
        stamp(1)
        for a_ in x_addrs() + chunk_addrs(sRWA, 0, role9): e(a_)
        lab(f"K1_LOOP{nm}")
        INLOOP[0] = True
        e("s_waitcnt vmcnt(3) lgkmcnt(0)")
        e("s_barrier")
        if STAMP == 2:
            e("s_memtime s[92:93]")
            e(f"s_lshl_b32 s94, s{sIT}, 1")
            e("s_add_u32 m0, s94, 38")
            e("s_waitcnt lgkmcnt(0)")
            e(f"v_writelane_b32 v{STV}, s92, m0")
        DW = os.environ.get("DW", "AB")
        dE = capture(lambda: (dmaW(), dmaX())); dO = capture(dmaW)
        def split(d):
            if DW == "A": return d, []
            if DW == "B": return [], d
            k = 13 if len(d) > 13 else 8
            return d[:k], d[k:]
        d1, d2 = split(dE)
        group(1, 3, role9, reads(0, 0, role9) + d1)
        e("s_waitcnt lgkmcnt(0)")
        group(0, 0, role9, reads(1, 1, role9) + side_reads(role9) + d2 + chunk_addrs(sRWB, 1, role9))
        e("s_waitcnt vmcnt(6) lgkmcnt(0)")
        e("s_barrier")
        if STAMP == 2:
            e("s_memtime s[92:93]")
            e(f"s_lshl_b32 s94, s{sIT}, 1")
            e("s_add_u32 m0, s94, 39")
            e("s_waitcnt lgkmcnt(0)")
            e(f"v_writelane_b32 v{STV}, s92, m0")
        d1, d2 = split(dO)
        group(1, 1, role9, reads(0, 2, role9) + d1)
        e("s_waitcnt lgkmcnt(0)")
        tail = [f"s_cmp_eq_u32 s{sIT}, 7"] + [f"s_cselect_b32 s{d+2}, 0, s{d+2}" for d in (S_X, S_W1, S_W3, S_QKV)]
        def advs():
            adv(sRWA, 2 * WSLOT, NW * WSLOT)
            adv(sRWB, 2 * WSLOT, NW * WSLOT)
            e(f"s_add_u32 s{sRX}, s{sRX}, {XSLOT}")
            e(f"s_cmp_ge_u32 s{sRX}, {XBASE+NX*XSLOT}")
            e(f"s_cselect_b32 s{sRX}, {XBASE}, s{sRX}")
        group(0, 2, role9, reads(1, 3, role9) + side_reads(role9) + d2 + tail + capture(advs) + x_addrs() + chunk_addrs(sRWA, 0, role9))
        INLOOP[0] = False
        if STAMP:
            e("s_memtime s[92:93]")
            e(f"s_add_u32 m0, s{sIT}, 31")
            e("s_waitcnt lgkmcnt(0)")
            e(f"v_writelane_b32 v{STV}, s92, m0")
        e(f"s_add_u32 s{sIT}, s{sIT}, 1")
        e(f"s_cmp_lt_u32 s{sIT}, 9")
        e(f"s_cbranch_scc1 K1_LOOP{nm}")
        e("s_waitcnt lgkmcnt(0)")
        group(1, 3, role9, [])
        stamp(4)
        e(f"v_and_b32 v{T}, 15, v{vLane}")
        e(f"v_lshrrev_b32 v{T+1}, 4, v{vLane}")
        e(f"v_lshlrev_b32 v{T+2}, 6, v{T}")
        e(f"v_lshl_add_u32 v{T+2}, v{T+1}, 4, v{T+2}")
        e(f"s_lshl_b32 s3, s{sG}, 8")
        e(f"s_add_u32 s3, s3, {CS + (0 if role9 else 128)}")
        e(f"v_add_u32 v{T+3}, s3, v{T+2}")
        e(f"s_lshl_b32 s3, s{sG}, 7")
        e(f"s_add_u32 s3, s3, {CS9}")
        e(f"v_add_u32 v{T+4}, s3, v{T+2}")
        e(f"v_and_b32 v{T+5}, 3, v{vLane}")
        e(f"v_lshlrev_b32 v{T+6}, 2, v{vLane}")
        e(f"s_lshl_b32 s3, s{sW}, 8")
        e(f"s_add_u32 s3, s3, {SQ}")
        e(f"v_add_u32 v{T+7}, s3, v{T+6}")
        def diag(dst, src):
            e(f"v_cmp_eq_u32 vcc, 1, v{T+5}")
            e(f"v_cmp_eq_u32 {sr(sMK,2)}, 2, v{T+5}")
            e(f"v_cmp_eq_u32 s[4:5], 3, v{T+5}")
            e(f"v_cndmask_b32 v{dst}, v{src}, v{src+1}, vcc")
            e(f"v_cndmask_b32 v{dst}, v{dst}, v{src+2}, {sr(sMK,2)}")
            e(f"v_cndmask_b32 v{dst}, v{dst}, v{src+3}, s[4:5]")
        diag(T + 8, SQA)
        e(f"ds_write_b32 v{T+7}, v{T+8}")
        if not role9:
            diag(T + 9, HST)
            e(f"s_lshl_b32 s3, s{sG}, 9")
            e(f"s_add_u32 s3, s3, {HSC}")
            e(f"v_add_u32 v{T+10}, s3, v{T+6}")
            e(f"ds_write_b32 v{T+10}, v{T+9}")
            e(f"ds_write_b32 v{T+10}, v{HST} offset:256")
        e(f"v_cmp_gt_u32 vcc, 2, v{T}")
        e("s_and_saveexec_b64 s[4:5], vcc")
        e(f"ds_write_b128 v{T+3}, {vr(CSA,4)}")
        if role9:
            e(f"ds_write_b128 v{T+4}, {vr(CS9A,4)}")
        e("s_mov_b64 exec, s[4:5]")
        e(f"v_and_b32 v{T}, 31, v{vLane}")
        e(f"v_lshlrev_b32 v{T}, 2, v{T}")
        e(f"s_lshl_b32 s3, s{sMT0}, 7")
        e(f"s_lshl_b32 s4, s{sMT1}, 7")
        e(f"v_add_u32 v{T+2}, s3, v{T}")
        e(f"v_add_u32 v{T+3}, s4, v{T}")
        if role9:
            e(f"v_add_u32 v{T+6}, {RS}, v{T+2}")
            e(f"ds_write_b32 v{T+6}, v{ACC9+8}")
        e(f"s_mov_b32 s{sT3}, {1 if role9 else 0}")
        e("s_waitcnt vmcnt(0)")
        e("s_branch K1_EPI")

    mainloop(True)
    lab("K1_ROLEH")
    mainloop(False)

    lab("K1_EPI")
    sROLE = sT3
    CA, CB = 80, 96
    C9 = 112
    ST = 120
    RAW = 132
    e("s_waitcnt lgkmcnt(0)")
    e("s_barrier")
    stamp(5)
    e(f"v_add_u32 v{T+4}, {RS}, v{T+2}")
    e(f"v_add_u32 v{T+5}, {RS}, v{T+3}")
    e(f"ds_read_b32 v{RAW}, v{T+4}")
    e(f"ds_read_b32 v{RAW+1}, v{T+5}")
    e(f"v_and_b32 v{T+6}, 15, v{vLane}")
    e(f"v_lshrrev_b32 v{T+7}, 2, v{T+6}")
    e(f"v_lshl_add_u32 v{T+6}, v{T+7}, 4, v{T+6}")
    e(f"v_lshlrev_b32 v{T+6}, 2, v{T+6}")
    e(f"v_bfe_u32 v{T+7}, v{vLane}, 4, 1")
    e(f"v_lshl_add_u32 v{T+7}, v{T+7}, 8, v{T+6}")
    e(f"s_lshl_b32 s3, s{sMT0}, 9")
    e(f"s_add_u32 s3, s3, {SQ}")
    e(f"s_lshl_b32 s4, s{sMT1}, 9")
    e(f"s_add_u32 s4, s4, {SQ}")
    e(f"v_add_u32 v{T+8}, s3, v{T+7}")
    e(f"v_add_u32 v{T+7}, s4, v{T+7}")
    e(f"ds_read_b32 v{RAW+2}, v{T+8}")
    e(f"ds_read_b32 v{RAW+3}, v{T+7}")
    e(f"s_lshl_b32 s3, s{sG}, 9")
    e(f"s_add_u32 s3, s3, {HSC}")
    e(f"v_add_u32 v{T+6}, s3, v{T+6}")
    e(f"v_and_b32 v{T+8}, 15, v{vLane}")
    e(f"v_lshlrev_b32 v{T+8}, 2, v{T+8}")
    e(f"v_add_u32 v{T+8}, s3, v{T+8}")
    e(f"ds_read_b32 v{RAW+4}, v{T+8} offset:256")
    e(f"ds_read_b32 v{RAW+5}, v{T+6}")
    e(f"v_lshrrev_b32 v{T+9}, 5, v{vLane}")
    e(f"v_lshlrev_b32 v{T+10}, 4, v{T+9}")
    e(f"s_lshl_b32 s3, s{sG}, 8")
    e(f"s_add_u32 s3, s3, {CS}")
    e(f"v_add_u32 v{T+11}, s3, v{T+10}")
    for q in range(4):
        e(f"ds_read_b128 {vr(CA+4*q,4)}, v{T+11} offset:{32*q}")
    for q in range(4):
        e(f"ds_read_b128 {vr(CB+4*q,4)}, v{T+11} offset:{128+32*q}")
    e("s_waitcnt lgkmcnt(8)")
    e(f"s_cmp_eq_u32 s{sROLE}, 1")
    e("s_cbranch_scc0 K1_E_CH")
    e(f"v_add_u32 v{T+12}, {CS9}, v{T+10}")
    for p in range(4):
        e(f"ds_read_b128 {vr(vTMP+8+8*p,4)}, v{T+12} offset:{128*p}")
        e(f"ds_read_b128 {vr(vTMP+12+8*p,4)}, v{T+12} offset:{128*p+32}")
    e("s_waitcnt lgkmcnt(0)")
    for i in range(8):
        e(f"v_add_f32 v{C9+i}, v{vTMP+8+i}, v{vTMP+16+i}")
        e(f"v_add_f32 v{vTMP+24+i}, v{vTMP+24+i}, v{vTMP+32+i}")
    for i in range(8):
        e(f"v_add_f32 v{C9+i}, v{C9+i}, v{vTMP+24+i}")
    e("s_branch K1_E_CD")
    lab("K1_E_CH")
    e(f"v_lshrrev_b32 v{T+13}, 4, v{vLane}")
    e(f"v_lshlrev_b32 v{T+13}, 4, v{T+13}")
    e(f"s_lshl_b32 s3, s{sG}, 6")
    e(f"s_add_u32 s3, s3, {CS+128}")
    e(f"v_add_u32 v{T+13}, s3, v{T+13}")
    e(f"ds_read_b128 {vr(C9,4)}, v{T+13}")
    lab("K1_E_CD")
    def stats(rs, sq, o):
        t = vTMP
        e(f"v_mul_f32 v{t}, {f2u(1/512):#x}, v{rs}")
        e(f"v_mul_f32 v{t+1}, {f2u(1/512):#x}, v{sq}")
        e(f"v_fma_f32 v{t+1}, -v{t}, v{t}, v{t+1}")
        e(f"v_max_f32 v{t+1}, 0, v{t+1}")
        e(f"v_cvt_pk_bf16_f32 v{t+2}, v{t}, v{t+1}")
        e(f"v_lshlrev_b32 v{t}, 16, v{t+2}")
        e(f"v_and_b32 v{t+1}, 0xffff0000, v{t+2}")
        e(f"v_add_f32 v{t+1}, {f2u(1e-5):#x}, v{t+1}")
        e(f"v_cvt_pk_bf16_f32 v{t+2}, v{t+1}, v{t+1}")
        e(f"v_and_b32 v{t+1}, 0xffff0000, v{t+2}")
        e(f"v_sqrt_f32 v{t+1}, v{t+1}")
        e(f"v_xor_b32 v{o+1}, 0x80000000, v{t}")
        e(f"v_cvt_pk_bf16_f32 v{t+2}, v{t+1}, v{t+1}")
        e(f"v_and_b32 v{t+1}, 0xffff0000, v{t+2}")
        e(f"v_rcp_f32 v{o}, v{t+1}")
        e(f"v_mul_f32 v{o+3}, v{t+1}, v{t+1}")
        e(f"v_mul_f32 v{o+2}, {f2u(-LOG2E):#x}, v{o}")
    stats(RAW, RAW + 2, ST)
    stats(RAW + 1, RAW + 3, ST + 4)
    e(f"v_and_b32 v{T}, 31, v{vLane}")
    e(f"v_mul_u32_u24 v{T}, {SPITCH}, v{T}")
    e(f"v_lshl_add_u32 v{T+1}, v{T+9}, 3, v{T}")
    e(f"v_lshl_add_u32 v{T+2}, v{T+9}, 4, v{T}")
    e(f"s_mul_i32 s3, s{sMT0}, {32*SPITCH}")
    e(f"s_add_u32 s3, s3, {STG+16*SPITCH}")
    e(f"s_mul_i32 s4, s{sMT1}, {32*SPITCH}")
    e(f"s_add_u32 s4, s4, {STG+16*SPITCH}")
    e(f"v_add_u32 v{T+3}, s3, v{T+1}")
    e(f"v_add_u32 v{T+4}, s4, v{T+1}")
    e(f"v_add_u32 v{T+5}, s3, v{T+2}")
    e(f"v_add_u32 v{T+6}, s4, v{T+2}")
    e(f"v_lshlrev_b32 v{T+7}, 4, v{vLane}")
    e(f"s_lshl_b32 s5, s{sRB}, 2")
    e(f"s_add_u32 s{sT1}, s5, s{sMT0}")
    e(f"s_add_u32 s{sT2}, s5, s{sMT1}")
    e("s_waitcnt lgkmcnt(0)")
    def bc(r):
        return (vr(r & ~1, 2), r & 1)
    def pkfma(d, a, b, c, bsel=None, csel=None):
        A = vr(a, 2)
        B, bs = (vr(b, 2), None) if bsel is None else bc(b)
        Cc, cs = (vr(c, 2), None) if csel is None else bc(c)
        lo = [0, bs or 0, cs or 0]; hi = [1, 1 if bs is None else bs, 1 if cs is None else cs]
        e(f"v_pk_fma_f32 {vr(d,2)}, {A}, {B}, {Cc} op_sel:[{lo[0]},{lo[1]},{lo[2]}] op_sel_hi:[{hi[0]},{hi[1]},{hi[2]}]")
    def pkmul(d, a, b, bsel=None):
        B, bs = (vr(b, 2), None) if bsel is None else bc(b)
        e(f"v_pk_mul_f32 {vr(d,2)}, {vr(a,2)}, {B} op_sel:[0,{bs or 0}] op_sel_hi:[1,{1 if bs is None else bs}]")
    def ln16(R, C, st, n, dst):
        for i in range(0, n, 2): pkfma(dst + i, C + i, st + 1, R + i, bsel=1)
        for i in range(0, n, 2): pkmul(dst + i, dst + i, st, bsel=1)
    def tile_qk(R, C, st, addr, sec):
        t = vTMP
        ln16(R, C, st, 16, t)
        for q in range(4):
            e(f"v_cvt_pk_bf16_f32 v{t+16+2*q}, v{t+4*q}, v{t+4*q+1}")
            e(f"v_cvt_pk_bf16_f32 v{t+17+2*q}, v{t+4*q+2}, v{t+4*q+3}")
        for q in range(4):
            e(f"ds_write_b64 v{addr}, {vr(t+16+2*q,2)} offset:{sec*64+16*q}")
    def tile_v(R, C, st, addr):
        t = vTMP + 24
        ln16(R, C, st, 16, t)
        for q in range(4):
            e(f"ds_write_b128 v{addr}, {vr(t+4*q,4)} offset:{128+32*q}")
    def silu(R, C, st, n, goff, uoff, t):
        for i in range(0, n, 2): pkfma(t + i, C + goff + i, st + 1, R + goff + i, bsel=1)
        for i in range(0, n, 2): pkmul(t + n + i, t + i, st + 2, bsel=1)
        for i in range(n):
            e(f"v_exp_f32 v{t+n+i}, v{t+n+i}")
        for i in range(0, n, 2): pkfma(t + 2*n + i, C + uoff + i, st + 1, R + uoff + i, bsel=1)
        for i in range(0, n, 2): pkfma(t + n + i, t + n + i, st + 3, st + 3, bsel=1, csel=1)
        for i in range(n):
            e(f"v_rcp_f32 v{t+n+i}, v{t+n+i}")
        for i in range(0, n, 2): pkmul(t + i, t + i, t + 2*n + i)
        for i in range(0, n, 2): pkmul(t + i, t + i, t + n + i)
        for i in range(n // 2):
            e(f"v_cvt_pk_bf16_f32 v{t+3*n+i}, v{t+2*i}, v{t+2*i+1}")
    def tile_ffn(R, C, st, smt, tau_s, tbase):
        silu(R, C, st, 8, 0, 8, tbase)
        e(f"s_add_u32 s3, s{tau_s}, s{smt}")
        e("s_lshl_b32 s3, s3, 10")
        e(f"buffer_store_dwordx4 {vr(tbase+24,4)}, v{T+7}, {sr(S_HF,4)}, s3 offen")
    e(f"s_lshl_b32 s6, s{sG}, 1")
    e(f"s_add_u32 s6, s6, s{sTF}")
    e("s_add_u32 s6, s6, 29")
    e("s_lshl_b32 s6, s6, 6")
    e("s_add_u32 s7, s6, 64")
    e(f"s_cmp_eq_u32 s{sROLE}, 1")
    e("s_cbranch_scc1 K1_E_T")
    stats(RAW + 4, RAW + 5, ST + 8)
    t = vTMP + 40
    ln16(ACC9, C9, ST + 8, 4, t)
    e(f"v_and_b32 v{T}, 15, v{vLane}")
    e(f"v_mul_u32_u24 v{T}, {SPITCH}, v{T}")
    e(f"v_lshrrev_b32 v{T+1}, 4, v{vLane}")
    e(f"s_cmp_lt_u32 s{sG}, 2")
    e("s_cbranch_scc0 K1_E_HV")
    e(f"v_cvt_pk_bf16_f32 v{t+4}, v{t}, v{t+1}")
    e(f"v_cvt_pk_bf16_f32 v{t+5}, v{t+2}, v{t+3}")
    e(f"v_lshl_add_u32 v{T}, v{T+1}, 3, v{T}")
    e(f"s_lshl_b32 s3, s{sG}, 5")
    e(f"s_add_u32 s3, s3, {STG+64}")
    e(f"v_add_u32 v{T}, s3, v{T}")
    e(f"ds_write_b64 v{T}, {vr(t+4,2)}")
    e("s_branch K1_E_T")
    lab("K1_E_HV")
    e(f"v_lshl_add_u32 v{T}, v{T+1}, 4, v{T}")
    e(f"s_lshl_b32 s3, s{sG}, 6")
    e(f"s_add_u32 s3, s3, {STG+128-128}")
    e(f"v_add_u32 v{T}, s3, v{T}")
    e(f"ds_write_b128 v{T}, {vr(t,4)}")
    lab("K1_E_T")
    e(f"s_cmp_eq_u32 s{sG}, 0")
    e("s_cbranch_scc1 K1_E_G0")
    e(f"s_cmp_eq_u32 s{sG}, 1")
    e("s_cbranch_scc1 K1_E_G1")
    tile_ffn(ACC, CA, ST, sT1, 6, vTMP)
    e("s_waitcnt lgkmcnt(0)")
    e("s_barrier")
    tile_ffn(ACC + 16, CA, ST + 4, sT2, 6, vTMP - 54)
    e("s_branch K1_E_B")
    lab("K1_E_G0")
    tile_qk(ACC, CA, ST, T + 3, 0)
    tile_qk(ACC + 16, CA, ST + 4, T + 4, 0)
    tile_qk(ACC + 32, CB, ST, T + 3, 1)
    tile_qk(ACC + 48, CB, ST + 4, T + 4, 1)
    e("s_waitcnt lgkmcnt(0)")
    e("s_barrier")
    e("s_branch K1_E_C")
    lab("K1_E_G1")
    tile_v(ACC, CA, ST, T + 5)
    e("s_nop 1")
    tile_v(ACC + 16, CA, ST + 4, T + 6)
    e("s_waitcnt lgkmcnt(0)")
    e("s_barrier")
    lab("K1_E_B")
    tile_ffn(ACC + 32, CB, ST, sT1, 7, vTMP)
    tile_ffn(ACC + 48, CB, ST + 4, sT2, 7, vTMP - 54)
    lab("K1_E_C")
    stamp(6)
    e(f"s_and_b32 s3, s{sROLE}, s{sHAS}")
    e("s_cbranch_scc0 K1_E_D")
    silu(ACC9, C9, ST, 4, 0, 4, vTMP + 32)
    e(f"s_add_u32 s3, s{sTH}, 32")
    e("s_lshl_b32 s3, s3, 6")
    e(f"s_add_u32 s3, s3, s{sT1}")
    e("s_lshl_b32 s3, s3, 10")
    e(f"s_lshl_b32 s4, s{sHSEL}, 3")
    e("s_add_u32 s3, s3, s4")
    e(f"buffer_store_dwordx2 {vr(vTMP+44,2)}, v{T+7}, {sr(S_HF,4)}, s3 offen")
    lab("K1_E_D")
    sU, sN = sRWA, sRWB
    e(f"s_lshl_b32 s3, s{sW}, 2")
    e(f"s_lshr_b32 s{sU}, 0x527640, s3")
    e(f"s_and_b32 s{sU}, s{sU}, 7")
    e(f"s_lshr_b32 s{sN}, 0x121112, s3")
    e(f"s_and_b32 s{sN}, s{sN}, 3")
    e("s_cbranch_scc0 K1_ATT_END")
    lab("K1_ATT")
    Q = 0; KK = 4; VV = 36; P = 100; O = 112; A2 = 120
    e(f"v_lshrrev_b32 v{T+8}, 4, v{T+7}")
    e(f"v_and_b32 v{T}, 31, v{T+8}")
    e(f"v_lshrrev_b32 v{T+1}, 5, v{T+8}")
    e(f"s_lshr_b32 s3, s{sU}, 1")
    e(f"s_and_b32 s4, s{sU}, 1")
    e(f"v_mul_u32_u24 v{T+2}, {SPITCH}, v{T}")
    e(f"s_mul_i32 s5, s3, {32*SPITCH}")
    e(f"s_add_u32 s5, s5, {STG+2*SPITCH}")
    e("s_lshl_b32 s6, s4, 5")
    e("s_add_u32 s6, s6, s5")
    e(f"v_lshl_add_u32 v{T+3}, v{T+1}, 4, v{T+2}")
    e(f"v_add_u32 v{T+3}, s6, v{T+3}")
    e("s_lshl_b32 s6, s4, 6")
    e("s_add_u32 s6, s6, s5")
    e(f"v_lshl_add_u32 v{T+4}, v{T+1}, 5, v{T+2}")
    e(f"v_add_u32 v{T+4}, s6, v{T+4}")
    e("s_lshl_b32 s5, s3, 5")
    e(f"s_add_u32 s5, s5, s{sM0}")
    e(f"v_add_u32 v{T+5}, s5, v{T}")
    e(f"v_lshlrev_b32 v{T+6}, 1, v{T+1}")
    e(f"v_sub_u32 v{T+5}, v{T+5}, v{T+6}")
    e(f"s_lshl_b32 s5, s{sCG}, 1")
    e("s_add_u32 s5, s5, s4")
    e("s_lshl_b32 s5, s5, 6")
    e(f"s_lshl_b32 s6, s{sRB}, 2")
    e("s_add_u32 s5, s5, s6")
    e("s_add_u32 s5, s5, s3")
    e(f"s_lshl_b32 s{sT1}, s5, 10")
    e(f"ds_read_b128 {vr(Q,4)}, v{T+3} offset:{14*SPITCH}")
    for w in range(8):
        e(f"ds_read_b128 {vr(KK+4*w,4)}, v{T+3} offset:{(14-2*w)*SPITCH+64}")
    for w in range(3):
        e(f"ds_read_b128 {vr(VV+8*w,4)}, v{T+4} offset:{(14-2*w)*SPITCH+128}")
        e(f"ds_read_b128 {vr(VV+8*w+4,4)}, v{T+4} offset:{(14-2*w)*SPITCH+144}")
    for w in range(8):
        e(f"s_waitcnt lgkmcnt({min(15, 13-w)})")
        e(f"v_dot2_f32_bf16 v{P+w}, v{Q}, v{KK+4*w}, 0")
        for i in range(1, 4):
            e(f"v_dot2_f32_bf16 v{P+w}, v{Q+i}, v{KK+4*w+i}, v{P+w}")
    for w in range(3, 8):
        e(f"ds_read_b128 {vr(VV+8*w,4)}, v{T+4} offset:{(14-2*w)*SPITCH+128}")
        e(f"ds_read_b128 {vr(VV+8*w+4,4)}, v{T+4} offset:{(14-2*w)*SPITCH+144}")
    e("s_nop 2")
    for i in range(4):
        e(f"v_permlane32_swap_b32 v{P+2*i}, v{P+2*i+1}")
    e(f"v_mov_b32 v{T+9}, {f2u(-1e9):#x}")
    for i in range(4):
        e(f"v_add_f32 v{P+2*i}, v{P+2*i}, v{P+2*i+1}")
    for i in range(4):
        e(f"v_cmp_le_i32 vcc, {4*i}, v{T+5}")
        e(f"v_mul_f32 v{P+2*i}, 0.25, v{P+2*i}") if False else e(f"v_mul_f32 v{P+2*i}, {f2u(0.25):#x}, v{P+2*i}")
        e("s_nop 0")
        e(f"v_cndmask_b32 v{P+2*i}, v{T+9}, v{P+2*i}, vcc")
    e(f"v_max3_f32 v{P+1}, v{P}, v{P+2}, v{P+4}")
    e(f"v_max_f32 v{P+1}, v{P+1}, v{P+6}")
    e(f"v_mov_b32 v{P+3}, v{P+1}")
    e("s_nop 1")
    e(f"v_permlane32_swap_b32 v{P+1}, v{P+3}")
    e("s_nop 0")
    e(f"v_max_f32 v{P+1}, v{P+1}, v{P+3}")
    for i in range(4):
        e(f"v_sub_f32 v{P+2*i}, v{P+2*i}, v{P+1}")
    for i in range(4):
        e(f"v_mul_f32 v{P+2*i}, {f2u(LOG2E):#x}, v{P+2*i}")
    for i in range(4):
        e(f"v_exp_f32 v{P+2*i}, v{P+2*i}")
    e("s_nop 0")
    e(f"v_add_f32 v{P+1}, v{P}, v{P+2}")
    e(f"v_add_f32 v{P+3}, v{P+4}, v{P+6}")
    e(f"v_add_f32 v{P+1}, v{P+1}, v{P+3}")
    e(f"v_mov_b32 v{P+3}, v{P+1}")
    e("s_nop 1")
    e(f"v_permlane32_swap_b32 v{P+1}, v{P+3}")
    e("s_nop 0")
    e(f"v_add_f32 v{P+8}, v{P+1}, v{P+3}")
    e(f"v_rcp_f32 v{P+8}, v{P+8}")
    e("s_nop 0")
    for i in range(4):
        e(f"v_mul_f32 v{P+2*i}, v{P+2*i}, v{P+8}")
    for i in range(4):
        e(f"v_mov_b32 v{P+2*i+1}, v{P+2*i}")
    e("s_nop 1")
    for i in range(4):
        e(f"v_permlane32_swap_b32 v{P+2*i}, v{P+2*i+1}")
    e("s_nop 0")
    for w in range(8):
        e(f"s_waitcnt lgkmcnt({14-2*w})")
        for d in range(0, 8, 2):
            if w == 0: pkmul(O + d, VV + d, P, bsel=1)
            else: pkfma(O + d, VV + 8*w + d, P + w, O + d, bsel=1)
    for i in range(4):
        e(f"v_cvt_pk_bf16_f32 v{A2+i}, v{O+2*i}, v{O+2*i+1}")
    e(f"buffer_store_dwordx4 {vr(A2,4)}, v{T+7}, {sr(S_HF,4)}, s{sT1} offen")
    e(f"s_add_u32 s{sU}, s{sU}, 1")
    e(f"s_sub_u32 s{sN}, s{sN}, 1")
    e(f"s_cmp_lg_u32 s{sN}, 0")
    e("s_cbranch_scc1 K1_ATT")
    lab("K1_ATT_END")
    if os.environ.get("TWICE"):
        e(f"s_cmp_eq_u32 s{sIT}, 77")
        e("s_cbranch_scc1 K1_TW")
        e(f"s_mov_b32 s{sIT}, 77")
        stamp(7)
        e(f"v_lshrrev_b32 v{vLane}, 4, v{T+7}")
        e(f"v_and_b32 v{T}, 31, v{vLane}")
        e(f"v_lshlrev_b32 v{T}, 2, v{T}")
        e(f"s_lshl_b32 s3, s{sMT0}, 7")
        e(f"s_lshl_b32 s4, s{sMT1}, 7")
        e(f"v_add_u32 v{T+2}, s3, v{T}")
        e(f"v_add_u32 v{T+3}, s4, v{T}")
        e("s_waitcnt vmcnt(0)")
        e("s_branch K1_EPI")
        lab("K1_TW")
    stamp(8)
    if STAMP: e("s_waitcnt vmcnt(0)")
    stamp(9)
    stamp_flush(50, 0x1000000, sW)
    lab("K1_END")
    e("s_endpgm")

def kernel2():
    S_HF, S_W2F, S_X, S_O = 8, 12, 16, 20
    sW, sMB, sNB, sKH, sKW = 30, 31, 32, 33, 34
    ACC = 0
    vLane, vH0, vH1, vW0, vW1, vXO = 64, 65, 66, 67, 68, 69
    XR = 72
    T = 80
    RD = 96
    NK = 30; D = int(os.environ.get('K2D', '15')); ROT = int(os.environ.get('K2ROT', '0'))
    L.append(".globl k2_kernel\n.p2align 8\n.type k2_kernel,@function\nk2_kernel:")
    e("s_cmp_ge_u32 s2, 256")
    e("s_cbranch_scc1 K2_END")
    e("s_load_dwordx2 s[36:37], s[0:1], 0")
    e("s_load_dwordx2 s[38:39], s[0:1], 56")
    e("s_load_dwordx2 s[40:41], s[0:1], 72")
    stamp(0)
    e(f"v_and_b32 v{vLane}, 63, v0")
    e(f"v_lshrrev_b32 v{T}, 6, v0")
    e("s_and_b32 s3, s2, 7")
    e(f"v_readfirstlane_b32 s{sW}, v{T}")
    e("s_lshr_b32 s4, s2, 3")
    e("s_and_b32 s5, s3, 1")
    e("s_lshl_b32 s5, s5, 1")
    e("s_bfe_u32 s6, s3, 0x10001")
    e("s_add_u32 s5, s5, s6")
    e("s_lshl_b32 s5, s5, 3")
    e("s_and_b32 s6, s4, 7")
    e(f"s_add_u32 s{sMB}, s5, s6")
    e("s_lshr_b32 s5, s3, 2")
    e("s_lshl_b32 s5, s5, 2")
    e("s_lshr_b32 s6, s4, 3")
    e(f"s_add_u32 s{sNB}, s5, s6")
    e(f"v_lshlrev_b32 v{T}, 4, v{vLane}")
    e(f"s_lshr_b32 s3, s{sW}, 1")
    e(f"s_and_b32 s4, s{sW}, 1")
    e(f"s_lshl_b32 s5, s{sMB}, 1")
    e("s_add_u32 s5, s5, s3")
    e("s_lshl_b32 s6, s5, 10")
    e(f"v_add_u32 v{vH0}, s6, v{T}")
    e("s_xor_b32 s6, s6, 1024")
    e(f"v_add_u32 v{vH1}, s6, v{T}")
    e(f"s_lshl_b32 s7, s{sNB}, 1")
    e("s_add_u32 s7, s7, s4")
    e("s_lshl_b32 s6, s7, 10")
    e(f"v_add_u32 v{vW0}, s6, v{T}")
    e("s_xor_b32 s6, s6, 1024")
    e(f"v_add_u32 v{vW1}, s6, v{T}")
    e(f"v_and_b32 v{T+1}, 31, v{vLane}")
    e(f"v_lshrrev_b32 v{T+2}, 5, v{vLane}")
    e(f"v_lshlrev_b32 v{T+1}, 10, v{T+1}")
    e(f"v_lshl_add_u32 v{T+1}, v{T+2}, 3, v{T+1}")
    e("s_lshl_b32 s5, s5, 15")
    e("s_lshl_b32 s7, s7, 6")
    e("s_add_u32 s5, s5, s7")
    e(f"v_add_u32 v{vXO}, s5, v{T+1}")
    e("s_lshr_b32 s4, s2, 3")
    e("s_lshr_b32 s5, s4, 3")
    e("s_lshl_b32 s5, s5, 1")
    e("s_add_u32 s4, s4, s5")
    e("s_and_b32 s4, s4, 7")
    e(f"s_mul_i32 s4, s4, {4*ROT}")
    e(f"s_add_u32 s4, s4, s{sW}")
    e(f"s_lshl_b32 s{sKH}, s4, 16")
    e(f"s_lshl_b32 s{sKW}, s4, 14")
    LEAD = int(os.environ.get("K2L", "12")); P2 = int(os.environ.get("K2P", "0")); PG = int(os.environ.get("K2G", "4"))
    sGJ, sPH, sPW, vPF = 42, 43, 44, 70
    if P2:
        e("s_lshr_b32 s4, s2, 3")
        e(f"s_lshl_b32 s5, s4, 2")
        e(f"s_add_u32 s5, s5, s{sW}")
        e(f"s_and_b32 s6, s{sMB}, 24")
        e("s_lshl_b32 s6, s6, 11")
        e(f"s_lshl_b32 s{sPH}, s5, 16")
        e(f"s_add_u32 s{sPH}, s{sPH}, s6")
        e(f"s_and_b32 s6, s{sNB}, 4")
        e("s_lshl_b32 s6, s6, 11")
        e(f"s_lshl_b32 s{sPW}, s5, 14")
        e(f"s_add_u32 s{sPW}, s{sPW}, s6")
        e(f"s_max_u32 s5, s4, {LEAD}")
        e(f"s_sub_u32 s5, s5, {LEAD}")
        e(f"s_lshr_b32 s{sGJ}, s5, {PG.bit_length()-1}")
        e(f"s_cmp_lt_u32 s4, {D}")
        e(f"s_cselect_b32 s{sGJ}, 99, s{sGJ}")
        e(f"v_lshlrev_b32 v{vPF}, 7, v{vLane}")
    def prefetch(c):
        if not P2: return
        e(f"s_cmp_eq_u32 s{sGJ}, {c}")
        e(f"s_cbranch_scc0 K2_PF{c}")
        e(f"buffer_load_dword v{vPF+1}, v{vPF}, {sr(S_HF,4)}, s{sPH} offen")
        e(f"s_add_u32 s{sPH}, s{sPH}, 8192")
        e(f"buffer_load_dword v{vPF+1}, v{vPF}, {sr(S_W2F,4)}, s{sPW} offen")
        e(f"buffer_load_dword v{vPF+1}, v{vPF}, {sr(S_HF,4)}, s{sPH} offen")
        lab(f"K2_PF{c}")
    e("s_waitcnt lgkmcnt(0)")
    e(f"s_mov_b32 s{S_HF}, s40")
    e(f"s_and_b32 s{S_HF+1}, s41, 0xffff")
    e(f"s_mov_b32 s{S_HF+2}, {HF_BYTES}")
    e(f"s_mov_b32 s{S_HF+3}, 0x00020000")
    e(f"s_add_u32 s{S_W2F}, s40, {W2F_OFF}")
    e(f"s_addc_u32 s{S_W2F+1}, s41, 0")
    e(f"s_and_b32 s{S_W2F+1}, s{S_W2F+1}, 0xffff")
    e(f"s_mov_b32 s{S_W2F+2}, {W2F_BYTES}")
    e(f"s_mov_b32 s{S_W2F+3}, 0x00020000")
    srd(S_X, 36, 2048 * 1024)
    srd(S_O, 38, 2048 * 1024)
    def loads(i):
        b = 16 * (i % D)
        e(f"buffer_load_dwordx4 {ar(b,4)}, v{vW0}, {sr(S_W2F,4)}, s{sKW} offen")
        e(f"buffer_load_dwordx4 {ar(b+4,4)}, v{vH0}, {sr(S_HF,4)}, s{sKH} offen")
        e(f"buffer_load_dwordx4 {ar(b+8,4)}, v{vH1}, {sr(S_HF,4)}, s{sKH} offen")
        e(f"buffer_load_dwordx4 {ar(b+12,4)}, v{vW1}, {sr(S_W2F,4)}, s{sKW} offen")
        e(f"s_add_u32 s{sKW}, s{sKW}, {4*16384}")
        if ROT:
            e(f"s_sub_u32 s3, s{sKW}, {120*16384}")
            e(f"s_cmp_ge_u32 s{sKW}, {120*16384}")
            e(f"s_cselect_b32 s{sKW}, s3, s{sKW}")
        e(f"s_lshl_b32 s{sKH}, s{sKW}, 2")
    for q in range(4):
        e(f"buffer_load_dwordx2 {vr(XR+2*q,2)}, v{vXO}, {sr(S_X,4)}, 0 offen offset:{16*q}")
    PPOS = int(os.environ.get("K2Q", "2"))
    for i in range(D):
        loads(i)
        if i == PPOS - 1: prefetch(0)
    issued = D
    stamp(1)
    for i in range(NK):
        b = 16 * (i % D)
        out = 4 * (issued - i - 1)
        if i == NK - 6:
            pass
        e(f"s_waitcnt vmcnt({min(63, out + 2)})")
        c = (lambda r: "0") if i == 0 else (lambda r: vr(r, 16))
        e(f"v_mfma_f32_32x32x16_bf16 {vr(ACC,16)}, {ar(b,4)}, {ar(b+4,4)}, {c(ACC)}")
        e(f"s_waitcnt vmcnt({min(63, out + 1)})")
        e(f"v_mfma_f32_32x32x16_bf16 {vr(ACC+32,16)}, {ar(b,4)}, {ar(b+8,4)}, {c(ACC+32)}")
        e(f"s_waitcnt vmcnt({out})")
        e(f"v_mfma_f32_32x32x16_bf16 {vr(ACC+16,16)}, {ar(b+12,4)}, {ar(b+4,4)}, {c(ACC+16)}")
        e(f"v_mfma_f32_32x32x16_bf16 {vr(ACC+48,16)}, {ar(b+12,4)}, {ar(b+8,4)}, {c(ACC+48)}")
        if i in (0, 7, 14, 22): stamp(2 + (0, 7, 14, 22).index(i))
        if issued < NK:
            loads(issued); issued += 1
        if i % PG == PG - 1 and (i + 1) // PG <= (31 - LEAD) // PG: prefetch((i + 1) // PG)
    stamp(6)
    for a in range(1, 4):
        e(f"s_xor_b32 s3, s{sW}, {a}")
        e("s_mul_i32 s3, s3, 12288")
        e(f"s_add_u32 s3, s3, {(a-1)*4096}")
        e(f"v_add_u32 v{T+a}, s3, v{T}")
    e(f"s_mul_i32 s3, s{sW}, 12288")
    e(f"v_add_u32 v{T+4}, s3, v{T}")
    e("s_nop 7")
    for a in (2, 1, 3):
        for q in range(4):
            e(f"ds_write_b128 v{T+a}, {vr(ACC+16*a+4*q,4)} offset:{1024*q}")
    e("s_waitcnt lgkmcnt(0)")
    e("s_barrier")
    for s in range(3):
        for q in range(4):
            e(f"ds_read_b128 {vr(RD+16*s+4*q,4)}, v{T+4} offset:{4096*s+1024*q}")
    e("s_waitcnt vmcnt(0)")
    for q in range(4):
        for i in range(2):
            e(f"v_lshlrev_b32 v{T+8}, 16, v{XR+2*q+i}")
            e(f"v_and_b32 v{T+9}, 0xffff0000, v{XR+2*q+i}")
            e(f"v_add_f32 v{ACC+4*q+2*i}, v{ACC+4*q+2*i}, v{T+8}")
            e(f"v_add_f32 v{ACC+4*q+2*i+1}, v{ACC+4*q+2*i+1}, v{T+9}")
    for s in range(3):
        e(f"s_waitcnt lgkmcnt({8-4*s})")
        for r in range(16):
            e(f"v_add_f32 v{ACC+r}, v{ACC+r}, v{RD+16*s+r}")
    for q in range(4):
        e(f"v_cvt_pk_bf16_f32 v{XR+2*q}, v{ACC+4*q}, v{ACC+4*q+1}")
        e(f"v_cvt_pk_bf16_f32 v{XR+2*q+1}, v{ACC+4*q+2}, v{ACC+4*q+3}")
    for q in range(4):
        e(f"buffer_store_dwordx2 {vr(XR+2*q,2)}, v{vXO}, {sr(S_O,4)}, 0 offen offset:{16*q}")
    stamp(7)
    if STAMP: e("s_waitcnt vmcnt(0)")
    stamp(8)
    stamp_flush(40, 0x1100000, sW)
    lab("K2_END")
    e("s_endpgm")

def desc(name, nv, acc):
    L.append(f""".amdhsa_kernel {name}
  .amdhsa_next_free_vgpr {nv}
  .amdhsa_next_free_sgpr 102
  .amdhsa_accum_offset {acc}
  .amdhsa_group_segment_fixed_size 0
  .amdhsa_kernarg_size 80
  .amdhsa_user_sgpr_count 2
  .amdhsa_user_sgpr_kernarg_segment_ptr 1
  .amdhsa_system_sgpr_workgroup_id_x 1
.end_amdhsa_kernel""")

L.append(HEADER.rstrip())
L.append("; @launch kernel=k1_kernel grid=(256,1,1) block=(512,1,1) lds=163840")
L.append("; @launch kernel=k2_kernel grid=(256,1,1) block=(256,1,1) lds=49152")
L.append('.amdgcn_target "amdgcn-amd-amdhsa--gfx950"\n.text')
kernel1()
kernel2()
L.append('.section .rodata,"a"\n.p2align 6')
desc("k1_kernel", 256, 256)
L.append(".p2align 6")
desc("k2_kernel", 496, 256)
open(OUT, "w").write("\n".join(x for x in L if x is not None) + "\n")
print("wrote", OUT, len(L), "lines")
```

```python
import sys
OUT = sys.argv[1] if len(sys.argv) > 1 else "parallel_sum__sliding_local_dilated__glu_gated_swiglu__prompt.s"
L = []
import os
EXP = os.environ.get("EXP", "")
INLOOP = [False]
FUSE = int(os.environ.get("FUSE", "1"))
SC = " sc1" if FUSE else ""
def e(s):
    if INLOOP[0]:
        if "nodma" in EXP and ("offen lds" in s): return
        if "nomfma" in EXP and s.startswith("v_mfma"): return
        if "nolds" in EXP and s.startswith("ds_read"): return
        if "novalu" in EXP and (s.startswith("v_lshlrev_b32") or s.startswith("v_and_b32") or s.startswith("v_add_f32") or s.startswith("v_fmac")): return
        if "nox" in EXP and ("offen lds" in s) and "s[8:11]" in s: return
        if "noqkv" in EXP and ("offen lds" in s) and "s[20:23]" in s: return
        if "now13" in EXP and ("offen lds" in s) and ("s[12:15]" in s or "s[16:19]" in s): return
    L.append("    " + s)
def lab(s): L.append(s + ":")
def capture(fn):
    n = len(L); fn(); r = [x.strip() for x in L[n:]]; del L[n:]
    return r
def vr(b, n): return f"v[{b}:{b+n-1}]"
def ar(b, n): return f"a[{b}:{b+n-1}]"
def sr(b, n): return f"s[{b}:{b+n-1}]"

WSLOT = 18496; NW = 3
W1OFF = 0; QKVOFF = 6144; W3OFF = 12320
XBASE = 92544; XSLOT = 18432; NX = 2
MISC = XBASE + 3 * XSLOT
ONES = MISC
TS = MISC + 4096
CS = MISC + 12288
CS9 = CS + 1024
RS = CS9 + 512
SQ = MISC + 1024
HSC = RS + 512
HSC = TS
assert RS + 512 <= 163840
STG = 0; SPITCH = 272
TAGL = RS + 512; FLG = 0xC00000
HF_BYTES = 118 * 64 * 1024
W2F_OFF = 0x800000; W2F_BYTES = 118 * 16 * 1024
LOG2E = 1.4426950408889634
import struct
def f2u(x): return struct.unpack("<I", struct.pack("<f", x))[0]

HEADER = open("parallel_sum__sliding_local_dilated__glu_gated_swiglu__prompt.s.ref").read().split("; Override launch")[0]

def srd(d, base, nbytes):
    e(f"s_mov_b32 s{d}, s{base}")
    e(f"s_and_b32 s{d+1}, s{base+1}, 0xffff")
    e(f"s_mov_b32 s{d+2}, {nbytes}")
    e(f"s_mov_b32 s{d+3}, 0x00020000")

import os
STAMP = int(os.environ.get("STAMP", "0"))
def stamp(idx, sbase=90):
    if not STAMP: return
    e(f"s_memrealtime s[{sbase}:{sbase+1}]")
    e(f"s_memtime s[{sbase+2}:{sbase+3}]")
    e("s_waitcnt lgkmcnt(0)")
    e(f"v_writelane_b32 v{STV}, s{sbase}, {2*idx}")
    e(f"v_writelane_b32 v{STV}, s{sbase+2}, {2*idx+1}")
def stamp_flush(wsreg, off, swave, lanereg_x16=None):
    if not STAMP: return
    e(f"s_add_u32 s92, s{wsreg}, {off}")
    e(f"s_addc_u32 s93, s{wsreg+1}, 0")
    e("s_and_b32 s93, s93, 0xffff")
    e("s_mov_b32 s94, 0x100000")
    e("s_mov_b32 s95, 0x00020000")
    e(f"s_lshl_b32 s90, s2, 3")
    e(f"s_add_u32 s90, s90, s{swave}")
    e("s_lshl_b32 s90, s90, 8")
    e("v_mbcnt_lo_u32_b32 v1, -1, 0")
    e("v_mbcnt_hi_u32_b32 v1, -1, v1")
    e("v_lshlrev_b32 v1, 2, v1")
    e(f"buffer_store_dword v{STV}, v1, s[92:95], s90 offen")
STV = 255
def weave(mf, va):
    out = []
    n = len(mf);
    per = [len(va) * (i + 1) // n - len(va) * i // n for i in range(n)]
    k = 0
    for i, m in enumerate(mf):
        out.append(m)
        out.extend(va[k:k + per[i]]); k += per[i]
    return out

def kernel1():
    ROT1 = int(os.environ.get("K1ROT", "1"))
    S_X, S_W1, S_W3, S_QKV, S_WT, S_HF, S_W2F = 8, 12, 16, 20, 24, 28, 32
    sW, sG, sMH, sRB, sCG, sM0, sTF, sTH, sFW, sOF, sOH, sHSEL, sHAS = 52, 53, 54, 55, 56, 57, 58, 59, 60, 61, 62, 63, 64
    sRWA, sRWB, sRX, sKC, sKD, sKO1, sKOQ, sKOX, sIT, sT0, sT1, sT2, sT3 = 65, 66, 67, 68, 69, 70, 71, 72, 73, 74, 75, 76, 77
    sDMA, sMT0, sMT1, sID = 78, 79, 80, 81
    sDWs, sDXs = 83, 84
    sMK = 86
    sWPW, sWPX, sWPD = 88, 89, 85
    ACC = 0
    ACC9 = 64
    HST = 68
    CSA, CS9A, SQA = 80, 84, 88
    FX = [92, 100]
    FW = [108, 120]
    FHX, FHX1, FHW, FSQ, SEL = 132, 136, 140, 144, 148
    vLane, vTid = 152, 153
    vDW13, vDQKV, vDX = 154, 155, 156
    vXa0, vXa1 = 159, 160
    vWA, vWB, vB9, vM9 = 161, 162, 163, 164
    vHXa, vHWa, vMH1, vCH1, vSQa = 165, 166, 167, 168, 169
    aX = 170
    aWA, aWB, a9 = 178, 179, 180
    aHX, aHX1, aHW, aSQ = 181, 182, 183, 184
    T = 186
    WT = 200
    vTA1, vTA2 = 204, 205
    vTMP = 206
    PF = int(os.environ.get("PF", "0")); LA = int(os.environ.get("LA", "2")); PFO = int(os.environ.get("PFO", "1")); PFB = int(os.environ.get("PFB", "2")); PV = 210

    L.append(".globl k1_kernel\n.p2align 8\n.type k1_kernel,@function\nk1_kernel:")
    e("s_cmp_ge_u32 s2, 256")
    e("s_cbranch_scc1 K1_END")
    e("s_load_dwordx4 s[36:39], s[0:1], 0")
    e("s_load_dwordx2 s[40:41], s[0:1], 16")
    e("s_load_dwordx4 s[44:47], s[0:1], 32")
    e("s_load_dwordx2 s[48:49], s[0:1], 48")
    e("s_load_dwordx2 s[50:51], s[0:1], 72")
    if FUSE: e("s_load_dwordx4 s[96:99], s[0:1], 56")
    stamp(0)
    e(f"v_mov_b32 v{vTid}, v0")
    e(f"v_and_b32 v{vLane}, 63, v0")
    e(f"v_lshrrev_b32 v{T}, 6, v0")
    e("s_and_b32 s3, s2, 7")
    e(f"v_readfirstlane_b32 s{sW}, v{T}")
    e("s_lshr_b32 s4, s2, 3")
    e("s_and_b32 s5, s3, 1")
    e("s_lshl_b32 s5, s5, 3")
    e("s_and_b32 s6, s4, 7")
    e(f"s_add_u32 s{sRB}, s5, s6")
    e("s_lshr_b32 s5, s3, 1")
    e("s_lshl_b32 s5, s5, 2")
    e("s_lshr_b32 s6, s4, 3")
    e(f"s_add_u32 s{sCG}, s5, s6")
    RC, RR, RXC = [int(t) for t in os.environ.get("K1R", "4,4,1").split(",")]
    e(f"s_mul_i32 s6, s6, {RC}")
    e(f"s_mul_i32 s5, s4, {RR}")
    e("s_add_u32 s6, s6, s5")
    if RXC:
        e(f"s_mul_i32 s5, s3, {RXC}")
        e("s_add_u32 s6, s6, s5")
    e(f"s_and_b32 s{sKD}, s6, 7")
    e(f"s_lshl_b32 s{sKC}, s{sKD}, 1")
    e(f"s_lshl_b32 s{sM0}, s{sRB}, 7")
    e(f"s_and_b32 s{sG}, s{sW}, 3")
    e(f"s_lshr_b32 s{sMH}, s{sW}, 2")
    e(f"s_lshr_b32 s3, s{sCG}, 1")
    e("s_mul_i32 s3, s3, 11")
    e(f"s_and_b32 s4, s{sCG}, 1")
    e(f"s_mul_i32 s5, s{sCG}, 5")
    e("s_add_u32 s5, s5, 6")
    e(f"s_cmp_lt_u32 s{sCG}, 12")
    e("s_cselect_b32 s3, s3, s5")
    e(f"s_cselect_b32 s{sHSEL}, s4, 0")
    e(f"s_cselect_b32 s{sHAS}, 1, 0")
    e(f"s_add_u32 s{sTH}, s3, 5")
    e(f"s_mul_i32 s4, s{sHSEL}, 6")
    e(f"s_add_u32 s{sTF}, s3, s4")
    e(f"s_lshl_b32 s5, s3, 5")
    e(f"s_mul_i32 s4, s{sHSEL}, 176")
    e(f"s_add_u32 s{sFW}, s5, s4")
    e(f"s_lshl_b32 s{sOF}, s{sHSEL}, 4")
    e(f"s_mul_i32 s4, s{sHSEL}, 160")
    e(f"s_sub_u32 s{sOH}, 160, s4")
    e(f"v_mul_u32_u24 v{T}, 43691, v{vTid}")
    e(f"v_lshrrev_b32 v{T}, 19, v{T}")
    e(f"v_mul_u32_u24 v{T+1}, 12, v{T}")
    e(f"v_sub_u32 v{T+1}, v{vTid}, v{T+1}")
    e(f"v_mul_u32_u24 v{vDW13}, 2752, v{T}")
    e(f"v_lshl_add_u32 v{vDW13}, v{T+1}, 4, v{vDW13}")
    e(f"v_add_u32 v{vDW13}, s{sFW}, v{vDW13}")
    e(f"v_mul_u32_u24 v{vDQKV}, 3072, v{T}")
    e(f"v_lshrrev_b32 v{T+2}, 2, v{T+1}")
    e(f"v_lshl_add_u32 v{vDQKV}, v{T+2}, 10, v{vDQKV}")
    e(f"v_and_b32 v{T+2}, 3, v{T+1}")
    e(f"v_lshl_add_u32 v{vDQKV}, v{T+2}, 4, v{vDQKV}")
    e(f"s_lshl_b32 s3, s{sCG}, 6")
    e(f"v_add_u32 v{vDQKV}, s3, v{vDQKV}")
    e(f"s_mul_i32 s3, s{sW}, 24")
    e(f"v_lshrrev_b32 v{T}, 3, v{vLane}")
    e(f"v_add_u32 v{T}, s3, v{T}")
    e(f"v_and_b32 v{T+1}, 7, v{vLane}")
    e(f"s_sub_u32 s4, s{sM0}, 16")
    e(f"v_bfe_u32 v{T+3}, v{T}, 1, 3")
    e(f"v_xor_b32 v{T+3}, v{T+3}, v{T+1}")
    e(f"v_add_u32 v{T+2}, s4, v{T}")
    e(f"v_lshlrev_b32 v{T+4}, 10, v{T+2}")
    e(f"v_lshl_add_u32 v{vDX}, v{T+3}, 4, v{T+4}")
    e(f"v_xor_b32 v{vDX+1}, 64, v{vDX}")
    e(f"v_add_u32 v{vDX+1}, 0x2000, v{vDX+1}")
    e(f"v_add_u32 v{vDX+2}, 0x4000, v{vDX}")
    e(f"s_lshl_b32 s{sID}, s2, 3")
    e(f"s_add_u32 s{sID}, s{sID}, s{sW}")
    e(f"s_lshr_b32 s3, s{sID}, 4")
    e(f"s_and_b32 s4, s{sID}, 15")
    e("s_sub_u32 s5, s3, 32")
    e("s_cmp_lt_u32 s3, 32")
    e("s_cselect_b32 s5, s3, s5")
    e(f"s_cselect_b32 s{sT0}, 1, 0")
    e("s_lshl_b32 s5, s5, 14")
    e("s_lshl_b32 s4, s4, 6")
    e("s_add_u32 s5, s5, s4")
    e(f"v_lshrrev_b32 v{T}, 2, v{vLane}")
    e(f"v_lshlrev_b32 v{T}, 10, v{T}")
    e(f"v_and_b32 v{T+1}, 3, v{vLane}")
    e(f"v_lshl_add_u32 v{T}, v{T+1}, 4, v{T}")
    e(f"v_add_u32 v{T+6}, s5, v{T}")
    e(f"s_lshl_b32 s{sWPW}, s{sW}, 10")
    e(f"s_mul_i32 s{sWPX}, s{sW}, 3072")
    e(f"s_add_u32 s{sWPX}, s{sWPX}, {XBASE}")
    e(f"s_mov_b32 s{sDWs}, s{sWPW}")
    e(f"s_mov_b32 s{sWPD}, s{sWPW}")
    e(f"s_mov_b32 s{sDXs}, s{sWPX}")
    e("s_waitcnt lgkmcnt(0)")
    srd(S_X, 36, 2048 * 1024)
    srd(S_QKV, 38, 512 * 3072)
    srd(S_W1, 44, 512 * 2752)
    srd(S_W3, 46, 512 * 2752)
    def dmaW():
        e(f"s_mul_i32 s{sKO1}, s{sKC}, {32*2752}")
        e(f"s_mul_i32 s{sKOQ}, s{sKC}, {32*3072}")
        e(f"s_add_u32 m0, s{sDWs}, {W1OFF}")
        e(f"s_add_u32 s{sKC}, s{sKC}, 1")
        e(f"buffer_load_dwordx4 v{vDW13}, {sr(S_W1,4)}, s{sKO1} offen lds")
        e(f"s_add_u32 m0, s{sDWs}, {QKVOFF}")
        e(f"s_and_b32 s{sKC}, s{sKC}, 15")
        e(f"buffer_load_dwordx4 v{vDQKV}, {sr(S_QKV,4)}, s{sKOQ} offen lds")
        e(f"s_add_u32 m0, s{sDWs}, {W3OFF}")
        e(f"s_add_u32 s{sDWs}, s{sDWs}, {WSLOT}")
        e(f"buffer_load_dwordx4 v{vDW13}, {sr(S_W3,4)}, s{sKO1} offen lds")
        e(f"s_cmp_ge_u32 s{sDWs}, {NW*WSLOT}")
        e(f"s_cselect_b32 s{sDWs}, s{sWPD}, s{sDWs}")
    def dmaX():
        e(f"s_lshl_b32 s{sKOX}, s{sKD}, 7")
        e(f"s_add_u32 m0, s{sDXs}, 0")
        e(f"s_add_u32 s{sKD}, s{sKD}, 1")
        e(f"buffer_load_dwordx4 v{vDX}, {sr(S_X,4)}, s{sKOX} offen lds")
        e(f"s_add_u32 m0, s{sDXs}, 1024")
        e(f"s_and_b32 s{sKD}, s{sKD}, 7")
        e(f"buffer_load_dwordx4 v{vDX+1}, {sr(S_X,4)}, s{sKOX} offen lds")
        e(f"s_add_u32 m0, s{sDXs}, 2048")
        e(f"s_add_u32 s{sDXs}, s{sDXs}, {XSLOT}")
        e(f"buffer_load_dwordx4 v{vDX+2}, {sr(S_X,4)}, s{sKOX} offen lds")
        e(f"s_cmp_ge_u32 s{sDXs}, {XBASE+NX*XSLOT}")
        e(f"s_cselect_b32 s{sDXs}, s{sWPX}, s{sDXs}")
    e(f"s_cmp_eq_u32 s{sT0}, 1")
    e(f"s_cselect_b32 s{S_WT}, s40, s48")
    e(f"s_cselect_b32 s{S_WT+1}, s41, s49")
    e(f"s_mov_b32 s3, {1376*1024}")
    e(f"s_cselect_b32 s{S_WT+2}, {512*1024}, s3")
    e(f"s_and_b32 s{S_WT+1}, s{S_WT+1}, 0xffff")
    e(f"s_mov_b32 s{S_WT+3}, 0x00020000")
    e(f"buffer_load_dwordx4 {vr(WT,4)}, v{T+6}, {sr(S_WT,4)}, 0 offen")
    e(f"s_cmp_lt_u32 s{sW}, 6")
    e(f"s_cselect_b32 s{sDMA}, 1, 0")
    e("s_cbranch_scc0 K1_PRO_PF")
    dmaW(); dmaX()
    if PF:
        e("s_branch K1_PRO_NODMA0")
    if FUSE and not PF: e("s_branch K1_PRO_NODMA0")
    lab("K1_PRO_PF")
    if FUSE:
        e(f"s_cmp_eq_u32 s{sW}, 7")
        e("s_cbranch_scc0 K1_PRO_NODMA0")
        e("s_memrealtime s[100:101]")
        srd(92, 98, 256)
        e("v_mov_b32 v251, 0")
        e("s_waitcnt lgkmcnt(0)")
        e("s_or_b32 s100, s100, 1")
        e("v_mov_b32 v250, s100")
        e("s_mov_b64 exec, 1")
        e("buffer_atomic_cmpswap v[250:251], v251, s[92:95], 0 offen sc0 sc1")
        e("s_mov_b64 exec, -1")
    if PF >= 2:
        e(f"v_lshlrev_b32 v{PV}, {PF}, v{vLane}")
        e(f"s_cmp_eq_u32 s{sW}, 6")
        e("s_cbranch_scc1 K1_PRO_PFW")
        e(f"buffer_load_dword v{PV+12}, v{PV}, {sr(S_QKV,4)}, 0 offen")
        e(f"buffer_load_dword v{PV+12}, v{PV}, {sr(S_W3,4)}, 0 offen")
        e("s_branch K1_PRO_NODMA0")
        lab("K1_PRO_PFW")
        e(f"buffer_load_dword v{PV+12}, v{PV}, {sr(S_W1,4)}, 0 offen")
        e(f"buffer_load_dword v{PV+12}, v{PV}, {sr(S_X,4)}, 0 offen")
    if PF == 1:
        e("s_and_b32 s3, s2, 7")
        e("s_lshr_b32 s4, s2, 3")
        e(f"s_mul_i32 s5, s3, {RXC}")
        e(f"s_add_u32 s5, s5, {PFO}")
        e(f"s_cmp_eq_u32 s{sW}, 6")
        e("s_cbranch_scc1 K1_PRO_PFW")
        e(f"v_lshrrev_b32 v{PV+8}, 5, v{vLane}")
        e(f"v_add_u32 v{PV+8}, s5, v{PV+8}")
        e(f"v_and_b32 v{PV+9}, 31, v{vLane}")
        e("s_and_b32 s6, s3, 1")
        e("s_lshl_b32 s6, s6, 5")
        e("s_add_u32 s6, s6, s4")
        e("s_lshl_b32 s6, s6, 5")
        e(f"v_add_u32 v{PV+9}, s6, v{PV+9}")
        e(f"v_lshlrev_b32 v{PV+9}, 10, v{PV+9}")
        for i in range(4):
            e(f"v_add_u32 v{PV+10}, {2*i}, v{PV+8}")
            e(f"v_and_b32 v{PV+10}, 7, v{PV+10}")
            e(f"v_lshl_add_u32 v{PV+i}, v{PV+10}, 7, v{PV+9}")
            if i < 2: e(f"buffer_load_dword v{PV+12}, v{PV+i}, {sr(S_X,4)}, 0 offen")
        e("s_branch K1_PRO_NODMA0")
        lab("K1_PRO_PFW")
        e(f"v_lshrrev_b32 v{PV+8}, 4, v{vLane}")
        e(f"v_add_u32 v{PV+8}, s5, v{PV+8}")
        e(f"v_bfe_u32 v{PV+9}, v{vLane}, 3, 1")
        e("s_lshl_b32 s4, s4, 1")
        e(f"v_add_u32 v{PV+9}, s4, v{PV+9}")
        e(f"v_and_b32 v{PV+10}, 7, v{vLane}")
        e(f"v_lshlrev_b32 v{PV+11}, 7, v{PV+10}")
        e(f"v_min_u32 v{PV+11}, 700, v{PV+11}")
        e("s_lshr_b32 s3, s3, 1")
        e("s_mul_i32 s6, s3, 704")
        e(f"v_add_u32 v{PV+11}, s6, v{PV+11}")
        e(f"v_lshrrev_b32 v{PV+13}, 1, v{PV+10}")
        e(f"v_lshlrev_b32 v{PV+13}, 10, v{PV+13}")
        e(f"v_and_b32 v{PV+10}, 1, v{PV+10}")
        e(f"v_lshl_add_u32 v{PV+13}, v{PV+10}, 7, v{PV+13}")
        e("s_lshl_b32 s6, s3, 8")
        e(f"v_add_u32 v{PV+13}, s6, v{PV+13}")
        e("s_movk_i32 s5, 2752")
        e("s_movk_i32 s6, 3072")
        for i in range(2):
            e(f"v_add_u32 v{PV+10}, {4*i}, v{PV+8}")
            e(f"v_and_b32 v{PV+10}, 7, v{PV+10}")
            e(f"v_lshl_add_u32 v{PV+10}, v{PV+10}, 6, v{PV+9}")
            e(f"v_mad_u32_u24 v{PV+2*i}, v{PV+10}, s5, v{PV+11}")
            e(f"v_mad_u32_u24 v{PV+2*i+1}, v{PV+10}, s6, v{PV+13}")
            if i == 0:
                e(f"buffer_load_dword v{PV+12}, v{PV}, {sr(S_W1,4)}, 0 offen")
                e(f"buffer_load_dword v{PV+12}, v{PV+1}, {sr(S_QKV,4)}, 0 offen")
                e(f"buffer_load_dword v{PV+12}, v{PV}, {sr(S_W3,4)}, 0 offen")
    lab("K1_PRO_NODMA0")
    e("s_barrier")
    stamp(2)
    e(f"s_cmp_eq_u32 s{sDMA}, 1")
    e("s_cbranch_scc0 K1_PRO_NODMA1")
    dmaW()
    e("s_branch K1_PRO_DMA1")
    lab("K1_PRO_NODMA1")
    for d in (S_X, S_W1, S_W3, S_QKV): e(f"s_mov_b32 s{d+2}, 0")
    e(f"s_mov_b32 s{sDWs}, {NW*WSLOT}")
    e(f"s_mov_b32 s{sDXs}, {XBASE+NX*XSLOT}")
    e(f"s_mov_b32 s{sWPD}, {NW*WSLOT}")
    e(f"s_mov_b32 s{sWPX}, {XBASE+NX*XSLOT}")
    lab("K1_PRO_DMA1")
    e(f"s_mov_b32 s{S_HF}, s50")
    e(f"s_and_b32 s{S_HF+1}, s51, 0xffff")
    e(f"s_mov_b32 s{S_HF+2}, {HF_BYTES}")
    e(f"s_mov_b32 s{S_HF+3}, 0x00020000")
    e(f"s_add_u32 s{S_W2F}, s50, {W2F_OFF}")
    e(f"s_addc_u32 s{S_W2F+1}, s51, 0")
    e(f"s_and_b32 s{S_W2F+1}, s{S_W2F+1}, 0xffff")
    e(f"s_mov_b32 s{S_W2F+2}, {W2F_BYTES}")
    e(f"s_mov_b32 s{S_W2F+3}, 0x00020000")
    for i in range(4): e(f"v_mov_b32 v{T+8+i}, 0x3f803f80")
    e(f"v_mov_b32 v{T+4}, {ONES}")
    e(f"ds_write_b128 v{T+4}, {vr(T+8,4)}")
    for o in (768, 3072, 3840):
        e(f"ds_write_b64 v{T+4}, {vr(T+8,2)} offset:{o}")
    e(f"v_and_b32 v{T}, 31, v{vLane}")
    e(f"v_lshrrev_b32 v{T+1}, 5, v{vLane}")
    e(f"v_bfe_u32 v{T+2}, v{vLane}, 1, 3")
    e(f"v_xor_b32 v{T+2}, v{T+2}, v{T+1}")
    e(f"v_lshlrev_b32 v{T+2}, 4, v{T+2}")
    e(f"v_lshl_add_u32 v{T+2}, v{T}, 7, v{T+2}")
    e(f"s_and_b32 s3, s{sG}, 1")
    e(f"s_lshl_b32 s4, s{sMH}, 1")
    e(f"s_add_u32 s{sMT0}, s4, s3")
    e(f"s_xor_b32 s{sMT1}, s{sMT0}, 1")
    e(f"s_lshl_b32 s3, s{sMT0}, 12")
    e(f"s_add_u32 s3, s3, {16*128}")
    e(f"v_add_u32 v{vXa0}, s3, v{T+2}")
    e(f"s_lshl_b32 s3, s{sMT1}, 12")
    e(f"s_add_u32 s3, s3, {16*128}")
    e(f"v_add_u32 v{vXa1}, s3, v{T+2}")
    e(f"v_bfe_u32 v{T}, v{vLane}, 4, 1")
    e(f"v_bfe_u32 v{T+2}, v{vLane}, 2, 2")
    e(f"v_lshl_add_u32 v{T+2}, v{T+1}, 3, v{T+2}")
    e(f"v_mul_u32_u24 v{T+2}, 192, v{T+2}")
    e(f"v_and_b32 v{T+3}, 3, v{vLane}")
    e(f"v_lshl_add_u32 v{T+4}, v{T+3}, 3, v{T+2}")
    e(f"v_lshl_add_u32 v{T+5}, v{T}, 5, v{T+4}")
    e(f"v_add_u32 v{T+5}, {QKVOFF}, v{T+5}")
    e(f"v_mul_u32_u24 v{T+7}, {W3OFF}, v{T}")
    e(f"v_add_u32 v{T+7}, v{T+7}, v{T+4}")
    e(f"v_add_u32 v{T+7}, s{sOF}, v{T+7}")
    for slot, dst in ((0, vWA), (1, vWB)):
        e(f"s_lshl_b32 s3, s{sG}, 1")
        e(f"s_add_u32 s3, s3, {slot}")
        e("s_lshl_b32 s4, s3, 6")
        e("s_sub_u32 s5, s3, 3")
        e("s_lshl_b32 s5, s5, 5")
        e("s_cmp_lt_u32 s3, 3")
        e("s_cselect_b32 s4, s4, s5")
        e(f"s_cselect_b64 {sr(sMK,2)}, -1, 0")
        e(f"v_cndmask_b32 v{dst}, v{T+7}, v{T+5}, {sr(sMK,2)}")
        e(f"v_add_u32 v{dst}, s4, v{dst}")
    e(f"v_lshrrev_b32 v{T+8}, 1, v{T+3}")
    e(f"v_mul_u32_u24 v{T+8}, {W3OFF}, v{T+8}")
    e(f"v_and_b32 v{T+9}, 1, v{T+3}")
    e(f"v_lshl_add_u32 v{T+8}, v{T+9}, 3, v{T+8}")
    e(f"v_add_u32 v{T+8}, v{T+8}, v{T+2}")
    e(f"v_add_u32 v{T+8}, s{sOH}, v{T+8}")
    e(f"v_mov_b32 v{T+9}, {ONES}")
    e(f"v_cmp_eq_u32 vcc, 1, v{T}")
    e(f"v_xor_b32 v{vM9}, 1, v{T}")
    e("s_nop 0")
    e(f"v_cndmask_b32 v{vB9}, v{T+8}, v{T+9}, vcc")
    stamp(3)
    e(f"v_and_b32 v{T}, 15, v{vLane}")
    e(f"v_lshrrev_b32 v{T+1}, 4, v{vLane}")
    e(f"v_bfe_u32 v{T+2}, v{vLane}, 1, 3")
    e(f"v_xor_b32 v{T+2}, v{T+2}, v{T+1}")
    e(f"v_lshlrev_b32 v{T+2}, 4, v{T+2}")
    e(f"v_lshl_add_u32 v{vHXa}, v{T}, 7, v{T+2}")
    e(f"s_lshl_b32 s3, s{sW}, 11")
    e(f"s_add_u32 s3, s3, 2048")
    e(f"v_add_u32 v{vSQa}, s3, v{vHXa}")
    e(f"v_cmp_eq_u32 vcc, 0, v{T}")
    e(f"v_mov_b32 v{T+4}, 0")
    e(f"v_mov_b32 v{T+5}, 1")
    e(f"v_cndmask_b32 v{vCH1}, v{T+4}, v{T+9}, vcc")
    e(f"v_cndmask_b32 v{vMH1}, v{T+5}, v{T+4}, vcc")
    e(f"v_and_b32 v{T+5}, 1, v{T+1}")
    e(f"v_cmp_eq_u32 vcc, v{T+5}, v{T}")
    e(f"v_mov_b32 v{T+5}, 0x3f803f80")
    e("s_nop 0")
    for i in range(4): e(f"v_cndmask_b32 v{SEL+i}, v{T+4}, v{T+5}, vcc")
    e(f"v_bfe_u32 v{T+2}, v{vLane}, 2, 2")
    e(f"v_lshl_add_u32 v{T+2}, v{T+1}, 3, v{T+2}")
    e(f"v_mul_u32_u24 v{T+2}, 192, v{T+2}")
    e(f"v_lshl_add_u32 v{T+2}, v{T+3}, 3, v{T+2}")
    e(f"s_lshl_b32 s3, s{sG}, 5")
    e(f"s_add_u32 s3, s3, {QKVOFF+64}")
    e(f"v_add_u32 v{vHWa}, s3, v{T+2}")
    e(f"v_bfe_u32 v{T}, v{vLane}, 4, 1")
    e(f"v_lshrrev_b32 v{T+1}, 5, v{vLane}")
    e(f"v_bfe_u32 v{T+2}, v{vLane}, 2, 2")
    e(f"s_cmp_eq_u32 s{sT0}, 1")
    e("s_cselect_b32 s3, 3, 2")
    e("s_movk_i32 s4, 512")
    e("s_cselect_b32 s4, 256, s4")
    e(f"v_lshlrev_b32 v{T+1}, s3, v{T+1}")
    e(f"v_add_u32 v{T+1}, v{T+1}, v{T+2}")
    e(f"v_lshlrev_b32 v{T+1}, 6, v{T+1}")
    e(f"v_lshl_add_u32 v{T+1}, v{T}, 5, v{T+1}")
    e(f"v_lshl_add_u32 v{T+1}, v{T+3}, 3, v{T+1}")
    e(f"s_add_u32 s5, s{sWPW}, {TS}")
    e(f"v_add_u32 v{vTA1}, s5, v{T+1}")
    e(f"v_add_u32 v{vTA2}, s4, v{vTA1}")
    for i in range(4): e(f"v_mov_b32 v{96+i}, 0")
    e("s_nop 1")
    for r in (0, 16, 32, 48, 64, 80, 100, 116, 132):
        e(f"v_mfma_f32_32x32x16_bf16 {vr(r,16)}, {vr(96,4)}, {vr(96,4)}, 0")
    e(f"s_mov_b32 s{sRWA}, 0")
    e(f"s_mov_b32 s{sRWB}, {WSLOT}")
    e(f"s_mov_b32 s{sRX}, {XBASE}")
    e(f"s_mov_b32 s{sIT}, 1")
    e(f"s_lshr_b32 s3, s{sG}, 1")
    e(f"s_cmp_eq_u32 s3, s{sMH}")
    e("s_cbranch_scc0 K1_ROLEH")

    uid = [0]
    DL = 6 if LA == 4 else 7
    def adv(sreg, step, lim):
        e(f"s_add_u32 s{sreg}, s{sreg}, {step}")
        e(f"s_sub_u32 s{sT1}, s{sreg}, {lim}")
        e(f"s_cmp_ge_u32 s{sreg}, {lim}")
        e(f"s_cselect_b32 s{sreg}, s{sT1}, s{sreg}")
    def dma_loop(even, role9):
        uid[0] += 1
        lb = f"K1_ND{uid[0]}"
        lim = {4: (6, 6), 3: (7, 6), 2: (7, 7)}[LA][0 if even else 1]
        e(f"s_cmp_{'gt' if lim == DL else 'ge'}_u32 s{sIT}, s{sDMA}")
        e(f"s_cbranch_scc1 {lb}")
        dmaW()
        if even: dmaX()
        lab(lb)
        if even and role9 and PF == 1:
            e(f"s_lshl_b32 s{sT2}, s{sIT}, 3")
            e(f"s_add_u32 s{sT2}, s{sT2}, s{sW}")
            e(f"s_cmp_eq_u32 s{sT2}, {8*PFB+7}")
            e(f"s_cbranch_scc0 {lb}x")
            e(f"buffer_load_dword v{PV+12}, v{PV+2}, {sr(S_X,4)}, 0 offen")
            e(f"buffer_load_dword v{PV+12}, v{PV+3}, {sr(S_X,4)}, 0 offen")
            lab(lb + "x")
            e(f"s_cmp_eq_u32 s{sT2}, {8*PFB+6}")
            e(f"s_cbranch_scc0 {lb}w")
            e(f"buffer_load_dword v{PV+12}, v{PV+2}, {sr(S_W1,4)}, 0 offen")
            e(f"buffer_load_dword v{PV+12}, v{PV+3}, {sr(S_QKV,4)}, 0 offen")
            e(f"buffer_load_dword v{PV+12}, v{PV+2}, {sr(S_W3,4)}, 0 offen")
            lab(lb + "w")
    def vwait(steady, th, n, last0):
        uid[0] += 1
        lb = f"K1_VW{uid[0]}"
        e(f"s_waitcnt vmcnt({steady})")
        e(f"s_cmp_le_u32 s{sIT}, {th}")
        e(f"s_cbranch_scc1 {lb}")
        e(f"s_waitcnt vmcnt({n})")
        if last0:
            e(f"s_cmp_lt_u32 s{sIT}, 8")
            e(f"s_cbranch_scc1 {lb}")
            e("s_waitcnt vmcnt(0)")
        lab(lb)
    def x_addrs():
        r = [f"v_add_u32 v{aX}, s{sRX}, v{vXa0}", f"v_add_u32 v{aX+4}, s{sRX}, v{vXa1}"]
        for ks in range(1, 4):
            r.append(f"v_xor_b32 v{aX+ks}, {32*ks}, v{aX}")
            r.append(f"v_xor_b32 v{aX+4+ks}, {32*ks}, v{aX+4}")
        return r
    def chunk_addrs(srw, c2, role9):
        r = [f"v_add_u32 v{aWA}, s{srw}, v{vWA}", f"v_add_u32 v{aWB}, s{srw}, v{vWB}"]
        if role9:
            r.append(f"v_mad_u32_u24 v{a9}, v{vM9}, s{srw}, v{vB9}")
        else:
            r.append(f"v_add_u32 v{aHW}, s{srw}, v{vHWa}")
            r.append(f"v_add_u32 v{aHX}, s{sRX}, v{vHXa}")
            if c2: r.append(f"v_xor_b32 v{aHX}, 64, v{aHX}")
            r.append(f"v_mad_u32_u24 v{aHX1}, v{vMH1}, v{aHX}, v{vCH1}")
        r.append(f"v_add_u32 v{aSQ}, s{sRX}, v{vSQa}")
        if c2: r.append(f"v_xor_b32 v{aSQ}, 64, v{aSQ}")
        return r
    def reads(st, ks4, role9):
        ks = ks4 & 1
        o = 3072 * ks
        r = [f"ds_read_b128 {vr(FX[st],4)}, v{aX+ks4}",
             f"ds_read_b64_tr_b16 {vr(FW[st],2)}, v{aWA} offset:{o}",
             f"ds_read_b64_tr_b16 {vr(FW[st]+2,2)}, v{aWA} offset:{o+768}",
             f"ds_read_b128 {vr(FX[st]+4,4)}, v{aX+4+ks4}",
             f"ds_read_b64_tr_b16 {vr(FW[st]+4,2)}, v{aWB} offset:{o}",
             f"ds_read_b64_tr_b16 {vr(FW[st]+6,2)}, v{aWB} offset:{o+768}"]
        if role9:
            r += [f"ds_read_b64_tr_b16 {vr(FW[st]+8,2)}, v{a9} offset:{o}",
                  f"ds_read_b64_tr_b16 {vr(FW[st]+10,2)}, v{a9} offset:{o+768}"]
        return r
    def side_reads(role9):
        r = [f"ds_read_b128 {vr(FSQ,4)}, v{aSQ}"]
        if not role9:
            r += [f"ds_read_b128 {vr(FHX,4)}, v{aHX}", f"ds_read_b128 {vr(FHX1,4)}, v{aHX1}",
                  f"ds_read_b64_tr_b16 {vr(FHW,2)}, v{aHW}", f"ds_read_b64_tr_b16 {vr(FHW+2,2)}, v{aHW} offset:768"]
        return r
    def mfma_list(st, ks4, role9):
        mf = [f"v_mfma_f32_32x32x16_bf16 {vr(ACC,16)}, {vr(FW[st],4)}, {vr(FX[st],4)}, {vr(ACC,16)}",
              f"v_mfma_f32_32x32x16_bf16 {vr(ACC+16,16)}, {vr(FW[st],4)}, {vr(FX[st]+4,4)}, {vr(ACC+16,16)}",
              f"v_mfma_f32_32x32x16_bf16 {vr(ACC+32,16)}, {vr(FW[st]+4,4)}, {vr(FX[st],4)}, {vr(ACC+32,16)}",
              f"v_mfma_f32_32x32x16_bf16 {vr(ACC+48,16)}, {vr(FW[st]+4,4)}, {vr(FX[st]+4,4)}, {vr(ACC+48,16)}"]
        small = []
        if role9:
            mf.append(f"v_mfma_f32_32x32x16_bf16 {vr(ACC9,16)}, {vr(FW[st]+8,4)}, {vr(FX[st],4)}, {vr(ACC9,16)}")
            small.append(f"v_mfma_f32_16x16x32_bf16 {vr(CSA,4)}, {vr(FW[st],4)}, {vr(SEL,4)}, {vr(CSA,4)}")
        else:
            small.append(f"v_mfma_f32_16x16x32_bf16 {vr(CSA,4)}, {vr(FW[st]+4,4)}, {vr(SEL,4)}, {vr(CSA,4)}")
        if ks4 & 1:
            small.append(f"v_mfma_f32_16x16x32_bf16 {vr(SQA,4)}, {vr(FSQ,4)}, {vr(FSQ,4)}, {vr(SQA,4)}")
            if not role9:
                small.append(f"v_mfma_f32_16x16x32_bf16 {vr(ACC9,4)}, {vr(FHW,4)}, {vr(FHX,4)}, {vr(ACC9,4)}")
                small.append(f"v_mfma_f32_16x16x32_bf16 {vr(HST,4)}, {vr(FHX1,4)}, {vr(FHX,4)}, {vr(HST,4)}")
        return small, mf
    def group(st, ks4, role9, fill):
        small, mf = mfma_list(st, ks4, role9)
        MODE = os.environ.get("GMODE", "w21")
        def c9():
            if role9:
                uid[0] += 1
                lb = f"K1_C9{uid[0]}"
                e(f"s_cmp_eq_u32 s{sG}, {ks4}")
                e(f"s_cbranch_scc0 {lb}")
                e(f"v_mfma_f32_16x16x32_bf16 {vr(CS9A,4)}, {vr(FW[st]+8,4)}, {vr(SEL,4)}, {vr(CS9A,4)}")
                lab(lb)
        if MODE == "weave":
            for m in small: e(m)
            c9()
            n = len(mf) - 1
            per = [len(fill) * (i + 1) // n - len(fill) * i // n for i in range(n)] + [0]
            k = 0
            for i, m in enumerate(mf):
                e(m)
                for f in fill[k:k + per[i]]: e(f)
                k += per[i]
        elif MODE.startswith("w2"):
            seq = [(mf[0], 2), (mf[1], 2)]
            rest = mf[2:]; sm = list(small)
            while rest or sm:
                if sm: seq.append((sm.pop(0), 1))
                if rest: seq.append((rest.pop(0), 2))
            c9()
            last = int(MODE[2:] or 1)
            wts = [w_ for _, w_ in seq]
            for i in range(last): wts[-1 - i] = 0
            tot = sum(wts); acc = 0; k = 0
            for (m, _), w_ in zip(seq, wts):
                e(m)
                acc += w_
                k2 = len(fill) * acc // tot
                for f in fill[k:k2]: e(f)
                k = k2
        elif MODE == "first":
            for f in fill: e(f)
            for m in mf: e(m)
            for m in small: e(m)
            c9()
        elif MODE == "one":
            e(mf[0])
            for f in fill: e(f)
            for m in mf[1:]: e(m)
            for m in small: e(m)
            c9()
        elif MODE == "two":
            e(mf[0])
            h = len(fill) // 2
            for f in fill[:h]: e(f)
            e(mf[1])
            for f in fill[h:]: e(f)
            for m in mf[2:]: e(m)
            for m in small: e(m)
            c9()

    def mainloop(role9):
        nm = "9" if role9 else "H"
        uid[0] += 1
        lb = f"K1_TJ{uid[0]}"
        e("s_waitcnt vmcnt(9)")
        e(f"s_cmp_eq_u32 s{sDMA}, 1")
        e(f"s_cbranch_scc1 {lb}")
        e(f"s_waitcnt vmcnt({2 if PF else 0})")
        if FUSE and role9:
            e(f"s_cmp_eq_u32 s{sW}, 7")
            e(f"s_cbranch_scc0 {lb}")
            e("v_readfirstlane_b32 s3, v250")
            e(f"v_mov_b32 v251, {TAGL}")
            e("s_cmp_eq_u32 s3, 0")
            e("s_cselect_b32 s3, s100, s3")
            e("v_mov_b32 v250, s3")
            e("ds_write_b32 v251, v250")
        lab(lb)
        e(f"s_mul_i32 s{sDMA}, s{sDMA}, {DL}")
        e(f"v_lshlrev_b32 v{T+10}, 4, v{vLane}")
        e(f"s_add_u32 s3, s{sWPW}, {TS}")
        e(f"v_add_u32 v{T+11}, s3, v{T+10}")
        e(f"ds_write_b128 v{T+11}, {vr(WT,4)}")
        e("s_waitcnt lgkmcnt(0)")
        e(f"ds_read_b64_tr_b16 {vr(WT,2)}, v{vTA1}")
        e(f"ds_read_b64_tr_b16 {vr(WT+2,2)}, v{vTA2}")
        e(f"s_lshl_b32 s3, s{sID}, 10")
        e("s_waitcnt lgkmcnt(0)")
        e(f"buffer_store_dwordx4 {vr(WT,4)}, v{T+10}, {sr(S_W2F,4)}, s3 offen{SC}")
        PB = int(os.environ.get("PB", "1"))
        if LA == 4:
            e("s_barrier")
            e(f"s_cmp_eq_u32 s{sDMA}, 0")
            e(f"s_cbranch_scc1 K1_PND{nm}")
            dmaW(); dmaX()
            lab(f"K1_PND{nm}")
        if LA >= 3:
            e("s_barrier")
            e(f"s_cmp_eq_u32 s{sDMA}, 0")
            e(f"s_cbranch_scc1 K1_PNE{nm}")
            dmaW()
            lab(f"K1_PNE{nm}")
        stamp(1)
        for a_ in x_addrs() + chunk_addrs(sRWA, 0, role9): e(a_)
        lab(f"K1_LOOP{nm}")
        INLOOP[0] = True
        e("s_waitcnt vmcnt(3) lgkmcnt(0)")
        e("s_barrier")
        if STAMP == 2:
            e("s_memtime s[92:93]")
            e(f"s_lshl_b32 s94, s{sIT}, 1")
            e("s_add_u32 m0, s94, 38")
            e("s_waitcnt lgkmcnt(0)")
            e(f"v_writelane_b32 v{STV}, s92, m0")
        DW = os.environ.get("DW", "AB")
        dE = capture(lambda: (dmaW(), dmaX())); dO = capture(dmaW)
        def split(d):
            if DW == "A": return d, []
            if DW == "B": return [], d
            k = 13 if len(d) > 13 else 8
            return d[:k], d[k:]
        d1, d2 = split(dE)
        group(1, 3, role9, reads(0, 0, role9) + d1)
        e("s_waitcnt lgkmcnt(0)")
        group(0, 0, role9, reads(1, 1, role9) + side_reads(role9) + d2 + chunk_addrs(sRWB, 1, role9))
        e("s_waitcnt vmcnt(6) lgkmcnt(0)")
        e("s_barrier")
        if STAMP == 2:
            e("s_memtime s[92:93]")
            e(f"s_lshl_b32 s94, s{sIT}, 1")
            e("s_add_u32 m0, s94, 39")
            e("s_waitcnt lgkmcnt(0)")
            e(f"v_writelane_b32 v{STV}, s92, m0")
        d1, d2 = split(dO)
        group(1, 1, role9, reads(0, 2, role9) + d1)
        e("s_waitcnt lgkmcnt(0)")
        tail = [f"s_cmp_eq_u32 s{sIT}, 7"] + [f"s_cselect_b32 s{d+2}, 0, s{d+2}" for d in (S_X, S_W1, S_W3, S_QKV)]
        def advs():
            adv(sRWA, 2 * WSLOT, NW * WSLOT)
            adv(sRWB, 2 * WSLOT, NW * WSLOT)
            e(f"s_add_u32 s{sRX}, s{sRX}, {XSLOT}")
            e(f"s_cmp_ge_u32 s{sRX}, {XBASE+NX*XSLOT}")
            e(f"s_cselect_b32 s{sRX}, {XBASE}, s{sRX}")
        group(0, 2, role9, reads(1, 3, role9) + side_reads(role9) + d2 + tail + capture(advs) + x_addrs() + chunk_addrs(sRWA, 0, role9))
        INLOOP[0] = False
        if STAMP:
            e("s_memtime s[92:93]")
            e(f"s_add_u32 m0, s{sIT}, 31")
            e("s_waitcnt lgkmcnt(0)")
            e(f"v_writelane_b32 v{STV}, s92, m0")
        e(f"s_add_u32 s{sIT}, s{sIT}, 1")
        e(f"s_cmp_lt_u32 s{sIT}, 9")
        e(f"s_cbranch_scc1 K1_LOOP{nm}")
        e("s_waitcnt lgkmcnt(0)")
        group(1, 3, role9, [])
        stamp(4)
        e(f"v_and_b32 v{T}, 15, v{vLane}")
        e(f"v_lshrrev_b32 v{T+1}, 4, v{vLane}")
        e(f"v_lshlrev_b32 v{T+2}, 6, v{T}")
        e(f"v_lshl_add_u32 v{T+2}, v{T+1}, 4, v{T+2}")
        e(f"s_lshl_b32 s3, s{sG}, 8")
        e(f"s_add_u32 s3, s3, {CS + (0 if role9 else 128)}")
        e(f"v_add_u32 v{T+3}, s3, v{T+2}")
        e(f"s_lshl_b32 s3, s{sG}, 7")
        e(f"s_add_u32 s3, s3, {CS9}")
        e(f"v_add_u32 v{T+4}, s3, v{T+2}")
        e(f"v_and_b32 v{T+5}, 3, v{vLane}")
        e(f"v_lshlrev_b32 v{T+6}, 2, v{vLane}")
        e(f"s_lshl_b32 s3, s{sW}, 8")
        e(f"s_add_u32 s3, s3, {SQ}")
        e(f"v_add_u32 v{T+7}, s3, v{T+6}")
        def diag(dst, src):
            e(f"v_cmp_eq_u32 vcc, 1, v{T+5}")
            e(f"v_cmp_eq_u32 {sr(sMK,2)}, 2, v{T+5}")
            e(f"v_cmp_eq_u32 s[4:5], 3, v{T+5}")
            e(f"v_cndmask_b32 v{dst}, v{src}, v{src+1}, vcc")
            e(f"v_cndmask_b32 v{dst}, v{dst}, v{src+2}, {sr(sMK,2)}")
            e(f"v_cndmask_b32 v{dst}, v{dst}, v{src+3}, s[4:5]")
        diag(T + 8, SQA)
        e(f"ds_write_b32 v{T+7}, v{T+8}")
        if not role9:
            diag(T + 9, HST)
            e(f"s_lshl_b32 s3, s{sG}, 9")
            e(f"s_add_u32 s3, s3, {HSC}")
            e(f"v_add_u32 v{T+10}, s3, v{T+6}")
            e(f"ds_write_b32 v{T+10}, v{T+9}")
            e(f"ds_write_b32 v{T+10}, v{HST} offset:256")
        e(f"v_cmp_gt_u32 vcc, 2, v{T}")
        e("s_and_saveexec_b64 s[4:5], vcc")
        e(f"ds_write_b128 v{T+3}, {vr(CSA,4)}")
        if role9:
            e(f"ds_write_b128 v{T+4}, {vr(CS9A,4)}")
        e("s_mov_b64 exec, s[4:5]")
        e(f"v_and_b32 v{T}, 31, v{vLane}")
        e(f"v_lshlrev_b32 v{T}, 2, v{T}")
        e(f"s_lshl_b32 s3, s{sMT0}, 7")
        e(f"s_lshl_b32 s4, s{sMT1}, 7")
        e(f"v_add_u32 v{T+2}, s3, v{T}")
        e(f"v_add_u32 v{T+3}, s4, v{T}")
        if role9:
            e(f"v_add_u32 v{T+6}, {RS}, v{T+2}")
            e(f"ds_write_b32 v{T+6}, v{ACC9+8}")
        e(f"s_mov_b32 s{sT3}, {1 if role9 else 0}")
        e("s_waitcnt vmcnt(0)")
        e("s_branch K1_EPI")

    mainloop(True)
    lab("K1_ROLEH")
    mainloop(False)

    lab("K1_EPI")
    sROLE = sT3
    CA, CB = 80, 96
    C9 = 112
    ST = 120
    RAW = 132
    e("s_waitcnt lgkmcnt(0)")
    e("s_barrier")
    stamp(5)
    S_FL = S_QKV
    if FUSE:
        e(f"s_add_u32 s{S_FL}, s50, {FLG}")
        e(f"s_addc_u32 s{S_FL+1}, s51, 0")
        e(f"s_and_b32 s{S_FL+1}, s{S_FL+1}, 0xffff")
        e(f"s_mov_b32 s{S_FL+2}, 8192")
        e(f"s_mov_b32 s{S_FL+3}, 0x00020000")
        e(f"s_cmp_lg_u32 s{sW}, 0")
        e("s_cbranch_scc1 K1_FL1")
        e(f"v_mov_b32 v{T+13}, {TAGL}")
        e(f"ds_read_b32 v{T+12}, v{T+13}")
        e(f"s_lshl_b32 s3, s{sCG}, 7")
        e(f"s_lshl_b32 s4, s{sRB}, 2")
        e("s_add_u32 s3, s3, s4")
        e(f"v_mov_b32 v{T+13}, s3")
        e("s_waitcnt lgkmcnt(0)")
        e(f"v_readfirstlane_b32 s100, v{T+12}")
        e("s_mov_b64 exec, 1")
        e(f"buffer_store_dword v{T+12}, v{T+13}, {sr(S_FL,4)}, 0 offen sc1")
        e("s_mov_b64 exec, -1")
        lab("K1_FL1")
    e(f"v_add_u32 v{T+4}, {RS}, v{T+2}")
    e(f"v_add_u32 v{T+5}, {RS}, v{T+3}")
    e(f"ds_read_b32 v{RAW}, v{T+4}")
    e(f"ds_read_b32 v{RAW+1}, v{T+5}")
    e(f"v_and_b32 v{T+6}, 15, v{vLane}")
    e(f"v_lshrrev_b32 v{T+7}, 2, v{T+6}")
    e(f"v_lshl_add_u32 v{T+6}, v{T+7}, 4, v{T+6}")
    e(f"v_lshlrev_b32 v{T+6}, 2, v{T+6}")
    e(f"v_bfe_u32 v{T+7}, v{vLane}, 4, 1")
    e(f"v_lshl_add_u32 v{T+7}, v{T+7}, 8, v{T+6}")
    e(f"s_lshl_b32 s3, s{sMT0}, 9")
    e(f"s_add_u32 s3, s3, {SQ}")
    e(f"s_lshl_b32 s4, s{sMT1}, 9")
    e(f"s_add_u32 s4, s4, {SQ}")
    e(f"v_add_u32 v{T+8}, s3, v{T+7}")
    e(f"v_add_u32 v{T+7}, s4, v{T+7}")
    e(f"ds_read_b32 v{RAW+2}, v{T+8}")
    e(f"ds_read_b32 v{RAW+3}, v{T+7}")
    e(f"s_lshl_b32 s3, s{sG}, 9")
    e(f"s_add_u32 s3, s3, {HSC}")
    e(f"v_add_u32 v{T+6}, s3, v{T+6}")
    e(f"v_and_b32 v{T+8}, 15, v{vLane}")
    e(f"v_lshlrev_b32 v{T+8}, 2, v{T+8}")
    e(f"v_add_u32 v{T+8}, s3, v{T+8}")
    e(f"ds_read_b32 v{RAW+4}, v{T+8} offset:256")
    e(f"ds_read_b32 v{RAW+5}, v{T+6}")
    e(f"v_lshrrev_b32 v{T+9}, 5, v{vLane}")
    e(f"v_lshlrev_b32 v{T+10}, 4, v{T+9}")
    e(f"s_lshl_b32 s3, s{sG}, 8")
    e(f"s_add_u32 s3, s3, {CS}")
    e(f"v_add_u32 v{T+11}, s3, v{T+10}")
    for q in range(4):
        e(f"ds_read_b128 {vr(CA+4*q,4)}, v{T+11} offset:{32*q}")
    for q in range(4):
        e(f"ds_read_b128 {vr(CB+4*q,4)}, v{T+11} offset:{128+32*q}")
    e("s_waitcnt lgkmcnt(8)")
    e(f"s_cmp_eq_u32 s{sROLE}, 1")
    e("s_cbranch_scc0 K1_E_CH")
    e(f"v_add_u32 v{T+12}, {CS9}, v{T+10}")
    for p in range(4):
        e(f"ds_read_b128 {vr(vTMP+8+8*p,4)}, v{T+12} offset:{128*p}")
        e(f"ds_read_b128 {vr(vTMP+12+8*p,4)}, v{T+12} offset:{128*p+32}")
    e("s_waitcnt lgkmcnt(0)")
    for i in range(8):
        e(f"v_add_f32 v{C9+i}, v{vTMP+8+i}, v{vTMP+16+i}")
        e(f"v_add_f32 v{vTMP+24+i}, v{vTMP+24+i}, v{vTMP+32+i}")
    for i in range(8):
        e(f"v_add_f32 v{C9+i}, v{C9+i}, v{vTMP+24+i}")
    e("s_branch K1_E_CD")
    lab("K1_E_CH")
    e(f"v_lshrrev_b32 v{T+13}, 4, v{vLane}")
    e(f"v_lshlrev_b32 v{T+13}, 4, v{T+13}")
    e(f"s_lshl_b32 s3, s{sG}, 6")
    e(f"s_add_u32 s3, s3, {CS+128}")
    e(f"v_add_u32 v{T+13}, s3, v{T+13}")
    e(f"ds_read_b128 {vr(C9,4)}, v{T+13}")
    lab("K1_E_CD")
    def stats(rs, sq, o):
        t = vTMP
        e(f"v_mul_f32 v{t}, {f2u(1/512):#x}, v{rs}")
        e(f"v_mul_f32 v{t+1}, {f2u(1/512):#x}, v{sq}")
        e(f"v_fma_f32 v{t+1}, -v{t}, v{t}, v{t+1}")
        e(f"v_max_f32 v{t+1}, 0, v{t+1}")
        e(f"v_cvt_pk_bf16_f32 v{t+2}, v{t}, v{t+1}")
        e(f"v_lshlrev_b32 v{t}, 16, v{t+2}")
        e(f"v_and_b32 v{t+1}, 0xffff0000, v{t+2}")
        e(f"v_add_f32 v{t+1}, {f2u(1e-5):#x}, v{t+1}")
        e(f"v_cvt_pk_bf16_f32 v{t+2}, v{t+1}, v{t+1}")
        e(f"v_and_b32 v{t+1}, 0xffff0000, v{t+2}")
        e(f"v_sqrt_f32 v{t+1}, v{t+1}")
        e(f"v_xor_b32 v{o+1}, 0x80000000, v{t}")
        e(f"v_cvt_pk_bf16_f32 v{t+2}, v{t+1}, v{t+1}")
        e(f"v_and_b32 v{t+1}, 0xffff0000, v{t+2}")
        e(f"v_rcp_f32 v{o}, v{t+1}")
        e(f"v_mul_f32 v{o+3}, v{t+1}, v{t+1}")
        e(f"v_mul_f32 v{o+2}, {f2u(-LOG2E):#x}, v{o}")
    stats(RAW, RAW + 2, ST)
    stats(RAW + 1, RAW + 3, ST + 4)
    e(f"v_and_b32 v{T}, 31, v{vLane}")
    e(f"v_mul_u32_u24 v{T}, {SPITCH}, v{T}")
    e(f"v_lshl_add_u32 v{T+1}, v{T+9}, 3, v{T}")
    e(f"v_lshl_add_u32 v{T+2}, v{T+9}, 4, v{T}")
    e(f"s_mul_i32 s3, s{sMT0}, {32*SPITCH}")
    e(f"s_add_u32 s3, s3, {STG+16*SPITCH}")
    e(f"s_mul_i32 s4, s{sMT1}, {32*SPITCH}")
    e(f"s_add_u32 s4, s4, {STG+16*SPITCH}")
    e(f"v_add_u32 v{T+3}, s3, v{T+1}")
    e(f"v_add_u32 v{T+4}, s4, v{T+1}")
    e(f"v_add_u32 v{T+5}, s3, v{T+2}")
    e(f"v_add_u32 v{T+6}, s4, v{T+2}")
    e(f"v_lshlrev_b32 v{T+7}, 4, v{vLane}")
    e(f"s_lshl_b32 s5, s{sRB}, 2")
    e(f"s_add_u32 s{sT1}, s5, s{sMT0}")
    e(f"s_add_u32 s{sT2}, s5, s{sMT1}")
    e("s_waitcnt lgkmcnt(0)")
    def bc(r):
        return (vr(r & ~1, 2), r & 1)
    def pkfma(d, a, b, c, bsel=None, csel=None):
        A = vr(a, 2)
        B, bs = (vr(b, 2), None) if bsel is None else bc(b)
        Cc, cs = (vr(c, 2), None) if csel is None else bc(c)
        lo = [0, bs or 0, cs or 0]; hi = [1, 1 if bs is None else bs, 1 if cs is None else cs]
        e(f"v_pk_fma_f32 {vr(d,2)}, {A}, {B}, {Cc} op_sel:[{lo[0]},{lo[1]},{lo[2]}] op_sel_hi:[{hi[0]},{hi[1]},{hi[2]}]")
    def pkmul(d, a, b, bsel=None):
        B, bs = (vr(b, 2), None) if bsel is None else bc(b)
        e(f"v_pk_mul_f32 {vr(d,2)}, {vr(a,2)}, {B} op_sel:[0,{bs or 0}] op_sel_hi:[1,{1 if bs is None else bs}]")
    def ln16(R, C, st, n, dst):
        for i in range(0, n, 2): pkfma(dst + i, C + i, st + 1, R + i, bsel=1)
        for i in range(0, n, 2): pkmul(dst + i, dst + i, st, bsel=1)
    def tile_qk(R, C, st, addr, sec):
        t = vTMP
        ln16(R, C, st, 16, t)
        for q in range(4):
            e(f"v_cvt_pk_bf16_f32 v{t+16+2*q}, v{t+4*q}, v{t+4*q+1}")
            e(f"v_cvt_pk_bf16_f32 v{t+17+2*q}, v{t+4*q+2}, v{t+4*q+3}")
        for q in range(4):
            e(f"ds_write_b64 v{addr}, {vr(t+16+2*q,2)} offset:{sec*64+16*q}")
    def tile_v(R, C, st, addr):
        t = vTMP + 24
        ln16(R, C, st, 16, t)
        for q in range(4):
            e(f"ds_write_b128 v{addr}, {vr(t+4*q,4)} offset:{128+32*q}")
    def silu(R, C, st, n, goff, uoff, t):
        for i in range(0, n, 2): pkfma(t + i, C + goff + i, st + 1, R + goff + i, bsel=1)
        for i in range(0, n, 2): pkmul(t + n + i, t + i, st + 2, bsel=1)
        for i in range(n):
            e(f"v_exp_f32 v{t+n+i}, v{t+n+i}")
        for i in range(0, n, 2): pkfma(t + 2*n + i, C + uoff + i, st + 1, R + uoff + i, bsel=1)
        for i in range(0, n, 2): pkfma(t + n + i, t + n + i, st + 3, st + 3, bsel=1, csel=1)
        for i in range(n):
            e(f"v_rcp_f32 v{t+n+i}, v{t+n+i}")
        for i in range(0, n, 2): pkmul(t + i, t + i, t + 2*n + i)
        for i in range(0, n, 2): pkmul(t + i, t + i, t + n + i)
        for i in range(n // 2):
            e(f"v_cvt_pk_bf16_f32 v{t+3*n+i}, v{t+2*i}, v{t+2*i+1}")
    def tile_ffn(R, C, st, smt, tau_s, tbase):
        silu(R, C, st, 8, 0, 8, tbase)
        e(f"s_add_u32 s3, s{tau_s}, s{smt}")
        e("s_lshl_b32 s3, s3, 10")
        e(f"buffer_store_dwordx4 {vr(tbase+24,4)}, v{T+7}, {sr(S_HF,4)}, s3 offen{SC}")
    e(f"s_lshl_b32 s6, s{sG}, 1")
    e(f"s_add_u32 s6, s6, s{sTF}")
    e("s_add_u32 s6, s6, 29")
    e("s_lshl_b32 s6, s6, 6")
    e("s_add_u32 s7, s6, 64")
    e(f"s_cmp_eq_u32 s{sROLE}, 1")
    e("s_cbranch_scc1 K1_E_T")
    stats(RAW + 4, RAW + 5, ST + 8)
    t = vTMP + 40
    ln16(ACC9, C9, ST + 8, 4, t)
    e(f"v_and_b32 v{T}, 15, v{vLane}")
    e(f"v_mul_u32_u24 v{T}, {SPITCH}, v{T}")
    e(f"v_lshrrev_b32 v{T+1}, 4, v{vLane}")
    e(f"s_cmp_lt_u32 s{sG}, 2")
    e("s_cbranch_scc0 K1_E_HV")
    e(f"v_cvt_pk_bf16_f32 v{t+4}, v{t}, v{t+1}")
    e(f"v_cvt_pk_bf16_f32 v{t+5}, v{t+2}, v{t+3}")
    e(f"v_lshl_add_u32 v{T}, v{T+1}, 3, v{T}")
    e(f"s_lshl_b32 s3, s{sG}, 5")
    e(f"s_add_u32 s3, s3, {STG+64}")
    e(f"v_add_u32 v{T}, s3, v{T}")
    e(f"ds_write_b64 v{T}, {vr(t+4,2)}")
    e("s_branch K1_E_T")
    lab("K1_E_HV")
    e(f"v_lshl_add_u32 v{T}, v{T+1}, 4, v{T}")
    e(f"s_lshl_b32 s3, s{sG}, 6")
    e(f"s_add_u32 s3, s3, {STG+128-128}")
    e(f"v_add_u32 v{T}, s3, v{T}")
    e(f"ds_write_b128 v{T}, {vr(t,4)}")
    lab("K1_E_T")
    e(f"s_cmp_eq_u32 s{sG}, 0")
    e("s_cbranch_scc1 K1_E_G0")
    e(f"s_cmp_eq_u32 s{sG}, 1")
    e("s_cbranch_scc1 K1_E_G1")
    tile_ffn(ACC, CA, ST, sT1, 6, vTMP)
    e("s_waitcnt lgkmcnt(0)")
    e("s_barrier")
    tile_ffn(ACC + 16, CA, ST + 4, sT2, 6, vTMP - 54)
    e("s_branch K1_E_B")
    lab("K1_E_G0")
    tile_qk(ACC, CA, ST, T + 3, 0)
    tile_qk(ACC + 16, CA, ST + 4, T + 4, 0)
    tile_qk(ACC + 32, CB, ST, T + 3, 1)
    tile_qk(ACC + 48, CB, ST + 4, T + 4, 1)
    e("s_waitcnt lgkmcnt(0)")
    e("s_barrier")
    e("s_branch K1_E_C")
    lab("K1_E_G1")
    tile_v(ACC, CA, ST, T + 5)
    e("s_nop 1")
    tile_v(ACC + 16, CA, ST + 4, T + 6)
    e("s_waitcnt lgkmcnt(0)")
    e("s_barrier")
    lab("K1_E_B")
    tile_ffn(ACC + 32, CB, ST, sT1, 7, vTMP)
    tile_ffn(ACC + 48, CB, ST + 4, sT2, 7, vTMP - 54)
    lab("K1_E_C")
    stamp(6)
    e(f"s_and_b32 s3, s{sROLE}, s{sHAS}")
    e("s_cbranch_scc0 K1_E_D")
    silu(ACC9, C9, ST, 4, 0, 4, vTMP + 32)
    e(f"s_add_u32 s3, s{sTH}, 32")
    e("s_lshl_b32 s3, s3, 6")
    e(f"s_add_u32 s3, s3, s{sT1}")
    e("s_lshl_b32 s3, s3, 10")
    e(f"s_lshl_b32 s4, s{sHSEL}, 3")
    e("s_add_u32 s3, s3, s4")
    e(f"buffer_store_dwordx2 {vr(vTMP+44,2)}, v{T+7}, {sr(S_HF,4)}, s3 offen{SC}")
    lab("K1_E_D")
    sU, sN = sRWA, sRWB
    e(f"s_lshl_b32 s3, s{sW}, 2")
    e(f"s_lshr_b32 s{sU}, 0x527640, s3")
    e(f"s_and_b32 s{sU}, s{sU}, 7")
    e(f"s_lshr_b32 s{sN}, 0x121112, s3")
    e(f"s_and_b32 s{sN}, s{sN}, 3")
    e("s_cbranch_scc0 K1_ATT_END")
    lab("K1_ATT")
    Q = 0; KK = 4; VV = 36; P = 100; O = 112; A2 = 120
    e(f"v_lshrrev_b32 v{T+8}, 4, v{T+7}")
    e(f"v_and_b32 v{T}, 31, v{T+8}")
    e(f"v_lshrrev_b32 v{T+1}, 5, v{T+8}")
    e(f"s_lshr_b32 s3, s{sU}, 1")
    e(f"s_and_b32 s4, s{sU}, 1")
    e(f"v_mul_u32_u24 v{T+2}, {SPITCH}, v{T}")
    e(f"s_mul_i32 s5, s3, {32*SPITCH}")
    e(f"s_add_u32 s5, s5, {STG+2*SPITCH}")
    e("s_lshl_b32 s6, s4, 5")
    e("s_add_u32 s6, s6, s5")
    e(f"v_lshl_add_u32 v{T+3}, v{T+1}, 4, v{T+2}")
    e(f"v_add_u32 v{T+3}, s6, v{T+3}")
    e("s_lshl_b32 s6, s4, 6")
    e("s_add_u32 s6, s6, s5")
    e(f"v_lshl_add_u32 v{T+4}, v{T+1}, 5, v{T+2}")
    e(f"v_add_u32 v{T+4}, s6, v{T+4}")
    e("s_lshl_b32 s5, s3, 5")
    e(f"s_add_u32 s5, s5, s{sM0}")
    e(f"v_add_u32 v{T+5}, s5, v{T}")
    e(f"v_lshlrev_b32 v{T+6}, 1, v{T+1}")
    e(f"v_sub_u32 v{T+5}, v{T+5}, v{T+6}")
    e(f"s_lshl_b32 s5, s{sCG}, 1")
    e("s_add_u32 s5, s5, s4")
    e("s_lshl_b32 s5, s5, 6")
    e(f"s_lshl_b32 s6, s{sRB}, 2")
    e("s_add_u32 s5, s5, s6")
    e("s_add_u32 s5, s5, s3")
    e(f"s_lshl_b32 s{sT1}, s5, 10")
    e(f"ds_read_b128 {vr(Q,4)}, v{T+3} offset:{14*SPITCH}")
    for w in range(8):
        e(f"ds_read_b128 {vr(KK+4*w,4)}, v{T+3} offset:{(14-2*w)*SPITCH+64}")
    for w in range(3):
        e(f"ds_read_b128 {vr(VV+8*w,4)}, v{T+4} offset:{(14-2*w)*SPITCH+128}")
        e(f"ds_read_b128 {vr(VV+8*w+4,4)}, v{T+4} offset:{(14-2*w)*SPITCH+144}")
    for w in range(8):
        e(f"s_waitcnt lgkmcnt({min(15, 13-w)})")
        e(f"v_dot2_f32_bf16 v{P+w}, v{Q}, v{KK+4*w}, 0")
        for i in range(1, 4):
            e(f"v_dot2_f32_bf16 v{P+w}, v{Q+i}, v{KK+4*w+i}, v{P+w}")
    for w in range(3, 8):
        e(f"ds_read_b128 {vr(VV+8*w,4)}, v{T+4} offset:{(14-2*w)*SPITCH+128}")
        e(f"ds_read_b128 {vr(VV+8*w+4,4)}, v{T+4} offset:{(14-2*w)*SPITCH+144}")
    e("s_nop 2")
    for i in range(4):
        e(f"v_permlane32_swap_b32 v{P+2*i}, v{P+2*i+1}")
    e(f"v_mov_b32 v{T+9}, {f2u(-1e9):#x}")
    for i in range(4):
        e(f"v_add_f32 v{P+2*i}, v{P+2*i}, v{P+2*i+1}")
    for i in range(4):
        e(f"v_cmp_le_i32 vcc, {4*i}, v{T+5}")
        e(f"v_mul_f32 v{P+2*i}, 0.25, v{P+2*i}") if False else e(f"v_mul_f32 v{P+2*i}, {f2u(0.25):#x}, v{P+2*i}")
        e("s_nop 0")
        e(f"v_cndmask_b32 v{P+2*i}, v{T+9}, v{P+2*i}, vcc")
    e(f"v_max3_f32 v{P+1}, v{P}, v{P+2}, v{P+4}")
    e(f"v_max_f32 v{P+1}, v{P+1}, v{P+6}")
    e(f"v_mov_b32 v{P+3}, v{P+1}")
    e("s_nop 1")
    e(f"v_permlane32_swap_b32 v{P+1}, v{P+3}")
    e("s_nop 0")
    e(f"v_max_f32 v{P+1}, v{P+1}, v{P+3}")
    for i in range(4):
        e(f"v_sub_f32 v{P+2*i}, v{P+2*i}, v{P+1}")
    for i in range(4):
        e(f"v_mul_f32 v{P+2*i}, {f2u(LOG2E):#x}, v{P+2*i}")
    for i in range(4):
        e(f"v_exp_f32 v{P+2*i}, v{P+2*i}")
    e("s_nop 0")
    e(f"v_add_f32 v{P+1}, v{P}, v{P+2}")
    e(f"v_add_f32 v{P+3}, v{P+4}, v{P+6}")
    e(f"v_add_f32 v{P+1}, v{P+1}, v{P+3}")
    e(f"v_mov_b32 v{P+3}, v{P+1}")
    e("s_nop 1")
    e(f"v_permlane32_swap_b32 v{P+1}, v{P+3}")
    e("s_nop 0")
    e(f"v_add_f32 v{P+8}, v{P+1}, v{P+3}")
    e(f"v_rcp_f32 v{P+8}, v{P+8}")
    e("s_nop 0")
    for i in range(4):
        e(f"v_mul_f32 v{P+2*i}, v{P+2*i}, v{P+8}")
    for i in range(4):
        e(f"v_mov_b32 v{P+2*i+1}, v{P+2*i}")
    e("s_nop 1")
    for i in range(4):
        e(f"v_permlane32_swap_b32 v{P+2*i}, v{P+2*i+1}")
    e("s_nop 0")
    for w in range(8):
        e(f"s_waitcnt lgkmcnt({14-2*w})")
        for d in range(0, 8, 2):
            if w == 0: pkmul(O + d, VV + d, P, bsel=1)
            else: pkfma(O + d, VV + 8*w + d, P + w, O + d, bsel=1)
    for i in range(4):
        e(f"v_cvt_pk_bf16_f32 v{A2+i}, v{O+2*i}, v{O+2*i+1}")
    e(f"buffer_store_dwordx4 {vr(A2,4)}, v{T+7}, {sr(S_HF,4)}, s{sT1} offen{SC}")
    e(f"s_add_u32 s{sU}, s{sU}, 1")
    e(f"s_sub_u32 s{sN}, s{sN}, 1")
    e(f"s_cmp_lg_u32 s{sN}, 0")
    e("s_cbranch_scc1 K1_ATT")
    lab("K1_ATT_END")
    if os.environ.get("TWICE"):
        e(f"s_cmp_eq_u32 s{sIT}, 77")
        e("s_cbranch_scc1 K1_TW")
        e(f"s_mov_b32 s{sIT}, 77")
        stamp(7)
        e(f"v_lshrrev_b32 v{vLane}, 4, v{T+7}")
        e(f"v_and_b32 v{T}, 31, v{vLane}")
        e(f"v_lshlrev_b32 v{T}, 2, v{T}")
        e(f"s_lshl_b32 s3, s{sMT0}, 7")
        e(f"s_lshl_b32 s4, s{sMT1}, 7")
        e(f"v_add_u32 v{T+2}, s3, v{T}")
        e(f"v_add_u32 v{T+3}, s4, v{T}")
        e("s_waitcnt vmcnt(0)")
        e("s_branch K1_EPI")
        lab("K1_TW")
    stamp(8)
    if STAMP: e("s_waitcnt vmcnt(0)")
    stamp(9)
    stamp_flush(50, 0x1000000, sW)
    if FUSE:
        e(f"v_lshrrev_b32 v{T}, 2, v{T+7}")
        e(f"v_and_b32 v{T}, 63, v{T}")
        e(f"s_lshl_b32 s5, s{sCG}, 7")
        e(f"s_cmp_lg_u32 s{sW}, 0")
        e("s_cbranch_scc1 K1_F2A")
        e(f"buffer_load_dword v{T+1}, v{T}, {sr(S_FL,4)}, s5 offen sc1")
        lab("K1_F2A")
        e("s_waitcnt vmcnt(0)")
        e("s_barrier")
        e(f"s_cmp_ge_u32 s{sW}, 4")
        e("s_cbranch_scc1 K1_END")
        e(f"s_cmp_lg_u32 s{sW}, 0")
        e("s_cbranch_scc1 K1_F2D")
        e("s_mov_b32 s3, 0")
        lab("K1_F2P")
        e(f"v_cmp_ne_u32 vcc, s100, v{T+1}")
        e("s_add_u32 s3, s3, 1")
        e("s_cmp_gt_u32 s3, 0x8000")
        e("s_cbranch_scc1 K1_F2S")
        e("s_cbranch_vccz K1_F2S")
        e("s_sleep 1")
        e(f"buffer_load_dword v{T+1}, v{T}, {sr(S_FL,4)}, s5 offen sc1")
        e("s_waitcnt vmcnt(0)")
        e("s_branch K1_F2P")
        lab("K1_F2S")
        e(f"s_lshl_b32 s3, s{sRB}, 7")
        e(f"s_lshl_b32 s4, s{sCG}, 2")
        e("s_add_u32 s3, s3, s4")
        e("s_add_u32 s3, s3, 4096")
        e(f"v_mov_b32 v{T+13}, s3")
        e(f"v_mov_b32 v{T+12}, s100")
        e("s_mov_b64 exec, 1")
        e(f"buffer_store_dword v{T+12}, v{T+13}, {sr(S_FL,4)}, 0 offen sc1")
        e("s_mov_b64 exec, -1")
        lab("K1_F2D")
        for i in range(4): e(f"s_mov_b32 s{44+i}, s{S_FL+i}")
        e(f"s_mov_b32 s30, s{sW}")
        e("s_mov_b64 s[38:39], s[96:97]")
        e("s_mov_b64 s[40:41], s[50:51]")
        kernel2()
    lab("K1_END")
    e("s_endpgm")

def kernel2():
    S_HF, S_W2F, S_X, S_O = 8, 12, 16, 20
    sW, sMB, sNB, sKH, sKW = 30, 31, 32, 33, 34
    ACC = 0
    vLane, vH0, vH1, vW0, vW1, vXO = 64, 65, 66, 67, 68, 69
    XR = 72
    T = 80
    RD = 96
    NK = 30; D = int(os.environ.get('K2D', '15')); ROT = int(os.environ.get('K2ROT', '0'))
    fr = (lambda b, n: vr(128 + b, n)) if FUSE else ar
    if FUSE:
        stamp(0)
        e(f"v_mbcnt_lo_u32_b32 v{vLane}, -1, 0")
        e(f"v_mbcnt_hi_u32_b32 v{vLane}, -1, v{vLane}")
        e("s_and_b32 s3, s2, 7")
    else:
        L.append(".globl k2_kernel\n.p2align 8\n.type k2_kernel,@function\nk2_kernel:")
        e("s_cmp_ge_u32 s2, 256")
        e("s_cbranch_scc1 K2_END")
        e("s_load_dwordx2 s[36:37], s[0:1], 0")
        e("s_load_dwordx2 s[38:39], s[0:1], 56")
        e("s_load_dwordx2 s[40:41], s[0:1], 72")
        stamp(0)
        e(f"v_and_b32 v{vLane}, 63, v0")
        e(f"v_lshrrev_b32 v{T}, 6, v0")
        e("s_and_b32 s3, s2, 7")
        e(f"v_readfirstlane_b32 s{sW}, v{T}")
    e("s_lshr_b32 s4, s2, 3")
    e("s_and_b32 s5, s3, 1")
    e("s_lshl_b32 s5, s5, 1")
    e("s_bfe_u32 s6, s3, 0x10001")
    e("s_add_u32 s5, s5, s6")
    e("s_lshl_b32 s5, s5, 3")
    e("s_and_b32 s6, s4, 7")
    e(f"s_add_u32 s{sMB}, s5, s6")
    e("s_lshr_b32 s5, s3, 2")
    e("s_lshl_b32 s5, s5, 2")
    e("s_lshr_b32 s6, s4, 3")
    e(f"s_add_u32 s{sNB}, s5, s6")
    e(f"v_lshlrev_b32 v{T}, 4, v{vLane}")
    e(f"s_lshr_b32 s3, s{sW}, 1")
    e(f"s_and_b32 s4, s{sW}, 1")
    e(f"s_lshl_b32 s5, s{sMB}, 1")
    e("s_add_u32 s5, s5, s3")
    e("s_lshl_b32 s6, s5, 10")
    e(f"v_add_u32 v{vH0}, s6, v{T}")
    e("s_xor_b32 s6, s6, 1024")
    e(f"v_add_u32 v{vH1}, s6, v{T}")
    e(f"s_lshl_b32 s7, s{sNB}, 1")
    e("s_add_u32 s7, s7, s4")
    e("s_lshl_b32 s6, s7, 10")
    e(f"v_add_u32 v{vW0}, s6, v{T}")
    e("s_xor_b32 s6, s6, 1024")
    e(f"v_add_u32 v{vW1}, s6, v{T}")
    e(f"v_and_b32 v{T+1}, 31, v{vLane}")
    e(f"v_lshrrev_b32 v{T+2}, 5, v{vLane}")
    e(f"v_lshlrev_b32 v{T+1}, 10, v{T+1}")
    e(f"v_lshl_add_u32 v{T+1}, v{T+2}, 3, v{T+1}")
    e("s_lshl_b32 s5, s5, 15")
    e("s_lshl_b32 s7, s7, 6")
    e("s_add_u32 s5, s5, s7")
    e(f"v_add_u32 v{vXO}, s5, v{T+1}")
    e("s_lshr_b32 s4, s2, 3")
    e("s_lshr_b32 s5, s4, 3")
    e("s_lshl_b32 s5, s5, 1")
    e("s_add_u32 s4, s4, s5")
    e("s_and_b32 s4, s4, 7")
    e(f"s_mul_i32 s4, s4, {4*ROT}")
    e(f"s_add_u32 s4, s4, s{sW}")
    e(f"s_lshl_b32 s{sKH}, s4, 16")
    e(f"s_lshl_b32 s{sKW}, s4, 14")
    LEAD = int(os.environ.get("K2L", "12")); P2 = int(os.environ.get("K2P", "0")); PG = int(os.environ.get("K2G", "4"))
    sGJ, sPH, sPW, vPF = 42, 43, 44, 70
    if P2:
        e("s_lshr_b32 s4, s2, 3")
        e(f"s_lshl_b32 s5, s4, 2")
        e(f"s_add_u32 s5, s5, s{sW}")
        e(f"s_and_b32 s6, s{sMB}, 24")
        e("s_lshl_b32 s6, s6, 11")
        e(f"s_lshl_b32 s{sPH}, s5, 16")
        e(f"s_add_u32 s{sPH}, s{sPH}, s6")
        e(f"s_and_b32 s6, s{sNB}, 4")
        e("s_lshl_b32 s6, s6, 11")
        e(f"s_lshl_b32 s{sPW}, s5, 14")
        e(f"s_add_u32 s{sPW}, s{sPW}, s6")
        e(f"s_max_u32 s5, s4, {LEAD}")
        e(f"s_sub_u32 s5, s5, {LEAD}")
        e(f"s_lshr_b32 s{sGJ}, s5, {PG.bit_length()-1}")
        e(f"s_cmp_lt_u32 s4, {D}")
        e(f"s_cselect_b32 s{sGJ}, 99, s{sGJ}")
        e(f"v_lshlrev_b32 v{vPF}, 7, v{vLane}")
    def prefetch(c):
        if not P2: return
        e(f"s_cmp_eq_u32 s{sGJ}, {c}")
        e(f"s_cbranch_scc0 K2_PF{c}")
        e(f"buffer_load_dword v{vPF+1}, v{vPF}, {sr(S_HF,4)}, s{sPH} offen")
        e(f"s_add_u32 s{sPH}, s{sPH}, 8192")
        e(f"buffer_load_dword v{vPF+1}, v{vPF}, {sr(S_W2F,4)}, s{sPW} offen")
        e(f"buffer_load_dword v{vPF+1}, v{vPF}, {sr(S_HF,4)}, s{sPH} offen")
        lab(f"K2_PF{c}")
    e("s_waitcnt lgkmcnt(0)")
    e(f"s_mov_b32 s{S_HF}, s40")
    e(f"s_and_b32 s{S_HF+1}, s41, 0xffff")
    e(f"s_mov_b32 s{S_HF+2}, {HF_BYTES}")
    e(f"s_mov_b32 s{S_HF+3}, 0x00020000")
    e(f"s_add_u32 s{S_W2F}, s40, {W2F_OFF}")
    e(f"s_addc_u32 s{S_W2F+1}, s41, 0")
    e(f"s_and_b32 s{S_W2F+1}, s{S_W2F+1}, 0xffff")
    e(f"s_mov_b32 s{S_W2F+2}, {W2F_BYTES}")
    e(f"s_mov_b32 s{S_W2F+3}, 0x00020000")
    srd(S_X, 36, 2048 * 1024)
    srd(S_O, 38, 2048 * 1024)
    def loads(i):
        b = 16 * (i % D)
        e(f"buffer_load_dwordx4 {fr(b,4)}, v{vW0}, {sr(S_W2F,4)}, s{sKW} offen{SC}")
        e(f"buffer_load_dwordx4 {fr(b+4,4)}, v{vH0}, {sr(S_HF,4)}, s{sKH} offen{SC}")
        e(f"buffer_load_dwordx4 {fr(b+8,4)}, v{vH1}, {sr(S_HF,4)}, s{sKH} offen{SC}")
        e(f"buffer_load_dwordx4 {fr(b+12,4)}, v{vW1}, {sr(S_W2F,4)}, s{sKW} offen{SC}")
        e(f"s_add_u32 s{sKW}, s{sKW}, {4*16384}")
        if ROT:
            e(f"s_sub_u32 s3, s{sKW}, {120*16384}")
            e(f"s_cmp_ge_u32 s{sKW}, {120*16384}")
            e(f"s_cselect_b32 s{sKW}, s3, s{sKW}")
        e(f"s_lshl_b32 s{sKH}, s{sKW}, 2")
    for q in range(4):
        e(f"buffer_load_dwordx2 {vr(XR+2*q,2)}, v{vXO}, {sr(S_X,4)}, 0 offen offset:{16*q}")
    if FUSE:
        e(f"s_cmp_lg_u32 s{sW}, 0")
        e("s_cbranch_scc1 K2_GO")
        e(f"v_lshlrev_b32 v{T+1}, 2, v{vLane}")
        e(f"v_and_b32 v{T+1}, 63, v{T+1}")
        e(f"s_lshr_b32 s4, s{sMB}, 1")
        e("s_lshl_b32 s4, s4, 7")
        e("s_add_u32 s4, s4, 4096")
        e("s_mov_b32 s3, 0")
        lab("K2_POLL")
        e(f"buffer_load_dword v{T+3}, v{T+1}, s[44:47], s4 offen sc1")
        e("s_add_u32 s3, s3, 1")
        e("s_waitcnt vmcnt(0)")
        e(f"v_cmp_ne_u32 vcc, s100, v{T+3}")
        e("s_cmp_gt_u32 s3, 0x8000")
        e("s_cbranch_scc1 K2_GO")
        e("s_cbranch_vccz K2_GO")
        e("s_sleep 1")
        e("s_branch K2_POLL")
        lab("K2_GO")
        e("s_barrier")
    PPOS = int(os.environ.get("K2Q", "2"))
    for i in range(D):
        loads(i)
        if i == PPOS - 1: prefetch(0)
    issued = D
    stamp(1)
    for i in range(NK):
        b = 16 * (i % D)
        out = 4 * (issued - i - 1)
        if i == NK - 6:
            pass
        e(f"s_waitcnt vmcnt({min(63, out + 2)})")
        c = (lambda r: "0") if i == 0 else (lambda r: vr(r, 16))
        e(f"v_mfma_f32_32x32x16_bf16 {vr(ACC,16)}, {fr(b,4)}, {fr(b+4,4)}, {c(ACC)}")
        e(f"s_waitcnt vmcnt({min(63, out + 1)})")
        e(f"v_mfma_f32_32x32x16_bf16 {vr(ACC+32,16)}, {fr(b,4)}, {fr(b+8,4)}, {c(ACC+32)}")
        e(f"s_waitcnt vmcnt({out})")
        e(f"v_mfma_f32_32x32x16_bf16 {vr(ACC+16,16)}, {fr(b+12,4)}, {fr(b+4,4)}, {c(ACC+16)}")
        e(f"v_mfma_f32_32x32x16_bf16 {vr(ACC+48,16)}, {fr(b+12,4)}, {fr(b+8,4)}, {c(ACC+48)}")
        if i in (0, 7, 14, 22): stamp(2 + (0, 7, 14, 22).index(i))
        if issued < NK:
            loads(issued); issued += 1
        if i % PG == PG - 1 and (i + 1) // PG <= (31 - LEAD) // PG: prefetch((i + 1) // PG)
    stamp(6)
    for a in range(1, 4):
        e(f"s_xor_b32 s3, s{sW}, {a}")
        e("s_mul_i32 s3, s3, 12288")
        e(f"s_add_u32 s3, s3, {(a-1)*4096}")
        e(f"v_add_u32 v{T+a}, s3, v{T}")
    e(f"s_mul_i32 s3, s{sW}, 12288")
    e(f"v_add_u32 v{T+4}, s3, v{T}")
    e("s_nop 7")
    for a in (2, 1, 3):
        for q in range(4):
            e(f"ds_write_b128 v{T+a}, {vr(ACC+16*a+4*q,4)} offset:{1024*q}")
    e("s_waitcnt lgkmcnt(0)")
    e("s_barrier")
    for s in range(3):
        for q in range(4):
            e(f"ds_read_b128 {vr(RD+16*s+4*q,4)}, v{T+4} offset:{4096*s+1024*q}")
    e("s_waitcnt vmcnt(0)")
    for q in range(4):
        for i in range(2):
            e(f"v_lshlrev_b32 v{T+8}, 16, v{XR+2*q+i}")
            e(f"v_and_b32 v{T+9}, 0xffff0000, v{XR+2*q+i}")
            e(f"v_add_f32 v{ACC+4*q+2*i}, v{ACC+4*q+2*i}, v{T+8}")
            e(f"v_add_f32 v{ACC+4*q+2*i+1}, v{ACC+4*q+2*i+1}, v{T+9}")
    for s in range(3):
        e(f"s_waitcnt lgkmcnt({8-4*s})")
        for r in range(16):
            e(f"v_add_f32 v{ACC+r}, v{ACC+r}, v{RD+16*s+r}")
    for q in range(4):
        e(f"v_cvt_pk_bf16_f32 v{XR+2*q}, v{ACC+4*q}, v{ACC+4*q+1}")
        e(f"v_cvt_pk_bf16_f32 v{XR+2*q+1}, v{ACC+4*q+2}, v{ACC+4*q+3}")
    for q in range(4):
        e(f"buffer_store_dwordx2 {vr(XR+2*q,2)}, v{vXO}, {sr(S_O,4)}, 0 offen offset:{16*q}")
    stamp(7)
    if STAMP: e("s_waitcnt vmcnt(0)")
    stamp(8)
    stamp_flush(40, 0x1100000, sW)
    if not FUSE:
        lab("K2_END")
        e("s_endpgm")

def desc(name, nv, acc):
    L.append(f""".amdhsa_kernel {name}
  .amdhsa_next_free_vgpr {nv}
  .amdhsa_next_free_sgpr 102
  .amdhsa_accum_offset {acc}
  .amdhsa_group_segment_fixed_size 0
  .amdhsa_kernarg_size 80
  .amdhsa_user_sgpr_count 2
  .amdhsa_user_sgpr_kernarg_segment_ptr 1
  .amdhsa_system_sgpr_workgroup_id_x 1
.end_amdhsa_kernel""")

L.append(HEADER.rstrip())
L.append("; @launch kernel=k1_kernel grid=(256,1,1) block=(512,1,1) lds=163840")
if not FUSE: L.append("; @launch kernel=k2_kernel grid=(256,1,1) block=(256,1,1) lds=49152")
L.append('.amdgcn_target "amdgcn-amd-amdhsa--gfx950"\n.text')
kernel1()
if not FUSE: kernel2()
L.append('.section .rodata,"a"\n.p2align 6')
desc("k1_kernel", 256, 256)
if not FUSE:
    L.append(".p2align 6")
    desc("k2_kernel", 496, 256)
open(OUT, "w").write("\n".join(x for x in L if x is not None) + "\n")
print("wrote", OUT, len(L), "lines")
```

```python
import sys
OUT = sys.argv[1] if len(sys.argv) > 1 else "parallel_sum__sliding_local_dilated__glu_gated_swiglu__prompt.s"
L = []
import os
EXP = os.environ.get("EXP", "")
INLOOP = [False]
FUSE = int(os.environ.get("FUSE", "1"))
SC = " sc1" if FUSE else ""
def e(s):
    if INLOOP[0]:
        if "nodma" in EXP and ("offen lds" in s): return
        if "nomfma" in EXP and s.startswith("v_mfma"): return
        if "nolds" in EXP and s.startswith("ds_read"): return
        if "novalu" in EXP and (s.startswith("v_lshlrev_b32") or s.startswith("v_and_b32") or s.startswith("v_add_f32") or s.startswith("v_fmac")): return
        if "nox" in EXP and ("offen lds" in s) and "s[8:11]" in s: return
        if "noqkv" in EXP and ("offen lds" in s) and "s[20:23]" in s: return
        if "now13" in EXP and ("offen lds" in s) and ("s[12:15]" in s or "s[16:19]" in s): return
    L.append("    " + s)
def lab(s): L.append(s + ":")
def capture(fn):
    n = len(L); fn(); r = [x.strip() for x in L[n:]]; del L[n:]
    return r
def vr(b, n): return f"v[{b}:{b+n-1}]"
def ar(b, n): return f"a[{b}:{b+n-1}]"
def sr(b, n): return f"s[{b}:{b+n-1}]"

WSLOT = 18496; NW = 3
W1OFF = 0; QKVOFF = 6144; W3OFF = 12320
XBASE = 92544; XSLOT = 18432; NX = 2
MISC = XBASE + 3 * XSLOT
ONES = MISC
TS = MISC + 4096
CS = MISC + 12288
CS9 = CS + 1024
RS = CS9 + 512
SQ = MISC + 1024
HSC = RS + 512
HSC = TS
assert RS + 512 <= 163840
STG = 0; SPITCH = 272
TAGL = RS + 512; FLG = 0xC00000
HF_BYTES = 118 * 64 * 1024
W2F_OFF = 0x800000; W2F_BYTES = 118 * 16 * 1024
LOG2E = 1.4426950408889634
import struct
def f2u(x): return struct.unpack("<I", struct.pack("<f", x))[0]

HEADER = open("parallel_sum__sliding_local_dilated__glu_gated_swiglu__prompt.s.ref").read().split("; Override launch")[0]

def srd(d, base, nbytes):
    e(f"s_mov_b32 s{d}, s{base}")
    e(f"s_and_b32 s{d+1}, s{base+1}, 0xffff")
    e(f"s_mov_b32 s{d+2}, {nbytes}")
    e(f"s_mov_b32 s{d+3}, 0x00020000")

import os
STAMP = int(os.environ.get("STAMP", "0"))
def stamp(idx, sbase=90):
    if not STAMP: return
    e(f"s_memrealtime s[{sbase}:{sbase+1}]")
    e(f"s_memtime s[{sbase+2}:{sbase+3}]")
    e("s_waitcnt lgkmcnt(0)")
    e(f"v_writelane_b32 v{STV}, s{sbase}, {2*idx}")
    e(f"v_writelane_b32 v{STV}, s{sbase+2}, {2*idx+1}")
def stamp_flush(wsreg, off, swave, lanereg_x16=None):
    if not STAMP: return
    e(f"s_add_u32 s92, s{wsreg}, {off}")
    e(f"s_addc_u32 s93, s{wsreg+1}, 0")
    e("s_and_b32 s93, s93, 0xffff")
    e("s_mov_b32 s94, 0x100000")
    e("s_mov_b32 s95, 0x00020000")
    e(f"s_lshl_b32 s90, s2, 3")
    e(f"s_add_u32 s90, s90, s{swave}")
    e("s_lshl_b32 s90, s90, 8")
    e("v_mbcnt_lo_u32_b32 v1, -1, 0")
    e("v_mbcnt_hi_u32_b32 v1, -1, v1")
    e("v_lshlrev_b32 v1, 2, v1")
    e(f"buffer_store_dword v{STV}, v1, s[92:95], s90 offen")
STV = 255
def weave(mf, va):
    out = []
    n = len(mf);
    per = [len(va) * (i + 1) // n - len(va) * i // n for i in range(n)]
    k = 0
    for i, m in enumerate(mf):
        out.append(m)
        out.extend(va[k:k + per[i]]); k += per[i]
    return out

def kernel1():
    ROT1 = int(os.environ.get("K1ROT", "1"))
    S_X, S_W1, S_W3, S_QKV, S_WT, S_HF, S_W2F = 8, 12, 16, 20, 24, 28, 32
    sW, sG, sMH, sRB, sCG, sM0, sTF, sTH, sFW, sOF, sOH, sHSEL, sHAS = 52, 53, 54, 55, 56, 57, 58, 59, 60, 61, 62, 63, 64
    sRWA, sRWB, sRX, sKC, sKD, sKO1, sKOQ, sKOX, sIT, sT0, sT1, sT2, sT3 = 65, 66, 67, 68, 69, 70, 71, 72, 73, 74, 75, 76, 77
    sDMA, sMT0, sMT1, sID = 78, 79, 80, 81
    sDWs, sDXs = 83, 84
    sMK = 86
    sWPW, sWPX, sWPD = 88, 89, 85
    ACC = 0
    ACC9 = 64
    HST = 68
    CSA, CS9A, SQA = 80, 84, 88
    FX = [92, 100]
    FW = [108, 120]
    FHX, FHX1, FHW, FSQ, SEL = 132, 136, 140, 144, 148
    vLane, vTid = 152, 153
    vDW13, vDQKV, vDX = 154, 155, 156
    vXa0, vXa1 = 159, 160
    vWA, vWB, vB9, vM9 = 161, 162, 163, 164
    vHXa, vHWa, vMH1, vCH1, vSQa = 165, 166, 167, 168, 169
    aX = 170
    aWA, aWB, a9 = 178, 179, 180
    aHX, aHX1, aHW, aSQ = 181, 182, 183, 184
    T = 186
    WT = 200
    vTA1, vTA2 = 204, 205
    vTMP = 206
    PF = int(os.environ.get("PF", "0")); LA = int(os.environ.get("LA", "2")); PFO = int(os.environ.get("PFO", "1")); PFB = int(os.environ.get("PFB", "2")); PV = 210

    L.append(".globl k1_kernel\n.p2align 8\n.type k1_kernel,@function\nk1_kernel:")
    e("s_cmp_ge_u32 s2, 256")
    e("s_cbranch_scc1 K1_END")
    e("s_load_dwordx4 s[36:39], s[0:1], 0")
    e("s_load_dwordx2 s[40:41], s[0:1], 16")
    e("s_load_dwordx4 s[44:47], s[0:1], 32")
    e("s_load_dwordx2 s[48:49], s[0:1], 48")
    e("s_load_dwordx2 s[50:51], s[0:1], 72")
    if FUSE: e("s_load_dwordx4 s[96:99], s[0:1], 56")
    stamp(0)
    e(f"v_mov_b32 v{vTid}, v0")
    if FUSE: e("v_mov_b32 v251, 0")
    e(f"v_and_b32 v{vLane}, 63, v0")
    e(f"v_lshrrev_b32 v{T}, 6, v0")
    e("s_and_b32 s3, s2, 7")
    e(f"v_readfirstlane_b32 s{sW}, v{T}")
    e("s_lshr_b32 s4, s2, 3")
    e("s_and_b32 s5, s3, 1")
    e("s_lshl_b32 s5, s5, 3")
    e("s_and_b32 s6, s4, 7")
    e(f"s_add_u32 s{sRB}, s5, s6")
    e("s_lshr_b32 s5, s3, 1")
    e("s_lshl_b32 s5, s5, 2")
    e("s_lshr_b32 s6, s4, 3")
    e(f"s_add_u32 s{sCG}, s5, s6")
    RC, RR, RXC = [int(t) for t in os.environ.get("K1R", "4,4,1").split(",")]
    e(f"s_mul_i32 s6, s6, {RC}")
    e(f"s_mul_i32 s5, s4, {RR}")
    e("s_add_u32 s6, s6, s5")
    RA, RB = [int(t) for t in os.environ.get("K1X", "2,2").split(",")]
    e("s_and_b32 s5, s3, 1")
    e(f"s_mul_i32 s5, s5, {RA}")
    e("s_add_u32 s6, s6, s5")
    e("s_lshr_b32 s5, s3, 1")
    e(f"s_mul_i32 s5, s5, {RB}")
    e("s_add_u32 s6, s6, s5")
    e(f"s_and_b32 s{sKD}, s6, 7")
    e(f"s_lshl_b32 s{sKC}, s{sKD}, 1")
    e(f"s_lshl_b32 s{sM0}, s{sRB}, 7")
    e(f"s_and_b32 s{sG}, s{sW}, 3")
    e(f"s_lshr_b32 s{sMH}, s{sW}, 2")
    e(f"s_lshr_b32 s3, s{sCG}, 1")
    e("s_mul_i32 s3, s3, 11")
    e(f"s_and_b32 s4, s{sCG}, 1")
    e(f"s_mul_i32 s5, s{sCG}, 5")
    e("s_add_u32 s5, s5, 6")
    e(f"s_cmp_lt_u32 s{sCG}, 12")
    e("s_cselect_b32 s3, s3, s5")
    e(f"s_cselect_b32 s{sHSEL}, s4, 0")
    e(f"s_cselect_b32 s{sHAS}, 1, 0")
    e(f"s_add_u32 s{sTH}, s3, 5")
    e(f"s_mul_i32 s4, s{sHSEL}, 6")
    e(f"s_add_u32 s{sTF}, s3, s4")
    e(f"s_lshl_b32 s5, s3, 5")
    e(f"s_mul_i32 s4, s{sHSEL}, 176")
    e(f"s_add_u32 s{sFW}, s5, s4")
    e(f"s_lshl_b32 s{sOF}, s{sHSEL}, 4")
    e(f"s_mul_i32 s4, s{sHSEL}, 160")
    e(f"s_sub_u32 s{sOH}, 160, s4")
    e(f"v_mul_u32_u24 v{T}, 43691, v{vTid}")
    e(f"v_lshrrev_b32 v{T}, 19, v{T}")
    e(f"v_mul_u32_u24 v{T+1}, 12, v{T}")
    e(f"v_sub_u32 v{T+1}, v{vTid}, v{T+1}")
    e(f"v_mul_u32_u24 v{vDW13}, 2752, v{T}")
    e(f"v_lshl_add_u32 v{vDW13}, v{T+1}, 4, v{vDW13}")
    e(f"v_add_u32 v{vDW13}, s{sFW}, v{vDW13}")
    e(f"v_mul_u32_u24 v{vDQKV}, 3072, v{T}")
    e(f"v_lshrrev_b32 v{T+2}, 2, v{T+1}")
    e(f"v_lshl_add_u32 v{vDQKV}, v{T+2}, 10, v{vDQKV}")
    e(f"v_and_b32 v{T+2}, 3, v{T+1}")
    e(f"v_lshl_add_u32 v{vDQKV}, v{T+2}, 4, v{vDQKV}")
    e(f"s_lshl_b32 s3, s{sCG}, 6")
    e(f"v_add_u32 v{vDQKV}, s3, v{vDQKV}")
    e(f"s_mul_i32 s3, s{sW}, 24")
    e(f"v_lshrrev_b32 v{T}, 3, v{vLane}")
    e(f"v_add_u32 v{T}, s3, v{T}")
    e(f"v_and_b32 v{T+1}, 7, v{vLane}")
    e(f"s_sub_u32 s4, s{sM0}, 16")
    e(f"v_bfe_u32 v{T+3}, v{T}, 1, 3")
    e(f"v_xor_b32 v{T+3}, v{T+3}, v{T+1}")
    e(f"v_add_u32 v{T+2}, s4, v{T}")
    e(f"v_lshlrev_b32 v{T+4}, 10, v{T+2}")
    e(f"v_lshl_add_u32 v{vDX}, v{T+3}, 4, v{T+4}")
    e(f"v_xor_b32 v{vDX+1}, 64, v{vDX}")
    e(f"v_add_u32 v{vDX+1}, 0x2000, v{vDX+1}")
    e(f"v_add_u32 v{vDX+2}, 0x4000, v{vDX}")
    e(f"v_min_u32 v{vDX}, 0x80000000, v{vDX}")
    e(f"v_min_u32 v{vDX+1}, 0x80000000, v{vDX+1}")
    e(f"s_lshl_b32 s{sID}, s2, 3")
    e(f"s_add_u32 s{sID}, s{sID}, s{sW}")
    e(f"s_lshr_b32 s3, s{sID}, 4")
    e(f"s_and_b32 s4, s{sID}, 15")
    e("s_sub_u32 s5, s3, 32")
    e("s_cmp_lt_u32 s3, 32")
    e("s_cselect_b32 s5, s3, s5")
    e(f"s_cselect_b32 s{sT0}, 1, 0")
    e("s_lshl_b32 s5, s5, 14")
    e("s_lshl_b32 s4, s4, 6")
    e("s_add_u32 s5, s5, s4")
    e(f"v_lshrrev_b32 v{T}, 2, v{vLane}")
    e(f"v_lshlrev_b32 v{T}, 10, v{T}")
    e(f"v_and_b32 v{T+1}, 3, v{vLane}")
    e(f"v_lshl_add_u32 v{T}, v{T+1}, 4, v{T}")
    e(f"v_add_u32 v{T+6}, s5, v{T}")
    e(f"s_lshl_b32 s{sWPW}, s{sW}, 10")
    e(f"s_mul_i32 s{sWPX}, s{sW}, 3072")
    e(f"s_add_u32 s{sWPX}, s{sWPX}, {XBASE}")
    e(f"s_mov_b32 s{sDWs}, s{sWPW}")
    e(f"s_mov_b32 s{sWPD}, s{sWPW}")
    e(f"s_mov_b32 s{sDXs}, s{sWPX}")
    e("s_waitcnt lgkmcnt(0)")
    srd(S_X, 36, 2048 * 1024)
    srd(S_QKV, 38, 512 * 3072)
    srd(S_W1, 44, 512 * 2752)
    srd(S_W3, 46, 512 * 2752)
    def dmaW():
        e(f"s_mul_i32 s{sKO1}, s{sKC}, {32*2752}")
        e(f"s_mul_i32 s{sKOQ}, s{sKC}, {32*3072}")
        e(f"s_add_u32 m0, s{sDWs}, {W1OFF}")
        e(f"s_add_u32 s{sKC}, s{sKC}, 1")
        e(f"buffer_load_dwordx4 v{vDW13}, {sr(S_W1,4)}, s{sKO1} offen lds")
        e(f"s_add_u32 m0, s{sDWs}, {QKVOFF}")
        e(f"s_and_b32 s{sKC}, s{sKC}, 15")
        e(f"buffer_load_dwordx4 v{vDQKV}, {sr(S_QKV,4)}, s{sKOQ} offen lds")
        e(f"s_add_u32 m0, s{sDWs}, {W3OFF}")
        e(f"s_add_u32 s{sDWs}, s{sDWs}, {WSLOT}")
        e(f"buffer_load_dwordx4 v{vDW13}, {sr(S_W3,4)}, s{sKO1} offen lds")
        e(f"s_cmp_ge_u32 s{sDWs}, {NW*WSLOT}")
        e(f"s_cselect_b32 s{sDWs}, s{sWPD}, s{sDWs}")
    def dmaX():
        e(f"s_lshl_b32 s{sKOX}, s{sKD}, 7")
        e(f"s_add_u32 m0, s{sDXs}, 0")
        e(f"s_add_u32 s{sKD}, s{sKD}, 1")
        e(f"buffer_load_dwordx4 v{vDX}, {sr(S_X,4)}, s{sKOX} offen lds")
        e(f"s_add_u32 m0, s{sDXs}, 1024")
        e(f"s_and_b32 s{sKD}, s{sKD}, 7")
        e(f"buffer_load_dwordx4 v{vDX+1}, {sr(S_X,4)}, s{sKOX} offen lds")
        e(f"s_add_u32 m0, s{sDXs}, 2048")
        e(f"s_add_u32 s{sDXs}, s{sDXs}, {XSLOT}")
        e(f"buffer_load_dwordx4 v{vDX+2}, {sr(S_X,4)}, s{sKOX} offen lds")
        e(f"s_cmp_ge_u32 s{sDXs}, {XBASE+NX*XSLOT}")
        e(f"s_cselect_b32 s{sDXs}, s{sWPX}, s{sDXs}")
    e(f"s_cmp_eq_u32 s{sT0}, 1")
    e(f"s_cselect_b32 s{S_WT}, s40, s48")
    e(f"s_cselect_b32 s{S_WT+1}, s41, s49")
    e(f"s_mov_b32 s3, {1376*1024}")
    e(f"s_cselect_b32 s{S_WT+2}, {512*1024}, s3")
    e(f"s_and_b32 s{S_WT+1}, s{S_WT+1}, 0xffff")
    e(f"s_mov_b32 s{S_WT+3}, 0x00020000")
    e(f"buffer_load_dwordx4 {vr(WT,4)}, v{T+6}, {sr(S_WT,4)}, 0 offen")
    e(f"s_cmp_lt_u32 s{sW}, 6")
    e(f"s_cselect_b32 s{sDMA}, 1, 0")
    e("s_cbranch_scc0 K1_PRO_PF")
    dmaW(); dmaX()
    if PF:
        e("s_branch K1_PRO_NODMA0")
    if FUSE and not PF: e("s_branch K1_PRO_NODMA0")
    lab("K1_PRO_PF")
    if FUSE:
        e(f"s_cmp_eq_u32 s{sW}, 7")
        e("s_cbranch_scc0 K1_PRO_NODMA0")
        e("s_memrealtime s[100:101]")
        srd(92, 98, 256)
        e("v_mov_b32 v251, 0")
        e("s_waitcnt lgkmcnt(0)")
        e("s_or_b32 s100, s100, 1")
        e("v_mov_b32 v250, s100")
        e("s_mov_b64 exec, 1")
        e("buffer_atomic_cmpswap v[250:251], v251, s[92:95], 0 offen sc0 sc1")
        e("s_mov_b64 exec, -1")
    if PF >= 2:
        e(f"v_lshlrev_b32 v{PV}, {PF}, v{vLane}")
        e(f"s_cmp_eq_u32 s{sW}, 6")
        e("s_cbranch_scc1 K1_PRO_PFW")
        e(f"buffer_load_dword v{PV+12}, v{PV}, {sr(S_QKV,4)}, 0 offen")
        e(f"buffer_load_dword v{PV+12}, v{PV}, {sr(S_W3,4)}, 0 offen")
        e("s_branch K1_PRO_NODMA0")
        lab("K1_PRO_PFW")
        e(f"buffer_load_dword v{PV+12}, v{PV}, {sr(S_W1,4)}, 0 offen")
        e(f"buffer_load_dword v{PV+12}, v{PV}, {sr(S_X,4)}, 0 offen")
    if PF == 1:
        e("s_and_b32 s3, s2, 7")
        e("s_lshr_b32 s4, s2, 3")
        e(f"s_mul_i32 s5, s3, {RXC}")
        e(f"s_add_u32 s5, s5, {PFO}")
        e(f"s_cmp_eq_u32 s{sW}, 6")
        e("s_cbranch_scc1 K1_PRO_PFW")
        e(f"v_lshrrev_b32 v{PV+8}, 5, v{vLane}")
        e(f"v_add_u32 v{PV+8}, s5, v{PV+8}")
        e(f"v_and_b32 v{PV+9}, 31, v{vLane}")
        e("s_and_b32 s6, s3, 1")
        e("s_lshl_b32 s6, s6, 5")
        e("s_add_u32 s6, s6, s4")
        e("s_lshl_b32 s6, s6, 5")
        e(f"v_add_u32 v{PV+9}, s6, v{PV+9}")
        e(f"v_lshlrev_b32 v{PV+9}, 10, v{PV+9}")
        for i in range(4):
            e(f"v_add_u32 v{PV+10}, {2*i}, v{PV+8}")
            e(f"v_and_b32 v{PV+10}, 7, v{PV+10}")
            e(f"v_lshl_add_u32 v{PV+i}, v{PV+10}, 7, v{PV+9}")
            if i < 2: e(f"buffer_load_dword v{PV+12}, v{PV+i}, {sr(S_X,4)}, 0 offen")
        e("s_branch K1_PRO_NODMA0")
        lab("K1_PRO_PFW")
        e(f"v_lshrrev_b32 v{PV+8}, 4, v{vLane}")
        e(f"v_add_u32 v{PV+8}, s5, v{PV+8}")
        e(f"v_bfe_u32 v{PV+9}, v{vLane}, 3, 1")
        e("s_lshl_b32 s4, s4, 1")
        e(f"v_add_u32 v{PV+9}, s4, v{PV+9}")
        e(f"v_and_b32 v{PV+10}, 7, v{vLane}")
        e(f"v_lshlrev_b32 v{PV+11}, 7, v{PV+10}")
        e(f"v_min_u32 v{PV+11}, 700, v{PV+11}")
        e("s_lshr_b32 s3, s3, 1")
        e("s_mul_i32 s6, s3, 704")
        e(f"v_add_u32 v{PV+11}, s6, v{PV+11}")
        e(f"v_lshrrev_b32 v{PV+13}, 1, v{PV+10}")
        e(f"v_lshlrev_b32 v{PV+13}, 10, v{PV+13}")
        e(f"v_and_b32 v{PV+10}, 1, v{PV+10}")
        e(f"v_lshl_add_u32 v{PV+13}, v{PV+10}, 7, v{PV+13}")
        e("s_lshl_b32 s6, s3, 8")
        e(f"v_add_u32 v{PV+13}, s6, v{PV+13}")
        e("s_movk_i32 s5, 2752")
        e("s_movk_i32 s6, 3072")
        for i in range(2):
            e(f"v_add_u32 v{PV+10}, {4*i}, v{PV+8}")
            e(f"v_and_b32 v{PV+10}, 7, v{PV+10}")
            e(f"v_lshl_add_u32 v{PV+10}, v{PV+10}, 6, v{PV+9}")
            e(f"v_mad_u32_u24 v{PV+2*i}, v{PV+10}, s5, v{PV+11}")
            e(f"v_mad_u32_u24 v{PV+2*i+1}, v{PV+10}, s6, v{PV+13}")
            if i == 0:
                e(f"buffer_load_dword v{PV+12}, v{PV}, {sr(S_W1,4)}, 0 offen")
                e(f"buffer_load_dword v{PV+12}, v{PV+1}, {sr(S_QKV,4)}, 0 offen")
                e(f"buffer_load_dword v{PV+12}, v{PV}, {sr(S_W3,4)}, 0 offen")
    lab("K1_PRO_NODMA0")
    e("s_barrier")
    stamp(2)
    e(f"s_cmp_eq_u32 s{sDMA}, 1")
    e("s_cbranch_scc0 K1_PRO_NODMA1")
    dmaW()
    e("s_branch K1_PRO_DMA1")
    lab("K1_PRO_NODMA1")
    for d in (S_X, S_W1, S_W3, S_QKV): e(f"s_mov_b32 s{d+2}, 0")
    e(f"s_mov_b32 s{sDWs}, {NW*WSLOT}")
    e(f"s_mov_b32 s{sDXs}, {XBASE+NX*XSLOT}")
    e(f"s_mov_b32 s{sWPD}, {NW*WSLOT}")
    e(f"s_mov_b32 s{sWPX}, {XBASE+NX*XSLOT}")
    lab("K1_PRO_DMA1")
    e(f"s_mov_b32 s{S_HF}, s50")
    e(f"s_and_b32 s{S_HF+1}, s51, 0xffff")
    e(f"s_mov_b32 s{S_HF+2}, {HF_BYTES}")
    e(f"s_mov_b32 s{S_HF+3}, 0x00020000")
    e(f"s_add_u32 s{S_W2F}, s50, {W2F_OFF}")
    e(f"s_addc_u32 s{S_W2F+1}, s51, 0")
    e(f"s_and_b32 s{S_W2F+1}, s{S_W2F+1}, 0xffff")
    e(f"s_mov_b32 s{S_W2F+2}, {W2F_BYTES}")
    e(f"s_mov_b32 s{S_W2F+3}, 0x00020000")
    S_FL = 40
    if FUSE:
        e(f"s_add_u32 s{S_FL}, s50, {FLG}")
        e(f"s_addc_u32 s{S_FL+1}, s51, 0")
        e(f"s_and_b32 s{S_FL+1}, s{S_FL+1}, 0xffff")
        e(f"s_mov_b32 s{S_FL+2}, 8192")
        e(f"s_mov_b32 s{S_FL+3}, 0x00020000")
        e(f"v_mov_b32 v245, 0")
    for i in range(4): e(f"v_mov_b32 v{T+8+i}, 0x3f803f80")
    e(f"v_mov_b32 v{T+4}, {ONES}")
    e(f"ds_write_b128 v{T+4}, {vr(T+8,4)}")
    for o in (768, 3072, 3840):
        e(f"ds_write_b64 v{T+4}, {vr(T+8,2)} offset:{o}")
    e(f"v_and_b32 v{T}, 31, v{vLane}")
    e(f"v_lshrrev_b32 v{T+1}, 5, v{vLane}")
    e(f"v_bfe_u32 v{T+2}, v{vLane}, 1, 3")
    e(f"v_xor_b32 v{T+2}, v{T+2}, v{T+1}")
    e(f"v_lshlrev_b32 v{T+2}, 4, v{T+2}")
    e(f"v_lshl_add_u32 v{T+2}, v{T}, 7, v{T+2}")
    e(f"s_and_b32 s3, s{sG}, 1")
    e(f"s_lshl_b32 s4, s{sMH}, 1")
    e(f"s_add_u32 s{sMT0}, s4, s3")
    e(f"s_xor_b32 s{sMT1}, s{sMT0}, 1")
    e(f"s_lshl_b32 s3, s{sMT0}, 12")
    e(f"s_add_u32 s3, s3, {16*128}")
    e(f"v_add_u32 v{vXa0}, s3, v{T+2}")
    e(f"s_lshl_b32 s3, s{sMT1}, 12")
    e(f"s_add_u32 s3, s3, {16*128}")
    e(f"v_add_u32 v{vXa1}, s3, v{T+2}")
    e(f"v_bfe_u32 v{T}, v{vLane}, 4, 1")
    e(f"v_bfe_u32 v{T+2}, v{vLane}, 2, 2")
    e(f"v_lshl_add_u32 v{T+2}, v{T+1}, 3, v{T+2}")
    e(f"v_mul_u32_u24 v{T+2}, 192, v{T+2}")
    e(f"v_and_b32 v{T+3}, 3, v{vLane}")
    e(f"v_lshl_add_u32 v{T+4}, v{T+3}, 3, v{T+2}")
    e(f"v_lshl_add_u32 v{T+5}, v{T}, 5, v{T+4}")
    e(f"v_add_u32 v{T+5}, {QKVOFF}, v{T+5}")
    e(f"v_mul_u32_u24 v{T+7}, {W3OFF}, v{T}")
    e(f"v_add_u32 v{T+7}, v{T+7}, v{T+4}")
    e(f"v_add_u32 v{T+7}, s{sOF}, v{T+7}")
    for slot, dst in ((0, vWA), (1, vWB)):
        e(f"s_lshl_b32 s3, s{sG}, 1")
        e(f"s_add_u32 s3, s3, {slot}")
        e("s_lshl_b32 s4, s3, 6")
        e("s_sub_u32 s5, s3, 3")
        e("s_lshl_b32 s5, s5, 5")
        e("s_cmp_lt_u32 s3, 3")
        e("s_cselect_b32 s4, s4, s5")
        e(f"s_cselect_b64 {sr(sMK,2)}, -1, 0")
        e(f"v_cndmask_b32 v{dst}, v{T+7}, v{T+5}, {sr(sMK,2)}")
        e(f"v_add_u32 v{dst}, s4, v{dst}")
    e(f"v_lshrrev_b32 v{T+8}, 1, v{T+3}")
    e(f"v_mul_u32_u24 v{T+8}, {W3OFF}, v{T+8}")
    e(f"v_and_b32 v{T+9}, 1, v{T+3}")
    e(f"v_lshl_add_u32 v{T+8}, v{T+9}, 3, v{T+8}")
    e(f"v_add_u32 v{T+8}, v{T+8}, v{T+2}")
    e(f"v_add_u32 v{T+8}, s{sOH}, v{T+8}")
    e(f"v_mov_b32 v{T+9}, {ONES}")
    e(f"v_cmp_eq_u32 vcc, 1, v{T}")
    e(f"v_xor_b32 v{vM9}, 1, v{T}")
    e("s_nop 0")
    e(f"v_cndmask_b32 v{vB9}, v{T+8}, v{T+9}, vcc")
    stamp(3)
    e(f"v_and_b32 v{T}, 15, v{vLane}")
    e(f"v_lshrrev_b32 v{T+1}, 4, v{vLane}")
    e(f"v_bfe_u32 v{T+2}, v{vLane}, 1, 3")
    e(f"v_xor_b32 v{T+2}, v{T+2}, v{T+1}")
    e(f"v_lshlrev_b32 v{T+2}, 4, v{T+2}")
    e(f"v_lshl_add_u32 v{vHXa}, v{T}, 7, v{T+2}")
    e(f"s_lshl_b32 s3, s{sW}, 11")
    e(f"s_add_u32 s3, s3, 2048")
    e(f"v_add_u32 v{vSQa}, s3, v{vHXa}")
    e(f"v_cmp_eq_u32 vcc, 0, v{T}")
    e(f"v_mov_b32 v{T+4}, 0")
    e(f"v_mov_b32 v{T+5}, 1")
    e(f"v_cndmask_b32 v{vCH1}, v{T+4}, v{T+9}, vcc")
    e(f"v_cndmask_b32 v{vMH1}, v{T+5}, v{T+4}, vcc")
    e(f"v_and_b32 v{T+5}, 1, v{T+1}")
    e(f"v_cmp_eq_u32 vcc, v{T+5}, v{T}")
    e(f"v_mov_b32 v{T+5}, 0x3f803f80")
    e("s_nop 0")
    for i in range(4): e(f"v_cndmask_b32 v{SEL+i}, v{T+4}, v{T+5}, vcc")
    e(f"v_bfe_u32 v{T+2}, v{vLane}, 2, 2")
    e(f"v_lshl_add_u32 v{T+2}, v{T+1}, 3, v{T+2}")
    e(f"v_mul_u32_u24 v{T+2}, 192, v{T+2}")
    e(f"v_lshl_add_u32 v{T+2}, v{T+3}, 3, v{T+2}")
    e(f"s_lshl_b32 s3, s{sG}, 5")
    e(f"s_add_u32 s3, s3, {QKVOFF+64}")
    e(f"v_add_u32 v{vHWa}, s3, v{T+2}")
    e(f"v_bfe_u32 v{T}, v{vLane}, 4, 1")
    e(f"v_lshrrev_b32 v{T+1}, 5, v{vLane}")
    e(f"v_bfe_u32 v{T+2}, v{vLane}, 2, 2")
    e(f"s_cmp_eq_u32 s{sT0}, 1")
    e("s_cselect_b32 s3, 3, 2")
    e("s_movk_i32 s4, 512")
    e("s_cselect_b32 s4, 256, s4")
    e(f"v_lshlrev_b32 v{T+1}, s3, v{T+1}")
    e(f"v_add_u32 v{T+1}, v{T+1}, v{T+2}")
    e(f"v_lshlrev_b32 v{T+1}, 6, v{T+1}")
    e(f"v_lshl_add_u32 v{T+1}, v{T}, 5, v{T+1}")
    e(f"v_lshl_add_u32 v{T+1}, v{T+3}, 3, v{T+1}")
    e(f"s_add_u32 s5, s{sWPW}, {TS}")
    e(f"v_add_u32 v{vTA1}, s5, v{T+1}")
    e(f"v_add_u32 v{vTA2}, s4, v{vTA1}")
    for i in range(4): e(f"v_mov_b32 v{96+i}, 0")
    e("s_nop 1")
    for r in (0, 16, 32, 48, 64, 80, 100, 116, 132):
        e(f"v_mfma_f32_32x32x16_bf16 {vr(r,16)}, {vr(96,4)}, {vr(96,4)}, 0")
    e(f"s_mov_b32 s{sRWA}, 0")
    e(f"s_mov_b32 s{sRWB}, {WSLOT}")
    e(f"s_mov_b32 s{sRX}, {XBASE}")
    e(f"s_mov_b32 s{sIT}, 1")
    e(f"s_lshr_b32 s3, s{sG}, 1")
    e(f"s_cmp_eq_u32 s3, s{sMH}")
    e("s_cbranch_scc0 K1_ROLEH")

    uid = [0]
    DL = 6 if LA == 4 else 7
    def adv(sreg, step, lim):
        e(f"s_add_u32 s{sreg}, s{sreg}, {step}")
        e(f"s_sub_u32 s{sT1}, s{sreg}, {lim}")
        e(f"s_cmp_ge_u32 s{sreg}, {lim}")
        e(f"s_cselect_b32 s{sreg}, s{sT1}, s{sreg}")
    def dma_loop(even, role9):
        uid[0] += 1
        lb = f"K1_ND{uid[0]}"
        lim = {4: (6, 6), 3: (7, 6), 2: (7, 7)}[LA][0 if even else 1]
        e(f"s_cmp_{'gt' if lim == DL else 'ge'}_u32 s{sIT}, s{sDMA}")
        e(f"s_cbranch_scc1 {lb}")
        dmaW()
        if even: dmaX()
        lab(lb)
        if even and role9 and PF == 1:
            e(f"s_lshl_b32 s{sT2}, s{sIT}, 3")
            e(f"s_add_u32 s{sT2}, s{sT2}, s{sW}")
            e(f"s_cmp_eq_u32 s{sT2}, {8*PFB+7}")
            e(f"s_cbranch_scc0 {lb}x")
            e(f"buffer_load_dword v{PV+12}, v{PV+2}, {sr(S_X,4)}, 0 offen")
            e(f"buffer_load_dword v{PV+12}, v{PV+3}, {sr(S_X,4)}, 0 offen")
            lab(lb + "x")
            e(f"s_cmp_eq_u32 s{sT2}, {8*PFB+6}")
            e(f"s_cbranch_scc0 {lb}w")
            e(f"buffer_load_dword v{PV+12}, v{PV+2}, {sr(S_W1,4)}, 0 offen")
            e(f"buffer_load_dword v{PV+12}, v{PV+3}, {sr(S_QKV,4)}, 0 offen")
            e(f"buffer_load_dword v{PV+12}, v{PV+2}, {sr(S_W3,4)}, 0 offen")
            lab(lb + "w")
    def vwait(steady, th, n, last0):
        uid[0] += 1
        lb = f"K1_VW{uid[0]}"
        e(f"s_waitcnt vmcnt({steady})")
        e(f"s_cmp_le_u32 s{sIT}, {th}")
        e(f"s_cbranch_scc1 {lb}")
        e(f"s_waitcnt vmcnt({n})")
        if last0:
            e(f"s_cmp_lt_u32 s{sIT}, 8")
            e(f"s_cbranch_scc1 {lb}")
            e("s_waitcnt vmcnt(0)")
        lab(lb)
    def x_addrs():
        r = [f"v_add_u32 v{aX}, s{sRX}, v{vXa0}", f"v_add_u32 v{aX+4}, s{sRX}, v{vXa1}"]
        for ks in range(1, 4):
            r.append(f"v_xor_b32 v{aX+ks}, {32*ks}, v{aX}")
            r.append(f"v_xor_b32 v{aX+4+ks}, {32*ks}, v{aX+4}")
        return r
    def chunk_addrs(srw, c2, role9):
        r = [f"v_add_u32 v{aWA}, s{srw}, v{vWA}", f"v_add_u32 v{aWB}, s{srw}, v{vWB}"]
        if role9:
            r.append(f"v_mad_u32_u24 v{a9}, v{vM9}, s{srw}, v{vB9}")
        else:
            r.append(f"v_add_u32 v{aHW}, s{srw}, v{vHWa}")
            r.append(f"v_add_u32 v{aHX}, s{sRX}, v{vHXa}")
            if c2: r.append(f"v_xor_b32 v{aHX}, 64, v{aHX}")
            r.append(f"v_mad_u32_u24 v{aHX1}, v{vMH1}, v{aHX}, v{vCH1}")
        r.append(f"v_add_u32 v{aSQ}, s{sRX}, v{vSQa}")
        if c2: r.append(f"v_xor_b32 v{aSQ}, 64, v{aSQ}")
        return r
    def reads(st, ks4, role9):
        ks = ks4 & 1
        o = 3072 * ks
        r = [f"ds_read_b128 {vr(FX[st],4)}, v{aX+ks4}",
             f"ds_read_b64_tr_b16 {vr(FW[st],2)}, v{aWA} offset:{o}",
             f"ds_read_b64_tr_b16 {vr(FW[st]+2,2)}, v{aWA} offset:{o+768}",
             f"ds_read_b128 {vr(FX[st]+4,4)}, v{aX+4+ks4}",
             f"ds_read_b64_tr_b16 {vr(FW[st]+4,2)}, v{aWB} offset:{o}",
             f"ds_read_b64_tr_b16 {vr(FW[st]+6,2)}, v{aWB} offset:{o+768}"]
        if role9:
            r += [f"ds_read_b64_tr_b16 {vr(FW[st]+8,2)}, v{a9} offset:{o}",
                  f"ds_read_b64_tr_b16 {vr(FW[st]+10,2)}, v{a9} offset:{o+768}"]
        return r
    def side_reads(role9):
        r = [f"ds_read_b128 {vr(FSQ,4)}, v{aSQ}"]
        if not role9:
            r += [f"ds_read_b128 {vr(FHX,4)}, v{aHX}", f"ds_read_b128 {vr(FHX1,4)}, v{aHX1}",
                  f"ds_read_b64_tr_b16 {vr(FHW,2)}, v{aHW}", f"ds_read_b64_tr_b16 {vr(FHW+2,2)}, v{aHW} offset:768"]
        return r
    def mfma_list(st, ks4, role9):
        mf = [f"v_mfma_f32_32x32x16_bf16 {vr(ACC,16)}, {vr(FW[st],4)}, {vr(FX[st],4)}, {vr(ACC,16)}",
              f"v_mfma_f32_32x32x16_bf16 {vr(ACC+16,16)}, {vr(FW[st],4)}, {vr(FX[st]+4,4)}, {vr(ACC+16,16)}",
              f"v_mfma_f32_32x32x16_bf16 {vr(ACC+32,16)}, {vr(FW[st]+4,4)}, {vr(FX[st],4)}, {vr(ACC+32,16)}",
              f"v_mfma_f32_32x32x16_bf16 {vr(ACC+48,16)}, {vr(FW[st]+4,4)}, {vr(FX[st]+4,4)}, {vr(ACC+48,16)}"]
        small = []
        if role9:
            mf.append(f"v_mfma_f32_32x32x16_bf16 {vr(ACC9,16)}, {vr(FW[st]+8,4)}, {vr(FX[st],4)}, {vr(ACC9,16)}")
            small.append(f"v_mfma_f32_16x16x32_bf16 {vr(CSA,4)}, {vr(FW[st],4)}, {vr(SEL,4)}, {vr(CSA,4)}")
        else:
            small.append(f"v_mfma_f32_16x16x32_bf16 {vr(CSA,4)}, {vr(FW[st]+4,4)}, {vr(SEL,4)}, {vr(CSA,4)}")
        if ks4 & 1:
            small.append(f"v_mfma_f32_16x16x32_bf16 {vr(SQA,4)}, {vr(FSQ,4)}, {vr(FSQ,4)}, {vr(SQA,4)}")
            if not role9:
                small.append(f"v_mfma_f32_16x16x32_bf16 {vr(ACC9,4)}, {vr(FHW,4)}, {vr(FHX,4)}, {vr(ACC9,4)}")
                small.append(f"v_mfma_f32_16x16x32_bf16 {vr(HST,4)}, {vr(FHX1,4)}, {vr(FHX,4)}, {vr(HST,4)}")
        return small, mf
    def group(st, ks4, role9, fill):
        small, mf = mfma_list(st, ks4, role9)
        MODE = os.environ.get("GMODE", "w21")
        def c9():
            if role9:
                uid[0] += 1
                lb = f"K1_C9{uid[0]}"
                e(f"s_cmp_eq_u32 s{sG}, {ks4}")
                e(f"s_cbranch_scc0 {lb}")
                e(f"v_mfma_f32_16x16x32_bf16 {vr(CS9A,4)}, {vr(FW[st]+8,4)}, {vr(SEL,4)}, {vr(CS9A,4)}")
                lab(lb)
        if MODE == "weave":
            for m in small: e(m)
            c9()
            n = len(mf) - 1
            per = [len(fill) * (i + 1) // n - len(fill) * i // n for i in range(n)] + [0]
            k = 0
            for i, m in enumerate(mf):
                e(m)
                for f in fill[k:k + per[i]]: e(f)
                k += per[i]
        elif MODE.startswith("w2"):
            seq = [(mf[0], 2), (mf[1], 2)]
            rest = mf[2:]; sm = list(small)
            while rest or sm:
                if sm: seq.append((sm.pop(0), 1))
                if rest: seq.append((rest.pop(0), 2))
            c9()
            last = int(MODE[2:] or 1)
            wts = [w_ for _, w_ in seq]
            for i in range(last): wts[-1 - i] = 0
            tot = sum(wts); acc = 0; k = 0
            for (m, _), w_ in zip(seq, wts):
                e(m)
                acc += w_
                k2 = len(fill) * acc // tot
                for f in fill[k:k2]: e(f)
                k = k2
        elif MODE == "first":
            for f in fill: e(f)
            for m in mf: e(m)
            for m in small: e(m)
            c9()
        elif MODE == "one":
            e(mf[0])
            for f in fill: e(f)
            for m in mf[1:]: e(m)
            for m in small: e(m)
            c9()
        elif MODE == "two":
            e(mf[0])
            h = len(fill) // 2
            for f in fill[:h]: e(f)
            e(mf[1])
            for f in fill[h:]: e(f)
            for m in mf[2:]: e(m)
            for m in small: e(m)
            c9()

    def mainloop(role9):
        nm = "9" if role9 else "H"
        uid[0] += 1
        lb = f"K1_TJ{uid[0]}"
        e("s_waitcnt vmcnt(9)")
        e(f"s_cmp_eq_u32 s{sDMA}, 1")
        e(f"s_cbranch_scc1 {lb}")
        e(f"s_waitcnt vmcnt({2 if PF else 0})")
        if FUSE and role9:
            e(f"s_cmp_eq_u32 s{sW}, 7")
            e(f"s_cbranch_scc0 {lb}")
            e("v_readfirstlane_b32 s3, v250")
            e(f"v_mov_b32 v251, {TAGL}")
            e("s_cmp_eq_u32 s3, 0")
            e("s_cselect_b32 s3, s100, s3")
            e("v_mov_b32 v250, s3")
            e("ds_write_b32 v251, v250")
            e("s_mov_b32 s100, s3")
            e(f"s_lshl_b32 s3, s{sCG}, 6")
            e(f"s_lshl_b32 s4, s{sRB}, 2")
            e("s_add_u32 s3, s3, s4")
            e("v_mov_b32 v251, s3")
            e(f"v_lshlrev_b32 v245, 4, v{vLane}")
        lab(lb)
        e(f"s_mul_i32 s{sDMA}, s{sDMA}, {DL}")
        e(f"v_lshlrev_b32 v{T+10}, 4, v{vLane}")
        e(f"s_add_u32 s3, s{sWPW}, {TS}")
        e(f"v_add_u32 v{T+11}, s3, v{T+10}")
        e(f"ds_write_b128 v{T+11}, {vr(WT,4)}")
        e("s_waitcnt lgkmcnt(0)")
        e(f"ds_read_b64_tr_b16 {vr(WT,2)}, v{vTA1}")
        e(f"ds_read_b64_tr_b16 {vr(WT+2,2)}, v{vTA2}")
        e(f"s_lshl_b32 s3, s{sID}, 10")
        e("s_waitcnt lgkmcnt(0)")
        e(f"buffer_store_dwordx4 {vr(WT,4)}, v{T+10}, {sr(S_W2F,4)}, s3 offen{SC}")
        PB = int(os.environ.get("PB", "1"))
        if LA == 4:
            e("s_barrier")
            e(f"s_cmp_eq_u32 s{sDMA}, 0")
            e(f"s_cbranch_scc1 K1_PND{nm}")
            dmaW(); dmaX()
            lab(f"K1_PND{nm}")
        if LA >= 3:
            e("s_barrier")
            e(f"s_cmp_eq_u32 s{sDMA}, 0")
            e(f"s_cbranch_scc1 K1_PNE{nm}")
            dmaW()
            lab(f"K1_PNE{nm}")
        stamp(1)
        for a_ in x_addrs() + chunk_addrs(sRWA, 0, role9): e(a_)
        lab(f"K1_LOOP{nm}")
        INLOOP[0] = True
        e("s_waitcnt vmcnt(3) lgkmcnt(0)")
        e("s_barrier")
        if STAMP == 2:
            e("s_memtime s[92:93]")
            e(f"s_lshl_b32 s94, s{sIT}, 1")
            e("s_add_u32 m0, s94, 38")
            e("s_waitcnt lgkmcnt(0)")
            e(f"v_writelane_b32 v{STV}, s92, m0")
        DW = os.environ.get("DW", "AB")
        dE = capture(lambda: (dmaW(), dmaX())); dO = capture(dmaW)
        def split(d):
            if DW == "A": return d, []
            if DW == "B": return [], d
            k = 13 if len(d) > 13 else 8
            return d[:k], d[k:]
        d1, d2 = split(dE)
        group(1, 3, role9, reads(0, 0, role9) + d1)
        e("s_waitcnt lgkmcnt(0)")
        group(0, 0, role9, reads(1, 1, role9) + side_reads(role9) + d2 + chunk_addrs(sRWB, 1, role9))
        e("s_waitcnt vmcnt(6) lgkmcnt(0)")
        e("s_barrier")
        if STAMP == 2:
            e("s_memtime s[92:93]")
            e(f"s_lshl_b32 s94, s{sIT}, 1")
            e("s_add_u32 m0, s94, 39")
            e("s_waitcnt lgkmcnt(0)")
            e(f"v_writelane_b32 v{STV}, s92, m0")
        if FUSE and role9:
            e(f"s_lshl_b32 s{sT2}, s{sIT}, 3")
            e(f"s_add_u32 s{sT2}, s{sT2}, s{sW}")
            e(f"s_cmp_eq_u32 s{sT2}, {8*2+7}")
            e("s_cbranch_scc0 K1_S1A")
            e("s_mov_b64 exec, 1")
            e(f"buffer_store_dword v250, v251, {sr(S_FL,4)}, 0 offen sc1")
            e("s_mov_b64 exec, -1")
            lab("K1_S1A")
            e(f"s_cmp_eq_u32 s{sT2}, {8*8+7}")
            e("s_cbranch_scc0 K1_S1B")
            e(f"buffer_load_dwordx4 v[246:249], v245, {sr(S_FL,4)}, 0 offen sc1")
            lab("K1_S1B")
        d1, d2 = split(dO)
        group(1, 1, role9, reads(0, 2, role9) + d1)
        e("s_waitcnt lgkmcnt(0)")
        tail = [f"s_cmp_eq_u32 s{sIT}, 7"] + [f"s_cselect_b32 s{d+2}, 0, s{d+2}" for d in (S_X, S_W1, S_W3, S_QKV)]
        def advs():
            adv(sRWA, 2 * WSLOT, NW * WSLOT)
            adv(sRWB, 2 * WSLOT, NW * WSLOT)
            e(f"s_add_u32 s{sRX}, s{sRX}, {XSLOT}")
            e(f"s_cmp_ge_u32 s{sRX}, {XBASE+NX*XSLOT}")
            e(f"s_cselect_b32 s{sRX}, {XBASE}, s{sRX}")
        group(0, 2, role9, reads(1, 3, role9) + side_reads(role9) + d2 + tail + capture(advs) + x_addrs() + chunk_addrs(sRWA, 0, role9))
        INLOOP[0] = False
        if STAMP:
            e("s_memtime s[92:93]")
            e(f"s_add_u32 m0, s{sIT}, 31")
            e("s_waitcnt lgkmcnt(0)")
            e(f"v_writelane_b32 v{STV}, s92, m0")
        e(f"s_add_u32 s{sIT}, s{sIT}, 1")
        e(f"s_cmp_lt_u32 s{sIT}, 9")
        e(f"s_cbranch_scc1 K1_LOOP{nm}")
        e("s_waitcnt lgkmcnt(0)")
        group(1, 3, role9, [])
        stamp(4)
        e(f"v_and_b32 v{T}, 15, v{vLane}")
        e(f"v_lshrrev_b32 v{T+1}, 4, v{vLane}")
        e(f"v_lshlrev_b32 v{T+2}, 6, v{T}")
        e(f"v_lshl_add_u32 v{T+2}, v{T+1}, 4, v{T+2}")
        e(f"s_lshl_b32 s3, s{sG}, 8")
        e(f"s_add_u32 s3, s3, {CS + (0 if role9 else 128)}")
        e(f"v_add_u32 v{T+3}, s3, v{T+2}")
        e(f"s_lshl_b32 s3, s{sG}, 7")
        e(f"s_add_u32 s3, s3, {CS9}")
        e(f"v_add_u32 v{T+4}, s3, v{T+2}")
        e(f"v_and_b32 v{T+5}, 3, v{vLane}")
        e(f"v_lshlrev_b32 v{T+6}, 2, v{vLane}")
        e(f"s_lshl_b32 s3, s{sW}, 8")
        e(f"s_add_u32 s3, s3, {SQ}")
        e(f"v_add_u32 v{T+7}, s3, v{T+6}")
        def diag(dst, src):
            e(f"v_cmp_eq_u32 vcc, 1, v{T+5}")
            e(f"v_cmp_eq_u32 {sr(sMK,2)}, 2, v{T+5}")
            e(f"v_cmp_eq_u32 s[4:5], 3, v{T+5}")
            e(f"v_cndmask_b32 v{dst}, v{src}, v{src+1}, vcc")
            e(f"v_cndmask_b32 v{dst}, v{dst}, v{src+2}, {sr(sMK,2)}")
            e(f"v_cndmask_b32 v{dst}, v{dst}, v{src+3}, s[4:5]")
        diag(T + 8, SQA)
        e(f"ds_write_b32 v{T+7}, v{T+8}")
        if not role9:
            diag(T + 9, HST)
            e(f"s_lshl_b32 s3, s{sG}, 9")
            e(f"s_add_u32 s3, s3, {HSC}")
            e(f"v_add_u32 v{T+10}, s3, v{T+6}")
            e(f"ds_write_b32 v{T+10}, v{T+9}")
            e(f"ds_write_b32 v{T+10}, v{HST} offset:256")
        e(f"v_cmp_gt_u32 vcc, 2, v{T}")
        e("s_and_saveexec_b64 s[4:5], vcc")
        e(f"ds_write_b128 v{T+3}, {vr(CSA,4)}")
        if role9:
            e(f"ds_write_b128 v{T+4}, {vr(CS9A,4)}")
        e("s_mov_b64 exec, s[4:5]")
        e(f"v_and_b32 v{T}, 31, v{vLane}")
        e(f"v_lshlrev_b32 v{T}, 2, v{T}")
        e(f"s_lshl_b32 s3, s{sMT0}, 7")
        e(f"s_lshl_b32 s4, s{sMT1}, 7")
        e(f"v_add_u32 v{T+2}, s3, v{T}")
        e(f"v_add_u32 v{T+3}, s4, v{T}")
        if role9:
            e(f"v_add_u32 v{T+6}, {RS}, v{T+2}")
            e(f"ds_write_b32 v{T+6}, v{ACC9+8}")
        e(f"s_mov_b32 s{sT3}, {1 if role9 else 0}")
        e("s_waitcnt vmcnt(0)")
        if FUSE and role9:
            e(f"s_cmp_eq_u32 s{sW}, 7")
            e("s_cbranch_scc0 K1_EPI")
            e("s_mov_b32 s3, 0")
            lab("K1_S1P")
            e("v_xor_b32 v246, s100, v246")
            e("v_xor_b32 v247, s100, v247")
            e("v_xor_b32 v248, s100, v248")
            e("v_xor_b32 v249, s100, v249")
            e("v_or3_b32 v246, v246, v247, v248")
            e("v_or_b32 v246, v246, v249")
            e("v_cmp_ne_u32 vcc, 0, v246")
            e("s_add_u32 s3, s3, 1")
            e("s_cmp_gt_u32 s3, 0x8000")
            e("s_cbranch_scc1 K1_EPI")
            e("s_cbranch_vccz K1_EPI")
            e("s_sleep 4")
            e(f"buffer_load_dwordx4 v[246:249], v245, {sr(S_FL,4)}, 0 offen sc1")
            e("s_waitcnt vmcnt(0)")
            e("s_branch K1_S1P")
        e("s_branch K1_EPI")

    mainloop(True)
    lab("K1_ROLEH")
    mainloop(False)

    lab("K1_EPI")
    sROLE = sT3
    CA, CB = 80, 96
    C9 = 112
    ST = 120
    RAW = 132
    e("s_waitcnt lgkmcnt(0)")
    e("s_barrier")
    stamp(5)
    if FUSE:
        e(f"s_cmp_lg_u32 s{sW}, 0")
        e("s_cbranch_scc1 K1_FL1")
        e(f"v_mov_b32 v{T+13}, {TAGL}")
        e(f"ds_read_b32 v{T+12}, v{T+13}")
        e("s_waitcnt lgkmcnt(0)")
        e(f"v_readfirstlane_b32 s100, v{T+12}")
        lab("K1_FL1")
        p2_setup(sW, vLane)
        p2_dma(2, S_W2F)
    e(f"v_add_u32 v{T+4}, {RS}, v{T+2}")
    e(f"v_add_u32 v{T+5}, {RS}, v{T+3}")
    e(f"ds_read_b32 v{RAW}, v{T+4}")
    e(f"ds_read_b32 v{RAW+1}, v{T+5}")
    e(f"v_and_b32 v{T+6}, 15, v{vLane}")
    e(f"v_lshrrev_b32 v{T+7}, 2, v{T+6}")
    e(f"v_lshl_add_u32 v{T+6}, v{T+7}, 4, v{T+6}")
    e(f"v_lshlrev_b32 v{T+6}, 2, v{T+6}")
    e(f"v_bfe_u32 v{T+7}, v{vLane}, 4, 1")
    e(f"v_lshl_add_u32 v{T+7}, v{T+7}, 8, v{T+6}")
    e(f"s_lshl_b32 s3, s{sMT0}, 9")
    e(f"s_add_u32 s3, s3, {SQ}")
    e(f"s_lshl_b32 s4, s{sMT1}, 9")
    e(f"s_add_u32 s4, s4, {SQ}")
    e(f"v_add_u32 v{T+8}, s3, v{T+7}")
    e(f"v_add_u32 v{T+7}, s4, v{T+7}")
    e(f"ds_read_b32 v{RAW+2}, v{T+8}")
    e(f"ds_read_b32 v{RAW+3}, v{T+7}")
    e(f"s_lshl_b32 s3, s{sG}, 9")
    e(f"s_add_u32 s3, s3, {HSC}")
    e(f"v_add_u32 v{T+6}, s3, v{T+6}")
    e(f"v_and_b32 v{T+8}, 15, v{vLane}")
    e(f"v_lshlrev_b32 v{T+8}, 2, v{T+8}")
    e(f"v_add_u32 v{T+8}, s3, v{T+8}")
    e(f"ds_read_b32 v{RAW+4}, v{T+8} offset:256")
    e(f"ds_read_b32 v{RAW+5}, v{T+6}")
    e(f"v_lshrrev_b32 v{T+9}, 5, v{vLane}")
    e(f"v_lshlrev_b32 v{T+10}, 4, v{T+9}")
    e(f"s_lshl_b32 s3, s{sG}, 8")
    e(f"s_add_u32 s3, s3, {CS}")
    e(f"v_add_u32 v{T+11}, s3, v{T+10}")
    for q in range(4):
        e(f"ds_read_b128 {vr(CA+4*q,4)}, v{T+11} offset:{32*q}")
    for q in range(4):
        e(f"ds_read_b128 {vr(CB+4*q,4)}, v{T+11} offset:{128+32*q}")
    e("s_waitcnt lgkmcnt(8)")
    e(f"s_cmp_eq_u32 s{sROLE}, 1")
    e("s_cbranch_scc0 K1_E_CH")
    e(f"v_add_u32 v{T+12}, {CS9}, v{T+10}")
    for p in range(4):
        e(f"ds_read_b128 {vr(vTMP+8+8*p,4)}, v{T+12} offset:{128*p}")
        e(f"ds_read_b128 {vr(vTMP+12+8*p,4)}, v{T+12} offset:{128*p+32}")
    e("s_waitcnt lgkmcnt(0)")
    for i in range(8):
        e(f"v_add_f32 v{C9+i}, v{vTMP+8+i}, v{vTMP+16+i}")
        e(f"v_add_f32 v{vTMP+24+i}, v{vTMP+24+i}, v{vTMP+32+i}")
    for i in range(8):
        e(f"v_add_f32 v{C9+i}, v{C9+i}, v{vTMP+24+i}")
    e("s_branch K1_E_CD")
    lab("K1_E_CH")
    e(f"v_lshrrev_b32 v{T+13}, 4, v{vLane}")
    e(f"v_lshlrev_b32 v{T+13}, 4, v{T+13}")
    e(f"s_lshl_b32 s3, s{sG}, 6")
    e(f"s_add_u32 s3, s3, {CS+128}")
    e(f"v_add_u32 v{T+13}, s3, v{T+13}")
    e(f"ds_read_b128 {vr(C9,4)}, v{T+13}")
    lab("K1_E_CD")
    def stats(rs, sq, o):
        t = vTMP
        e(f"v_mul_f32 v{t}, {f2u(1/512):#x}, v{rs}")
        e(f"v_mul_f32 v{t+1}, {f2u(1/512):#x}, v{sq}")
        e(f"v_fma_f32 v{t+1}, -v{t}, v{t}, v{t+1}")
        e(f"v_max_f32 v{t+1}, 0, v{t+1}")
        e(f"v_cvt_pk_bf16_f32 v{t+2}, v{t}, v{t+1}")
        e(f"v_lshlrev_b32 v{t}, 16, v{t+2}")
        e(f"v_and_b32 v{t+1}, 0xffff0000, v{t+2}")
        e(f"v_add_f32 v{t+1}, {f2u(1e-5):#x}, v{t+1}")
        e(f"v_cvt_pk_bf16_f32 v{t+2}, v{t+1}, v{t+1}")
        e(f"v_and_b32 v{t+1}, 0xffff0000, v{t+2}")
        e(f"v_sqrt_f32 v{t+1}, v{t+1}")
        e(f"v_xor_b32 v{o+1}, 0x80000000, v{t}")
        e(f"v_cvt_pk_bf16_f32 v{t+2}, v{t+1}, v{t+1}")
        e(f"v_and_b32 v{t+1}, 0xffff0000, v{t+2}")
        e(f"v_rcp_f32 v{o}, v{t+1}")
        e(f"v_mul_f32 v{o+3}, v{t+1}, v{t+1}")
        e(f"v_mul_f32 v{o+2}, {f2u(-LOG2E):#x}, v{o}")
    stats(RAW, RAW + 2, ST)
    stats(RAW + 1, RAW + 3, ST + 4)
    e(f"v_and_b32 v{T}, 31, v{vLane}")
    e(f"v_mul_u32_u24 v{T}, {SPITCH}, v{T}")
    e(f"v_lshl_add_u32 v{T+1}, v{T+9}, 3, v{T}")
    e(f"v_lshl_add_u32 v{T+2}, v{T+9}, 4, v{T}")
    e(f"s_mul_i32 s3, s{sMT0}, {32*SPITCH}")
    e(f"s_add_u32 s3, s3, {STG+16*SPITCH}")
    e(f"s_mul_i32 s4, s{sMT1}, {32*SPITCH}")
    e(f"s_add_u32 s4, s4, {STG+16*SPITCH}")
    e(f"v_add_u32 v{T+3}, s3, v{T+1}")
    e(f"v_add_u32 v{T+4}, s4, v{T+1}")
    e(f"v_add_u32 v{T+5}, s3, v{T+2}")
    e(f"v_add_u32 v{T+6}, s4, v{T+2}")
    e(f"v_lshlrev_b32 v{T+7}, 4, v{vLane}")
    e(f"s_lshl_b32 s5, s{sRB}, 2")
    e(f"s_add_u32 s{sT1}, s5, s{sMT0}")
    e(f"s_add_u32 s{sT2}, s5, s{sMT1}")
    e("s_waitcnt lgkmcnt(0)")
    def bc(r):
        return (vr(r & ~1, 2), r & 1)
    def pkfma(d, a, b, c, bsel=None, csel=None):
        A = vr(a, 2)
        B, bs = (vr(b, 2), None) if bsel is None else bc(b)
        Cc, cs = (vr(c, 2), None) if csel is None else bc(c)
        lo = [0, bs or 0, cs or 0]; hi = [1, 1 if bs is None else bs, 1 if cs is None else cs]
        e(f"v_pk_fma_f32 {vr(d,2)}, {A}, {B}, {Cc} op_sel:[{lo[0]},{lo[1]},{lo[2]}] op_sel_hi:[{hi[0]},{hi[1]},{hi[2]}]")
    def pkmul(d, a, b, bsel=None):
        B, bs = (vr(b, 2), None) if bsel is None else bc(b)
        e(f"v_pk_mul_f32 {vr(d,2)}, {vr(a,2)}, {B} op_sel:[0,{bs or 0}] op_sel_hi:[1,{1 if bs is None else bs}]")
    def ln16(R, C, st, n, dst):
        for i in range(0, n, 2): pkfma(dst + i, C + i, st + 1, R + i, bsel=1)
        for i in range(0, n, 2): pkmul(dst + i, dst + i, st, bsel=1)
    def tile_qk(R, C, st, addr, sec):
        t = vTMP
        ln16(R, C, st, 16, t)
        for q in range(4):
            e(f"v_cvt_pk_bf16_f32 v{t+16+2*q}, v{t+4*q}, v{t+4*q+1}")
            e(f"v_cvt_pk_bf16_f32 v{t+17+2*q}, v{t+4*q+2}, v{t+4*q+3}")
        for q in range(4):
            e(f"ds_write_b64 v{addr}, {vr(t+16+2*q,2)} offset:{sec*64+16*q}")
    def tile_v(R, C, st, addr):
        t = vTMP + 24
        ln16(R, C, st, 16, t)
        for q in range(4):
            e(f"ds_write_b128 v{addr}, {vr(t+4*q,4)} offset:{128+32*q}")
    def silu(R, C, st, n, goff, uoff, t):
        for i in range(0, n, 2): pkfma(t + i, C + goff + i, st + 1, R + goff + i, bsel=1)
        for i in range(0, n, 2): pkmul(t + n + i, t + i, st + 2, bsel=1)
        for i in range(n):
            e(f"v_exp_f32 v{t+n+i}, v{t+n+i}")
        for i in range(0, n, 2): pkfma(t + 2*n + i, C + uoff + i, st + 1, R + uoff + i, bsel=1)
        for i in range(0, n, 2): pkfma(t + n + i, t + n + i, st + 3, st + 3, bsel=1, csel=1)
        for i in range(n):
            e(f"v_rcp_f32 v{t+n+i}, v{t+n+i}")
        for i in range(0, n, 2): pkmul(t + i, t + i, t + 2*n + i)
        for i in range(0, n, 2): pkmul(t + i, t + i, t + n + i)
        for i in range(n // 2):
            e(f"v_cvt_pk_bf16_f32 v{t+3*n+i}, v{t+2*i}, v{t+2*i+1}")
    def tile_ffn(R, C, st, smt, tau_s, tbase):
        silu(R, C, st, 8, 0, 8, tbase)
        e(f"s_add_u32 s3, s{tau_s}, s{smt}")
        e("s_lshl_b32 s3, s3, 10")
        e(f"buffer_store_dwordx4 {vr(tbase+24,4)}, v{T+7}, {sr(S_HF,4)}, s3 offen{SC}")
    e(f"s_lshl_b32 s6, s{sG}, 1")
    e(f"s_add_u32 s6, s6, s{sTF}")
    e("s_add_u32 s6, s6, 29")
    e("s_lshl_b32 s6, s6, 6")
    e("s_add_u32 s7, s6, 64")
    e(f"s_cmp_eq_u32 s{sROLE}, 1")
    e("s_cbranch_scc1 K1_E_T")
    stats(RAW + 4, RAW + 5, ST + 8)
    t = vTMP + 40
    ln16(ACC9, C9, ST + 8, 4, t)
    e(f"v_and_b32 v{T}, 15, v{vLane}")
    e(f"v_mul_u32_u24 v{T}, {SPITCH}, v{T}")
    e(f"v_lshrrev_b32 v{T+1}, 4, v{vLane}")
    e(f"s_cmp_lt_u32 s{sG}, 2")
    e("s_cbranch_scc0 K1_E_HV")
    e(f"v_cvt_pk_bf16_f32 v{t+4}, v{t}, v{t+1}")
    e(f"v_cvt_pk_bf16_f32 v{t+5}, v{t+2}, v{t+3}")
    e(f"v_lshl_add_u32 v{T}, v{T+1}, 3, v{T}")
    e(f"s_lshl_b32 s3, s{sG}, 5")
    e(f"s_add_u32 s3, s3, {STG+64}")
    e(f"v_add_u32 v{T}, s3, v{T}")
    e(f"ds_write_b64 v{T}, {vr(t+4,2)}")
    e("s_branch K1_E_T")
    lab("K1_E_HV")
    e(f"v_lshl_add_u32 v{T}, v{T+1}, 4, v{T}")
    e(f"s_lshl_b32 s3, s{sG}, 6")
    e(f"s_add_u32 s3, s3, {STG+128-128}")
    e(f"v_add_u32 v{T}, s3, v{T}")
    e(f"ds_write_b128 v{T}, {vr(t,4)}")
    lab("K1_E_T")
    if FUSE: p2_dma(2, S_W2F)
    e(f"s_cmp_eq_u32 s{sG}, 0")
    e("s_cbranch_scc1 K1_E_G0")
    e(f"s_cmp_eq_u32 s{sG}, 1")
    e("s_cbranch_scc1 K1_E_G1")
    tile_ffn(ACC, CA, ST, sT1, 6, vTMP)
    e("s_waitcnt lgkmcnt(0)")
    e("s_barrier")
    tile_ffn(ACC + 16, CA, ST + 4, sT2, 6, vTMP - 54)
    e("s_branch K1_E_B")
    lab("K1_E_G0")
    tile_qk(ACC, CA, ST, T + 3, 0)
    tile_qk(ACC + 16, CA, ST + 4, T + 4, 0)
    tile_qk(ACC + 32, CB, ST, T + 3, 1)
    tile_qk(ACC + 48, CB, ST + 4, T + 4, 1)
    e("s_waitcnt lgkmcnt(0)")
    e("s_barrier")
    e("s_branch K1_E_C")
    lab("K1_E_G1")
    tile_v(ACC, CA, ST, T + 5)
    e("s_nop 1")
    tile_v(ACC + 16, CA, ST + 4, T + 6)
    e("s_waitcnt lgkmcnt(0)")
    e("s_barrier")
    lab("K1_E_B")
    tile_ffn(ACC + 32, CB, ST, sT1, 7, vTMP)
    tile_ffn(ACC + 48, CB, ST + 4, sT2, 7, vTMP - 54)
    lab("K1_E_C")
    if FUSE: p2_dma(2, S_W2F)
    stamp(6)
    e(f"s_and_b32 s3, s{sROLE}, s{sHAS}")
    e("s_cbranch_scc0 K1_E_D")
    silu(ACC9, C9, ST, 4, 0, 4, vTMP + 32)
    e(f"s_add_u32 s3, s{sTH}, 32")
    e("s_lshl_b32 s3, s3, 6")
    e(f"s_add_u32 s3, s3, s{sT1}")
    e("s_lshl_b32 s3, s3, 10")
    e(f"s_lshl_b32 s4, s{sHSEL}, 3")
    e("s_add_u32 s3, s3, s4")
    e(f"buffer_store_dwordx2 {vr(vTMP+44,2)}, v{T+7}, {sr(S_HF,4)}, s3 offen{SC}")
    lab("K1_E_D")
    if FUSE: p2_dma(8, S_W2F)
    sU, sN = sRWA, sRWB
    e(f"s_lshl_b32 s3, s{sW}, 2")
    e(f"s_lshr_b32 s{sU}, 0x527640, s3")
    e(f"s_and_b32 s{sU}, s{sU}, 7")
    e(f"s_lshr_b32 s{sN}, 0x121112, s3")
    e(f"s_and_b32 s{sN}, s{sN}, 3")
    e("s_cbranch_scc0 K1_ATT_END")
    lab("K1_ATT")
    Q = 0; KK = 4; VV = 36; P = 100; O = 112; A2 = 120
    e(f"v_lshrrev_b32 v{T+8}, 4, v{T+7}")
    e(f"v_and_b32 v{T}, 31, v{T+8}")
    e(f"v_lshrrev_b32 v{T+1}, 5, v{T+8}")
    e(f"s_lshr_b32 s3, s{sU}, 1")
    e(f"s_and_b32 s4, s{sU}, 1")
    e(f"v_mul_u32_u24 v{T+2}, {SPITCH}, v{T}")
    e(f"s_mul_i32 s5, s3, {32*SPITCH}")
    e(f"s_add_u32 s5, s5, {STG+2*SPITCH}")
    e("s_lshl_b32 s6, s4, 5")
    e("s_add_u32 s6, s6, s5")
    e(f"v_lshl_add_u32 v{T+3}, v{T+1}, 4, v{T+2}")
    e(f"v_add_u32 v{T+3}, s6, v{T+3}")
    e("s_lshl_b32 s6, s4, 6")
    e("s_add_u32 s6, s6, s5")
    e(f"v_lshl_add_u32 v{T+4}, v{T+1}, 5, v{T+2}")
    e(f"v_add_u32 v{T+4}, s6, v{T+4}")
    e("s_lshl_b32 s5, s3, 5")
    e(f"s_add_u32 s5, s5, s{sM0}")
    e(f"v_add_u32 v{T+5}, s5, v{T}")
    e(f"v_lshlrev_b32 v{T+6}, 1, v{T+1}")
    e(f"v_sub_u32 v{T+5}, v{T+5}, v{T+6}")
    e(f"s_lshl_b32 s5, s{sCG}, 1")
    e("s_add_u32 s5, s5, s4")
    e("s_lshl_b32 s5, s5, 6")
    e(f"s_lshl_b32 s6, s{sRB}, 2")
    e("s_add_u32 s5, s5, s6")
    e("s_add_u32 s5, s5, s3")
    e(f"s_lshl_b32 s{sT1}, s5, 10")
    e(f"ds_read_b128 {vr(Q,4)}, v{T+3} offset:{14*SPITCH}")
    for w in range(8):
        e(f"ds_read_b128 {vr(KK+4*w,4)}, v{T+3} offset:{(14-2*w)*SPITCH+64}")
    for w in range(3):
        e(f"ds_read_b128 {vr(VV+8*w,4)}, v{T+4} offset:{(14-2*w)*SPITCH+128}")
        e(f"ds_read_b128 {vr(VV+8*w+4,4)}, v{T+4} offset:{(14-2*w)*SPITCH+144}")
    for w in range(8):
        e(f"s_waitcnt lgkmcnt({min(15, 13-w)})")
        e(f"v_dot2_f32_bf16 v{P+w}, v{Q}, v{KK+4*w}, 0")
        for i in range(1, 4):
            e(f"v_dot2_f32_bf16 v{P+w}, v{Q+i}, v{KK+4*w+i}, v{P+w}")
    for w in range(3, 8):
        e(f"ds_read_b128 {vr(VV+8*w,4)}, v{T+4} offset:{(14-2*w)*SPITCH+128}")
        e(f"ds_read_b128 {vr(VV+8*w+4,4)}, v{T+4} offset:{(14-2*w)*SPITCH+144}")
    e("s_nop 2")
    for i in range(4):
        e(f"v_permlane32_swap_b32 v{P+2*i}, v{P+2*i+1}")
    e(f"v_mov_b32 v{T+9}, {f2u(-1e9):#x}")
    for i in range(4):
        e(f"v_add_f32 v{P+2*i}, v{P+2*i}, v{P+2*i+1}")
    for i in range(4):
        e(f"v_cmp_le_i32 vcc, {4*i}, v{T+5}")
        e(f"v_mul_f32 v{P+2*i}, 0.25, v{P+2*i}") if False else e(f"v_mul_f32 v{P+2*i}, {f2u(0.25):#x}, v{P+2*i}")
        e("s_nop 0")
        e(f"v_cndmask_b32 v{P+2*i}, v{T+9}, v{P+2*i}, vcc")
    e(f"v_max3_f32 v{P+1}, v{P}, v{P+2}, v{P+4}")
    e(f"v_max_f32 v{P+1}, v{P+1}, v{P+6}")
    e(f"v_mov_b32 v{P+3}, v{P+1}")
    e("s_nop 1")
    e(f"v_permlane32_swap_b32 v{P+1}, v{P+3}")
    e("s_nop 0")
    e(f"v_max_f32 v{P+1}, v{P+1}, v{P+3}")
    for i in range(4):
        e(f"v_sub_f32 v{P+2*i}, v{P+2*i}, v{P+1}")
    for i in range(4):
        e(f"v_mul_f32 v{P+2*i}, {f2u(LOG2E):#x}, v{P+2*i}")
    for i in range(4):
        e(f"v_exp_f32 v{P+2*i}, v{P+2*i}")
    e("s_nop 0")
    e(f"v_add_f32 v{P+1}, v{P}, v{P+2}")
    e(f"v_add_f32 v{P+3}, v{P+4}, v{P+6}")
    e(f"v_add_f32 v{P+1}, v{P+1}, v{P+3}")
    e(f"v_mov_b32 v{P+3}, v{P+1}")
    e("s_nop 1")
    e(f"v_permlane32_swap_b32 v{P+1}, v{P+3}")
    e("s_nop 0")
    e(f"v_add_f32 v{P+8}, v{P+1}, v{P+3}")
    e(f"v_rcp_f32 v{P+8}, v{P+8}")
    e("s_nop 0")
    for i in range(4):
        e(f"v_mul_f32 v{P+2*i}, v{P+2*i}, v{P+8}")
    for i in range(4):
        e(f"v_mov_b32 v{P+2*i+1}, v{P+2*i}")
    e("s_nop 1")
    for i in range(4):
        e(f"v_permlane32_swap_b32 v{P+2*i}, v{P+2*i+1}")
    e("s_nop 0")
    for w in range(8):
        e(f"s_waitcnt lgkmcnt({14-2*w})")
        for d in range(0, 8, 2):
            if w == 0: pkmul(O + d, VV + d, P, bsel=1)
            else: pkfma(O + d, VV + 8*w + d, P + w, O + d, bsel=1)
    for i in range(4):
        e(f"v_cvt_pk_bf16_f32 v{A2+i}, v{O+2*i}, v{O+2*i+1}")
    e(f"buffer_store_dwordx4 {vr(A2,4)}, v{T+7}, {sr(S_HF,4)}, s{sT1} offen{SC}")
    e(f"s_add_u32 s{sU}, s{sU}, 1")
    e(f"s_sub_u32 s{sN}, s{sN}, 1")
    e(f"s_cmp_lg_u32 s{sN}, 0")
    e("s_cbranch_scc1 K1_ATT")
    lab("K1_ATT_END")
    if os.environ.get("TWICE"):
        e(f"s_cmp_eq_u32 s{sIT}, 77")
        e("s_cbranch_scc1 K1_TW")
        e(f"s_mov_b32 s{sIT}, 77")
        stamp(7)
        e(f"v_lshrrev_b32 v{vLane}, 4, v{T+7}")
        e(f"v_and_b32 v{T}, 31, v{vLane}")
        e(f"v_lshlrev_b32 v{T}, 2, v{T}")
        e(f"s_lshl_b32 s3, s{sMT0}, 7")
        e(f"s_lshl_b32 s4, s{sMT1}, 7")
        e(f"v_add_u32 v{T+2}, s3, v{T}")
        e(f"v_add_u32 v{T+3}, s4, v{T}")
        e("s_waitcnt vmcnt(0)")
        e("s_branch K1_EPI")
        lab("K1_TW")
    stamp(8)
    if STAMP and not FUSE: e("s_waitcnt vmcnt(0)")
    stamp(9)
    stamp_flush(50, 0x1000000, sW)
    if FUSE:
        phase2(sW, sRB, sCG, S_HF, S_W2F, S_FL, T + 7)
    lab("K1_END")
    e("s_endpgm")

def kernel2():
    S_HF, S_W2F, S_X, S_O = 8, 12, 16, 20
    sW, sMB, sNB, sKH, sKW = 30, 31, 32, 33, 34
    ACC = 0
    vLane, vH0, vH1, vW0, vW1, vXO = 64, 65, 66, 67, 68, 69
    XR = 72
    T = 80
    RD = 96
    NK = 30; D = int(os.environ.get('K2D', '15')); ROT = int(os.environ.get('K2ROT', '0'))
    fr = (lambda b, n: vr(128 + b, n)) if FUSE else ar
    if FUSE:
        stamp(0)
        e(f"v_mbcnt_lo_u32_b32 v{vLane}, -1, 0")
        e(f"v_mbcnt_hi_u32_b32 v{vLane}, -1, v{vLane}")
        e("s_and_b32 s3, s2, 7")
    else:
        L.append(".globl k2_kernel\n.p2align 8\n.type k2_kernel,@function\nk2_kernel:")
        e("s_cmp_ge_u32 s2, 256")
        e("s_cbranch_scc1 K2_END")
        e("s_load_dwordx2 s[36:37], s[0:1], 0")
        e("s_load_dwordx2 s[38:39], s[0:1], 56")
        e("s_load_dwordx2 s[40:41], s[0:1], 72")
        stamp(0)
        e(f"v_and_b32 v{vLane}, 63, v0")
        e(f"v_lshrrev_b32 v{T}, 6, v0")
        e("s_and_b32 s3, s2, 7")
        e(f"v_readfirstlane_b32 s{sW}, v{T}")
    e("s_lshr_b32 s4, s2, 3")
    e("s_and_b32 s5, s3, 1")
    e("s_lshl_b32 s5, s5, 1")
    e("s_bfe_u32 s6, s3, 0x10001")
    e("s_add_u32 s5, s5, s6")
    e("s_lshl_b32 s5, s5, 3")
    e("s_and_b32 s6, s4, 7")
    e(f"s_add_u32 s{sMB}, s5, s6")
    e("s_lshr_b32 s5, s3, 2")
    e("s_lshl_b32 s5, s5, 2")
    e("s_lshr_b32 s6, s4, 3")
    e(f"s_add_u32 s{sNB}, s5, s6")
    e(f"v_lshlrev_b32 v{T}, 4, v{vLane}")
    e(f"s_lshr_b32 s3, s{sW}, 1")
    e(f"s_and_b32 s4, s{sW}, 1")
    e(f"s_lshl_b32 s5, s{sMB}, 1")
    e("s_add_u32 s5, s5, s3")
    e("s_lshl_b32 s6, s5, 10")
    e(f"v_add_u32 v{vH0}, s6, v{T}")
    e("s_xor_b32 s6, s6, 1024")
    e(f"v_add_u32 v{vH1}, s6, v{T}")
    e(f"s_lshl_b32 s7, s{sNB}, 1")
    e("s_add_u32 s7, s7, s4")
    e("s_lshl_b32 s6, s7, 10")
    e(f"v_add_u32 v{vW0}, s6, v{T}")
    e("s_xor_b32 s6, s6, 1024")
    e(f"v_add_u32 v{vW1}, s6, v{T}")
    e(f"v_and_b32 v{T+1}, 31, v{vLane}")
    e(f"v_lshrrev_b32 v{T+2}, 5, v{vLane}")
    e(f"v_lshlrev_b32 v{T+1}, 10, v{T+1}")
    e(f"v_lshl_add_u32 v{T+1}, v{T+2}, 3, v{T+1}")
    e("s_lshl_b32 s5, s5, 15")
    e("s_lshl_b32 s7, s7, 6")
    e("s_add_u32 s5, s5, s7")
    e(f"v_add_u32 v{vXO}, s5, v{T+1}")
    e("s_lshr_b32 s4, s2, 3")
    e("s_lshr_b32 s5, s4, 3")
    e("s_lshl_b32 s5, s5, 1")
    e("s_add_u32 s4, s4, s5")
    e("s_and_b32 s4, s4, 7")
    e(f"s_mul_i32 s4, s4, {4*ROT}")
    e(f"s_add_u32 s4, s4, s{sW}")
    e(f"s_lshl_b32 s{sKH}, s4, 16")
    e(f"s_lshl_b32 s{sKW}, s4, 14")
    LEAD = int(os.environ.get("K2L", "12")); P2 = int(os.environ.get("K2P", "0")); PG = int(os.environ.get("K2G", "4"))
    sGJ, sPH, sPW, vPF = 42, 43, 44, 70
    if P2:
        e("s_lshr_b32 s4, s2, 3")
        e(f"s_lshl_b32 s5, s4, 2")
        e(f"s_add_u32 s5, s5, s{sW}")
        e(f"s_and_b32 s6, s{sMB}, 24")
        e("s_lshl_b32 s6, s6, 11")
        e(f"s_lshl_b32 s{sPH}, s5, 16")
        e(f"s_add_u32 s{sPH}, s{sPH}, s6")
        e(f"s_and_b32 s6, s{sNB}, 4")
        e("s_lshl_b32 s6, s6, 11")
        e(f"s_lshl_b32 s{sPW}, s5, 14")
        e(f"s_add_u32 s{sPW}, s{sPW}, s6")
        e(f"s_max_u32 s5, s4, {LEAD}")
        e(f"s_sub_u32 s5, s5, {LEAD}")
        e(f"s_lshr_b32 s{sGJ}, s5, {PG.bit_length()-1}")
        e(f"s_cmp_lt_u32 s4, {D}")
        e(f"s_cselect_b32 s{sGJ}, 99, s{sGJ}")
        e(f"v_lshlrev_b32 v{vPF}, 7, v{vLane}")
    def prefetch(c):
        if not P2: return
        e(f"s_cmp_eq_u32 s{sGJ}, {c}")
        e(f"s_cbranch_scc0 K2_PF{c}")
        e(f"buffer_load_dword v{vPF+1}, v{vPF}, {sr(S_HF,4)}, s{sPH} offen")
        e(f"s_add_u32 s{sPH}, s{sPH}, 8192")
        e(f"buffer_load_dword v{vPF+1}, v{vPF}, {sr(S_W2F,4)}, s{sPW} offen")
        e(f"buffer_load_dword v{vPF+1}, v{vPF}, {sr(S_HF,4)}, s{sPH} offen")
        lab(f"K2_PF{c}")
    e("s_waitcnt lgkmcnt(0)")
    e(f"s_mov_b32 s{S_HF}, s40")
    e(f"s_and_b32 s{S_HF+1}, s41, 0xffff")
    e(f"s_mov_b32 s{S_HF+2}, {HF_BYTES}")
    e(f"s_mov_b32 s{S_HF+3}, 0x00020000")
    e(f"s_add_u32 s{S_W2F}, s40, {W2F_OFF}")
    e(f"s_addc_u32 s{S_W2F+1}, s41, 0")
    e(f"s_and_b32 s{S_W2F+1}, s{S_W2F+1}, 0xffff")
    e(f"s_mov_b32 s{S_W2F+2}, {W2F_BYTES}")
    e(f"s_mov_b32 s{S_W2F+3}, 0x00020000")
    srd(S_X, 36, 2048 * 1024)
    srd(S_O, 38, 2048 * 1024)
    def loads(i):
        b = 16 * (i % D)
        e(f"buffer_load_dwordx4 {fr(b,4)}, v{vW0}, {sr(S_W2F,4)}, s{sKW} offen{SC}")
        e(f"buffer_load_dwordx4 {fr(b+4,4)}, v{vH0}, {sr(S_HF,4)}, s{sKH} offen{SC}")
        e(f"buffer_load_dwordx4 {fr(b+8,4)}, v{vH1}, {sr(S_HF,4)}, s{sKH} offen{SC}")
        e(f"buffer_load_dwordx4 {fr(b+12,4)}, v{vW1}, {sr(S_W2F,4)}, s{sKW} offen{SC}")
        e(f"s_add_u32 s{sKW}, s{sKW}, {4*16384}")
        if ROT:
            e(f"s_sub_u32 s3, s{sKW}, {120*16384}")
            e(f"s_cmp_ge_u32 s{sKW}, {120*16384}")
            e(f"s_cselect_b32 s{sKW}, s3, s{sKW}")
        e(f"s_lshl_b32 s{sKH}, s{sKW}, 2")
    for q in range(4):
        e(f"buffer_load_dwordx2 {vr(XR+2*q,2)}, v{vXO}, {sr(S_X,4)}, 0 offen offset:{16*q}")
    if FUSE:
        e(f"s_cmp_lg_u32 s{sW}, 0")
        e("s_cbranch_scc1 K2_GO")
        e(f"v_lshlrev_b32 v{T+1}, 2, v{vLane}")
        e(f"v_and_b32 v{T+1}, 63, v{T+1}")
        e(f"s_lshr_b32 s4, s{sMB}, 1")
        e("s_lshl_b32 s4, s4, 7")
        e("s_add_u32 s4, s4, 4096")
        e("s_mov_b32 s3, 0")
        lab("K2_POLL")
        e(f"buffer_load_dword v{T+3}, v{T+1}, s[44:47], s4 offen sc1")
        e("s_add_u32 s3, s3, 1")
        e("s_waitcnt vmcnt(0)")
        e(f"v_cmp_ne_u32 vcc, s100, v{T+3}")
        e("s_cmp_gt_u32 s3, 0x8000")
        e("s_cbranch_scc1 K2_GO")
        e("s_cbranch_vccz K2_GO")
        e("s_sleep 1")
        e("s_branch K2_POLL")
        lab("K2_GO")
        e("s_barrier")
    PPOS = int(os.environ.get("K2Q", "2"))
    for i in range(D):
        loads(i)
        if i == PPOS - 1: prefetch(0)
    issued = D
    stamp(1)
    for i in range(NK):
        b = 16 * (i % D)
        out = 4 * (issued - i - 1)
        if i == NK - 6:
            pass
        e(f"s_waitcnt vmcnt({min(63, out + 2)})")
        c = (lambda r: "0") if i == 0 else (lambda r: vr(r, 16))
        e(f"v_mfma_f32_32x32x16_bf16 {vr(ACC,16)}, {fr(b,4)}, {fr(b+4,4)}, {c(ACC)}")
        e(f"s_waitcnt vmcnt({min(63, out + 1)})")
        e(f"v_mfma_f32_32x32x16_bf16 {vr(ACC+32,16)}, {fr(b,4)}, {fr(b+8,4)}, {c(ACC+32)}")
        e(f"s_waitcnt vmcnt({out})")
        e(f"v_mfma_f32_32x32x16_bf16 {vr(ACC+16,16)}, {fr(b+12,4)}, {fr(b+4,4)}, {c(ACC+16)}")
        e(f"v_mfma_f32_32x32x16_bf16 {vr(ACC+48,16)}, {fr(b+12,4)}, {fr(b+8,4)}, {c(ACC+48)}")
        if i in (0, 7, 14, 22): stamp(2 + (0, 7, 14, 22).index(i))
        if issued < NK:
            loads(issued); issued += 1
        if i % PG == PG - 1 and (i + 1) // PG <= (31 - LEAD) // PG: prefetch((i + 1) // PG)
    stamp(6)
    for a in range(1, 4):
        e(f"s_xor_b32 s3, s{sW}, {a}")
        e("s_mul_i32 s3, s3, 12288")
        e(f"s_add_u32 s3, s3, {(a-1)*4096}")
        e(f"v_add_u32 v{T+a}, s3, v{T}")
    e(f"s_mul_i32 s3, s{sW}, 12288")
    e(f"v_add_u32 v{T+4}, s3, v{T}")
    e("s_nop 7")
    for a in (2, 1, 3):
        for q in range(4):
            e(f"ds_write_b128 v{T+a}, {vr(ACC+16*a+4*q,4)} offset:{1024*q}")
    e("s_waitcnt lgkmcnt(0)")
    e("s_barrier")
    for s in range(3):
        for q in range(4):
            e(f"ds_read_b128 {vr(RD+16*s+4*q,4)}, v{T+4} offset:{4096*s+1024*q}")
    e("s_waitcnt vmcnt(0)")
    for q in range(4):
        for i in range(2):
            e(f"v_lshlrev_b32 v{T+8}, 16, v{XR+2*q+i}")
            e(f"v_and_b32 v{T+9}, 0xffff0000, v{XR+2*q+i}")
            e(f"v_add_f32 v{ACC+4*q+2*i}, v{ACC+4*q+2*i}, v{T+8}")
            e(f"v_add_f32 v{ACC+4*q+2*i+1}, v{ACC+4*q+2*i+1}, v{T+9}")
    for s in range(3):
        e(f"s_waitcnt lgkmcnt({8-4*s})")
        for r in range(16):
            e(f"v_add_f32 v{ACC+r}, v{ACC+r}, v{RD+16*s+r}")
    for q in range(4):
        e(f"v_cvt_pk_bf16_f32 v{XR+2*q}, v{ACC+4*q}, v{ACC+4*q+1}")
        e(f"v_cvt_pk_bf16_f32 v{XR+2*q+1}, v{ACC+4*q+2}, v{ACC+4*q+3}")
    for q in range(4):
        e(f"buffer_store_dwordx2 {vr(XR+2*q,2)}, v{vXO}, {sr(S_O,4)}, 0 offen offset:{16*q}")
    stamp(7)
    if STAMP: e("s_waitcnt vmcnt(0)")
    stamp(8)
    stamp_flush(40, 0x1100000, sW)
    if not FUSE:
        lab("K2_END")
        e("s_endpgm")


NL = int(os.environ.get("P2NL", "6")); LB2 = 40960
P2K = [0]
def p2_setup(sW, vLane):
    sMB, sNB, sKH, sKW = 16, 17, 18, 19
    vW = 254
    e(f"v_lshlrev_b32 v{vW}, 4, v{vLane}")
    e("s_and_b32 s3, s2, 7")
    e("s_lshr_b32 s4, s2, 3")
    if os.environ.get("P2MAP", "1") == "1":
        e("s_lshl_b32 s5, s3, 2")
        e("s_and_b32 s6, s4, 3")
        e(f"s_add_u32 s{sMB}, s5, s6")
        e(f"s_lshr_b32 s{sNB}, s4, 2")
    else:
        e("s_and_b32 s5, s3, 1")
        e("s_lshl_b32 s5, s5, 1")
        e("s_bfe_u32 s6, s3, 0x10001")
        e("s_add_u32 s5, s5, s6")
        e("s_lshl_b32 s5, s5, 3")
        e("s_and_b32 s6, s4, 7")
        e(f"s_add_u32 s{sMB}, s5, s6")
        e("s_lshr_b32 s5, s3, 2")
        e("s_lshl_b32 s5, s5, 2")
        e("s_lshr_b32 s6, s4, 3")
        e(f"s_add_u32 s{sNB}, s5, s6")
    e(f"s_lshl_b32 s6, s{sNB}, 11")
    e(f"v_add_u32 v{vW}, s6, v{vW}")
    e(f"s_lshl_b32 s{sKW}, s{sW}, 14")
    e(f"s_mul_i32 s{sKH}, s{sW}, {NL*2048}")
    e(f"s_add_u32 s{sKH}, s{sKH}, {LB2}")
def p2_dma(n, S_W2F):
    sKH, sKW, vW = 18, 19, 254
    for _ in range(n):
        if P2K[0] >= NL: return
        e(f"s_add_u32 m0, s{sKH}, {P2K[0]*2048}")
        e("s_nop 0")
        e(f"buffer_load_dwordx4 v{vW}, {sr(S_W2F,4)}, s{sKW} offen sc1 lds")
        e(f"s_add_u32 m0, s{sKH}, {P2K[0]*2048+1024}")
        e(f"s_add_u32 s{sKW}, s{sKW}, 1024")
        e(f"buffer_load_dwordx4 v{vW}, {sr(S_W2F,4)}, s{sKW} offen sc1 lds")
        e(f"s_add_u32 s{sKW}, s{sKW}, {8*16384-1024}")
        P2K[0] += 1

def phase2(sW, sRB, sCG, S_HF, S_W2F, S_FL, vL16src):
    S_X, S_O = 8, 12
    sMB, sNB, sKH, sKW = 16, 17, 18, 19
    ACC, WF, HR, XR = 0, 64, 184, 240
    vL16, vH, vW, vXO, P1, P2_ = 248, 249, 254, 251, 252, 253
    NK = 15; D = 7; PRE = int(os.environ.get("P2PRE", "2"))
    e(f"v_mov_b32 v{vL16}, v{vL16src}")
    def wl(i):
        e(f"buffer_load_dwordx4 {vr(WF+8*i,4)}, v{vW}, {sr(S_W2F,4)}, s{sKW} offen sc1")
        e(f"buffer_load_dwordx4 {vr(WF+8*i+4,4)}, v{vW}, {sr(S_W2F,4)}, s{sKW} offen offset:1024 sc1")
        e(f"s_add_u32 s{sKW}, s{sKW}, {8*16384}")
    e("s_nop 1")
    for i in range(NL, NL + PRE): wl(i)
    e(f"v_add_u32 v{P1}, s{sKH}, v{vL16}")
    e(f"s_waitcnt vmcnt({2*PRE})")
    for i in range(2 * NL):
        e(f"ds_read_b128 {vr(WF+4*i,4)}, v{P1} offset:{1024*i}")
    e("s_waitcnt lgkmcnt(0)")
    e("s_barrier")
    stamp(0)
    e(f"s_cmp_lg_u32 s{sW}, 0")
    e("s_cbranch_scc1 P2_NF")
    e(f"s_lshl_b32 s3, s{sRB}, 7")
    e(f"s_lshl_b32 s4, s{sCG}, 2")
    e("s_add_u32 s3, s3, s4")
    e("s_add_u32 s3, s3, 4096")
    e(f"v_mov_b32 v{P1}, s3")
    e(f"v_mov_b32 v{P2_}, s100")
    e("s_mov_b64 exec, 1")
    e(f"buffer_store_dword v{P2_}, v{P1}, {sr(S_FL,4)}, 0 offen sc1")
    e("s_mov_b64 exec, -1")
    lab("P2_NF")
    for i in range(NL + PRE, NK): wl(i)
    srd(S_X, 36, 2048 * 1024)
    srd(S_O, 96, 2048 * 1024)
    e(f"s_lshl_b32 s6, s{sMB}, 11")
    e(f"v_add_u32 v{vH}, s6, v{vL16}")
    e(f"s_lshl_b32 s{sKH}, s{sW}, 16")
    e(f"v_bfe_u32 v{P1}, v{vL16}, 4, 5")
    e(f"v_lshrrev_b32 v{vXO}, 9, v{vL16}")
    e(f"v_lshlrev_b32 v{P1}, 10, v{P1}")
    e(f"v_lshl_add_u32 v{vXO}, v{vXO}, 3, v{P1}")
    e(f"s_lshl_b32 s3, s{sMB}, 16")
    e(f"s_lshr_b32 s4, s{sW}, 2")
    e("s_lshl_b32 s4, s4, 15")
    e("s_add_u32 s3, s3, s4")
    e(f"s_lshl_b32 s4, s{sNB}, 7")
    e("s_add_u32 s3, s3, s4")
    e(f"s_and_b32 s4, s{sW}, 3")
    e("s_lshl_b32 s4, s4, 5")
    e("s_add_u32 s3, s3, s4")
    e(f"v_add_u32 v{vXO}, s3, v{vXO}")
    for q in range(2):
        e(f"buffer_load_dwordx2 {vr(XR+2*q,2)}, v{vXO}, {sr(S_X,4)}, 0 offen offset:{16*q}")
    stamp(1)
    e(f"s_cmp_lg_u32 s{sW}, 0")
    e("s_cbranch_scc1 P2_GO")
    e(f"v_bfe_u32 v{P1}, v{vL16}, 2, 6")
    e(f"s_lshr_b32 s4, s{sMB}, 1")
    e("s_lshl_b32 s4, s4, 7")
    e("s_add_u32 s4, s4, 4096")
    e("s_mov_b32 s3, 0")
    lab("P2_POLL")
    e(f"buffer_load_dword v{P2_}, v{P1}, {sr(S_FL,4)}, s4 offen sc1")
    e("s_add_u32 s3, s3, 1")
    e("s_waitcnt vmcnt(0)")
    e(f"v_cmp_ne_u32 vcc, s100, v{P2_}")
    e("s_cmp_gt_u32 s3, 0x8000")
    e("s_cbranch_scc1 P2_GO")
    e("s_cbranch_vccz P2_GO")
    e("s_sleep 1")
    e("s_branch P2_POLL")
    lab("P2_GO")
    e("s_barrier")
    stamp(2)
    def hl(i):
        b = HR + 8 * (i % D)
        e(f"buffer_load_dwordx4 {vr(b,4)}, v{vH}, {sr(S_HF,4)}, s{sKH} offen sc1")
        e(f"buffer_load_dwordx4 {vr(b+4,4)}, v{vH}, {sr(S_HF,4)}, s{sKH} offen offset:1024 sc1")
        e(f"s_add_u32 s{sKH}, s{sKH}, {8*65536}")
    for i in range(D): hl(i)
    issued = D
    stamp(3)
    for i in range(NK):
        b = HR + 8 * (i % D); w = WF + 8 * i
        out = 2 * (issued - i - 1)
        c = (lambda r: "0") if i == 0 else (lambda r: vr(r, 16))
        e(f"s_waitcnt vmcnt({out + 1})")
        e(f"v_mfma_f32_32x32x16_bf16 {vr(ACC,16)}, {vr(w,4)}, {vr(b,4)}, {c(ACC)}")
        e(f"v_mfma_f32_32x32x16_bf16 {vr(ACC+16,16)}, {vr(w+4,4)}, {vr(b,4)}, {c(ACC+16)}")
        e(f"s_waitcnt vmcnt({out})")
        e(f"v_mfma_f32_32x32x16_bf16 {vr(ACC+32,16)}, {vr(w,4)}, {vr(b+4,4)}, {c(ACC+32)}")
        e(f"v_mfma_f32_32x32x16_bf16 {vr(ACC+48,16)}, {vr(w+4,4)}, {vr(b+4,4)}, {c(ACC+48)}")
        if i == 7: stamp(4)
        if issued < NK:
            hl(issued); issued += 1
    stamp(6)
    e(f"s_lshl_b32 s3, s{sW}, 10")
    e(f"v_add_u32 v{P1}, s3, v{vL16}")
    e(f"v_add_u32 v{vW}, 0x10000, v{P1}")
    e(f"s_lshl_b32 s3, s{sW}, 14")
    e(f"v_add_u32 v{P2_}, s3, v{vL16}")
    e("s_nop 7")
    for g in range(16):
        e(f"ds_write_b128 v{P1 if g < 8 else vW}, {vr(ACC+4*g,4)} offset:{(g % 8)*8192}")
    e("s_waitcnt lgkmcnt(0)")
    e("s_barrier")
    RD = 64
    for sidx in range(8):
        for q in range(2):
            e(f"ds_read_b128 {vr(RD+8*sidx+4*q,4)}, v{P2_} offset:{8192*q+1024*sidx}")
    for i in range(4):
        e(f"v_lshlrev_b32 v{2*i}, 16, v{XR+i}")
        e(f"v_and_b32 v{2*i+1}, 0xffff0000, v{XR+i}")
    for sidx in range(8):
        e(f"s_waitcnt lgkmcnt({14-2*sidx})")
        for r in range(0, 8, 2):
            e(f"v_pk_add_f32 {vr(r,2)}, {vr(r,2)}, {vr(RD+8*sidx+r,2)}")
    for i in range(4):
        e(f"v_cvt_pk_bf16_f32 v{XR+i}, v{2*i}, v{2*i+1}")
    for q in range(2):
        e(f"buffer_store_dwordx2 {vr(XR+2*q,2)}, v{vXO}, {sr(S_O,4)}, 0 offen offset:{16*q}")
    stamp(7)
    if STAMP: e("s_waitcnt vmcnt(0)")
    stamp(8)
    stamp_flush(50, 0x1100000, sW)

def desc(name, nv, acc):
    L.append(f""".amdhsa_kernel {name}
  .amdhsa_next_free_vgpr {nv}
  .amdhsa_next_free_sgpr 102
  .amdhsa_accum_offset {acc}
  .amdhsa_group_segment_fixed_size 0
  .amdhsa_kernarg_size 80
  .amdhsa_user_sgpr_count 2
  .amdhsa_user_sgpr_kernarg_segment_ptr 1
  .amdhsa_system_sgpr_workgroup_id_x 1
.end_amdhsa_kernel""")

L.append(HEADER.rstrip())
L.append("; @launch kernel=k1_kernel grid=(256,1,1) block=(512,1,1) lds=163840")
if not FUSE: L.append("; @launch kernel=k2_kernel grid=(256,1,1) block=(256,1,1) lds=49152")
L.append('.amdgcn_target "amdgcn-amd-amdhsa--gfx950"\n.text')
kernel1()
if not FUSE: kernel2()
L.append('.section .rodata,"a"\n.p2align 6')
desc("k1_kernel", 256, 256)
if not FUSE:
    L.append(".p2align 6")
    desc("k2_kernel", 496, 256)
open(OUT, "w").write("\n".join(x for x in L if x is not None) + "\n")
print("wrote", OUT, len(L), "lines")
```

```python
import sys
OUT = sys.argv[1] if len(sys.argv) > 1 else "parallel_sum__sliding_local_dilated__glu_gated_swiglu__prompt.s"
L = []
import os
EXP = os.environ.get("EXP", "")
INLOOP = [False]
FUSE = int(os.environ.get("FUSE", "1"))
SC = " sc1" if FUSE else ""
def e(s):
    if INLOOP[0]:
        if "nodma" in EXP and ("offen lds" in s): return
        if "nomfma" in EXP and s.startswith("v_mfma"): return
        if "nolds" in EXP and s.startswith("ds_read"): return
        if "novalu" in EXP and (s.startswith("v_lshlrev_b32") or s.startswith("v_and_b32") or s.startswith("v_add_f32") or s.startswith("v_fmac")): return
        if "nox" in EXP and ("offen lds" in s) and "s[8:11]" in s: return
        if "noqkv" in EXP and ("offen lds" in s) and "s[20:23]" in s: return
        if "now13" in EXP and ("offen lds" in s) and ("s[12:15]" in s or "s[16:19]" in s): return
    L.append("    " + s)
def lab(s): L.append(s + ":")
def capture(fn):
    n = len(L); fn(); r = [x.strip() for x in L[n:]]; del L[n:]
    return r
def vr(b, n): return f"v[{b}:{b+n-1}]"
def ar(b, n): return f"a[{b}:{b+n-1}]"
def sr(b, n): return f"s[{b}:{b+n-1}]"

WSLOT = 18496; NW = 3
W1OFF = 0; QKVOFF = 6144; W3OFF = 12320
XBASE = 92544; XSLOT = 18432; NX = 2
MISC = XBASE + 3 * XSLOT
ONES = MISC
TS = MISC + 4096
CS = MISC + 12288
CS9 = CS + 1024
RS = CS9 + 512
SQ = MISC + 1024
HSC = RS + 512
HSC = TS
assert RS + 512 <= 163840
STG = 0; SPITCH = 272
TAGL = RS + 512; FLG = 0xC00000
HF_BYTES = 118 * 64 * 1024
W2F_OFF = 0x800000; W2F_BYTES = 118 * 16 * 1024
LOG2E = 1.4426950408889634
import struct
def f2u(x): return struct.unpack("<I", struct.pack("<f", x))[0]

HEADER = open("parallel_sum__sliding_local_dilated__glu_gated_swiglu__prompt.s.ref").read().split("; Override launch")[0]

def srd(d, base, nbytes):
    e(f"s_mov_b32 s{d}, s{base}")
    e(f"s_and_b32 s{d+1}, s{base+1}, 0xffff")
    e(f"s_mov_b32 s{d+2}, {nbytes}")
    e(f"s_mov_b32 s{d+3}, 0x00020000")

import os
STAMP = int(os.environ.get("STAMP", "0"))
def stamp(idx, sbase=90):
    if not STAMP: return
    e(f"s_memrealtime s[{sbase}:{sbase+1}]")
    e(f"s_memtime s[{sbase+2}:{sbase+3}]")
    e("s_waitcnt lgkmcnt(0)")
    e(f"v_writelane_b32 v{STV}, s{sbase}, {2*idx}")
    e(f"v_writelane_b32 v{STV}, s{sbase+2}, {2*idx+1}")
def stamp_flush(wsreg, off, swave, lanereg_x16=None):
    if not STAMP: return
    e(f"s_add_u32 s92, s{wsreg}, {off}")
    e(f"s_addc_u32 s93, s{wsreg+1}, 0")
    e("s_and_b32 s93, s93, 0xffff")
    e("s_mov_b32 s94, 0x100000")
    e("s_mov_b32 s95, 0x00020000")
    e(f"s_lshl_b32 s90, s2, 3")
    e(f"s_add_u32 s90, s90, s{swave}")
    e("s_lshl_b32 s90, s90, 8")
    e("v_mbcnt_lo_u32_b32 v1, -1, 0")
    e("v_mbcnt_hi_u32_b32 v1, -1, v1")
    e("v_lshlrev_b32 v1, 2, v1")
    e(f"buffer_store_dword v{STV}, v1, s[92:95], s90 offen")
STV = 255
def weave(mf, va):
    out = []
    n = len(mf);
    per = [len(va) * (i + 1) // n - len(va) * i // n for i in range(n)]
    k = 0
    for i, m in enumerate(mf):
        out.append(m)
        out.extend(va[k:k + per[i]]); k += per[i]
    return out

def kernel1():
    ROT1 = int(os.environ.get("K1ROT", "1"))
    S_X, S_W1, S_W3, S_QKV, S_WT, S_HF, S_W2F = 8, 12, 16, 20, 24, 28, 32
    sW, sG, sMH, sRB, sCG, sM0, sTF, sTH, sFW, sOF, sOH, sHSEL, sHAS = 52, 53, 54, 55, 56, 57, 58, 59, 60, 61, 62, 63, 64
    sRWA, sRWB, sRX, sKC, sKD, sKO1, sKOQ, sKOX, sIT, sT0, sT1, sT2, sT3 = 65, 66, 67, 68, 69, 70, 71, 72, 73, 74, 75, 76, 77
    sDMA, sMT0, sMT1, sID = 78, 79, 80, 81
    sDWs, sDXs = 83, 84
    sMK = 86
    sWPW, sWPX, sWPD = 88, 89, 85
    ACC = 0
    ACC9 = 64
    HST = 68
    CSA, CS9A, SQA = 80, 84, 88
    FX = [92, 100]
    FW = [108, 120]
    FHX, FHX1, FHW, FSQ, SEL = 132, 136, 140, 144, 148
    vLane, vTid = 152, 153
    vDW13, vDQKV, vDX = 154, 155, 156
    vXa0, vXa1 = 159, 160
    vWA, vWB, vB9, vM9 = 161, 162, 163, 164
    vHXa, vHWa, vMH1, vCH1, vSQa = 165, 166, 167, 168, 169
    aX = 170
    aWA, aWB, a9 = 178, 179, 180
    aHX, aHX1, aHW, aSQ = 181, 182, 183, 184
    T = 186
    WT = 200
    vTA1, vTA2 = 204, 205
    vTMP = 206
    PF = int(os.environ.get("PF", "0")); LA = int(os.environ.get("LA", "2")); PFO = int(os.environ.get("PFO", "1")); PFB = int(os.environ.get("PFB", "2")); PV = 210

    L.append(".globl k1_kernel\n.p2align 8\n.type k1_kernel,@function\nk1_kernel:")
    e("s_cmp_ge_u32 s2, 256")
    e("s_cbranch_scc1 K1_END")
    e("s_load_dwordx4 s[36:39], s[0:1], 0")
    e("s_load_dwordx2 s[40:41], s[0:1], 16")
    e("s_load_dwordx4 s[44:47], s[0:1], 32")
    e("s_load_dwordx2 s[48:49], s[0:1], 48")
    e("s_load_dwordx2 s[50:51], s[0:1], 72")
    if FUSE: e("s_load_dwordx4 s[96:99], s[0:1], 56")
    stamp(0)
    e(f"v_mov_b32 v{vTid}, v0")
    if FUSE:
        for r_ in (251, 244, 245): e(f"v_mov_b32 v{r_}, 0")
    e(f"v_and_b32 v{vLane}, 63, v0")
    e(f"v_lshrrev_b32 v{T}, 6, v0")
    e("s_and_b32 s3, s2, 7")
    e(f"v_readfirstlane_b32 s{sW}, v{T}")
    e("s_lshr_b32 s4, s2, 3")
    e("s_and_b32 s5, s3, 1")
    e("s_lshl_b32 s5, s5, 3")
    e("s_and_b32 s6, s4, 7")
    e(f"s_add_u32 s{sRB}, s5, s6")
    e("s_lshr_b32 s5, s3, 1")
    e("s_lshl_b32 s5, s5, 2")
    e("s_lshr_b32 s6, s4, 3")
    e(f"s_add_u32 s{sCG}, s5, s6")
    RC, RR, RXC = [int(t) for t in os.environ.get("K1R", "4,4,1").split(",")]
    e(f"s_mul_i32 s6, s6, {RC}")
    e(f"s_mul_i32 s5, s4, {RR}")
    e("s_add_u32 s6, s6, s5")
    RA, RB = [int(t) for t in os.environ.get("K1X", "2,2").split(",")]
    e("s_and_b32 s5, s3, 1")
    e(f"s_mul_i32 s5, s5, {RA}")
    e("s_add_u32 s6, s6, s5")
    e("s_lshr_b32 s5, s3, 1")
    e(f"s_mul_i32 s5, s5, {RB}")
    e("s_add_u32 s6, s6, s5")
    e(f"s_and_b32 s{sKD}, s6, 7")
    e(f"s_lshl_b32 s{sKC}, s{sKD}, 1")
    e(f"s_lshl_b32 s{sM0}, s{sRB}, 7")
    e(f"s_and_b32 s{sG}, s{sW}, 3")
    e(f"s_lshr_b32 s{sMH}, s{sW}, 2")
    e(f"s_lshr_b32 s3, s{sCG}, 1")
    e("s_mul_i32 s3, s3, 11")
    e(f"s_and_b32 s4, s{sCG}, 1")
    e(f"s_mul_i32 s5, s{sCG}, 5")
    e("s_add_u32 s5, s5, 6")
    e(f"s_cmp_lt_u32 s{sCG}, 12")
    e("s_cselect_b32 s3, s3, s5")
    e(f"s_cselect_b32 s{sHSEL}, s4, 0")
    e(f"s_cselect_b32 s{sHAS}, 1, 0")
    e(f"s_add_u32 s{sTH}, s3, 5")
    e(f"s_mul_i32 s4, s{sHSEL}, 6")
    e(f"s_add_u32 s{sTF}, s3, s4")
    e(f"s_lshl_b32 s5, s3, 5")
    e(f"s_mul_i32 s4, s{sHSEL}, 176")
    e(f"s_add_u32 s{sFW}, s5, s4")
    e(f"s_lshl_b32 s{sOF}, s{sHSEL}, 4")
    e(f"s_mul_i32 s4, s{sHSEL}, 160")
    e(f"s_sub_u32 s{sOH}, 160, s4")
    e(f"v_mul_u32_u24 v{T}, 43691, v{vTid}")
    e(f"v_lshrrev_b32 v{T}, 19, v{T}")
    e(f"v_mul_u32_u24 v{T+1}, 12, v{T}")
    e(f"v_sub_u32 v{T+1}, v{vTid}, v{T+1}")
    e(f"v_mul_u32_u24 v{vDW13}, 2752, v{T}")
    e(f"v_lshl_add_u32 v{vDW13}, v{T+1}, 4, v{vDW13}")
    e(f"v_add_u32 v{vDW13}, s{sFW}, v{vDW13}")
    e(f"v_mul_u32_u24 v{vDQKV}, 3072, v{T}")
    e(f"v_lshrrev_b32 v{T+2}, 2, v{T+1}")
    e(f"v_lshl_add_u32 v{vDQKV}, v{T+2}, 10, v{vDQKV}")
    e(f"v_and_b32 v{T+2}, 3, v{T+1}")
    e(f"v_lshl_add_u32 v{vDQKV}, v{T+2}, 4, v{vDQKV}")
    e(f"s_lshl_b32 s3, s{sCG}, 6")
    e(f"v_add_u32 v{vDQKV}, s3, v{vDQKV}")
    e(f"s_mul_i32 s3, s{sW}, 24")
    e(f"v_lshrrev_b32 v{T}, 3, v{vLane}")
    e(f"v_add_u32 v{T}, s3, v{T}")
    e(f"v_and_b32 v{T+1}, 7, v{vLane}")
    e(f"s_sub_u32 s4, s{sM0}, 16")
    e(f"v_bfe_u32 v{T+3}, v{T}, 1, 3")
    e(f"v_xor_b32 v{T+3}, v{T+3}, v{T+1}")
    e(f"v_add_u32 v{T+2}, s4, v{T}")
    e(f"v_lshlrev_b32 v{T+4}, 10, v{T+2}")
    e(f"v_lshl_add_u32 v{vDX}, v{T+3}, 4, v{T+4}")
    e(f"v_xor_b32 v{vDX+1}, 64, v{vDX}")
    e(f"v_add_u32 v{vDX+1}, 0x2000, v{vDX+1}")
    e(f"v_add_u32 v{vDX+2}, 0x4000, v{vDX}")
    e(f"v_min_u32 v{vDX}, 0x80000000, v{vDX}")
    e(f"v_min_u32 v{vDX+1}, 0x80000000, v{vDX+1}")
    e(f"s_lshl_b32 s{sID}, s2, 3")
    e(f"s_add_u32 s{sID}, s{sID}, s{sW}")
    e(f"s_lshr_b32 s3, s{sID}, 4")
    e(f"s_and_b32 s4, s{sID}, 15")
    e("s_sub_u32 s5, s3, 32")
    e("s_cmp_lt_u32 s3, 32")
    e("s_cselect_b32 s5, s3, s5")
    e(f"s_cselect_b32 s{sT0}, 1, 0")
    e("s_lshl_b32 s5, s5, 14")
    e("s_lshl_b32 s4, s4, 6")
    e("s_add_u32 s5, s5, s4")
    e(f"v_lshrrev_b32 v{T}, 2, v{vLane}")
    e(f"v_lshlrev_b32 v{T}, 10, v{T}")
    e(f"v_and_b32 v{T+1}, 3, v{vLane}")
    e(f"v_lshl_add_u32 v{T}, v{T+1}, 4, v{T}")
    e(f"v_add_u32 v{T+6}, s5, v{T}")
    e(f"s_lshl_b32 s{sWPW}, s{sW}, 10")
    e(f"s_mul_i32 s{sWPX}, s{sW}, 3072")
    e(f"s_add_u32 s{sWPX}, s{sWPX}, {XBASE}")
    e(f"s_mov_b32 s{sDWs}, s{sWPW}")
    e(f"s_mov_b32 s{sWPD}, s{sWPW}")
    e(f"s_mov_b32 s{sDXs}, s{sWPX}")
    e("s_waitcnt lgkmcnt(0)")
    srd(S_X, 36, 2048 * 1024)
    srd(S_QKV, 38, 512 * 3072)
    srd(S_W1, 44, 512 * 2752)
    srd(S_W3, 46, 512 * 2752)
    def dmaW():
        e(f"s_mul_i32 s{sKO1}, s{sKC}, {32*2752}")
        e(f"s_mul_i32 s{sKOQ}, s{sKC}, {32*3072}")
        e(f"s_add_u32 m0, s{sDWs}, {W1OFF}")
        e(f"s_add_u32 s{sKC}, s{sKC}, 1")
        e(f"buffer_load_dwordx4 v{vDW13}, {sr(S_W1,4)}, s{sKO1} offen lds")
        e(f"s_add_u32 m0, s{sDWs}, {QKVOFF}")
        e(f"s_and_b32 s{sKC}, s{sKC}, 15")
        e(f"buffer_load_dwordx4 v{vDQKV}, {sr(S_QKV,4)}, s{sKOQ} offen lds")
        e(f"s_add_u32 m0, s{sDWs}, {W3OFF}")
        e(f"s_add_u32 s{sDWs}, s{sDWs}, {WSLOT}")
        e(f"buffer_load_dwordx4 v{vDW13}, {sr(S_W3,4)}, s{sKO1} offen lds")
        e(f"s_cmp_ge_u32 s{sDWs}, {NW*WSLOT}")
        e(f"s_cselect_b32 s{sDWs}, s{sWPD}, s{sDWs}")
    def dmaX():
        e(f"s_lshl_b32 s{sKOX}, s{sKD}, 7")
        e(f"s_add_u32 m0, s{sDXs}, 0")
        e(f"s_add_u32 s{sKD}, s{sKD}, 1")
        e(f"buffer_load_dwordx4 v{vDX}, {sr(S_X,4)}, s{sKOX} offen lds")
        e(f"s_add_u32 m0, s{sDXs}, 1024")
        e(f"s_and_b32 s{sKD}, s{sKD}, 7")
        e(f"buffer_load_dwordx4 v{vDX+1}, {sr(S_X,4)}, s{sKOX} offen lds")
        e(f"s_add_u32 m0, s{sDXs}, 2048")
        e(f"s_add_u32 s{sDXs}, s{sDXs}, {XSLOT}")
        e(f"buffer_load_dwordx4 v{vDX+2}, {sr(S_X,4)}, s{sKOX} offen lds")
        e(f"s_cmp_ge_u32 s{sDXs}, {XBASE+NX*XSLOT}")
        e(f"s_cselect_b32 s{sDXs}, s{sWPX}, s{sDXs}")
    e(f"s_cmp_eq_u32 s{sT0}, 1")
    e(f"s_cselect_b32 s{S_WT}, s40, s48")
    e(f"s_cselect_b32 s{S_WT+1}, s41, s49")
    e(f"s_mov_b32 s3, {1376*1024}")
    e(f"s_cselect_b32 s{S_WT+2}, {512*1024}, s3")
    e(f"s_and_b32 s{S_WT+1}, s{S_WT+1}, 0xffff")
    e(f"s_mov_b32 s{S_WT+3}, 0x00020000")
    e(f"buffer_load_dwordx4 {vr(WT,4)}, v{T+6}, {sr(S_WT,4)}, 0 offen")
    e(f"s_cmp_lt_u32 s{sW}, 6")
    e(f"s_cselect_b32 s{sDMA}, 1, 0")
    e("s_cbranch_scc0 K1_PRO_PF")
    dmaW(); dmaX()
    if PF:
        e("s_branch K1_PRO_NODMA0")
    if FUSE and not PF: e("s_branch K1_PRO_NODMA0")
    lab("K1_PRO_PF")
    if FUSE:
        srd(44, 98, 256)
        e(f"s_lshl_b32 s3, s{sCG}, 6")
        e(f"s_lshl_b32 s4, s{sRB}, 2")
        e("s_add_u32 s3, s3, s4")
        e("v_mov_b32 v244, s3")
        e(f"v_lshlrev_b32 v245, 4, v{vLane}")
        e("s_lshr_b32 s3, s2, 3")
        e("s_lshl_b32 s3, s3, 3")
        e(f"s_add_u32 s3, s3, s{sW}")
        e("s_cmp_eq_u32 s3, 7")
        e("s_cbranch_scc0 K1_PRO_NODMA0")
        e("s_memrealtime s[100:101]")
        e("s_waitcnt lgkmcnt(0)")
        e("s_or_b32 s100, s100, 1")
        e("v_mov_b32 v250, s100")
        e("s_mov_b64 exec, 1")
        e("buffer_atomic_cmpswap v[250:251], v251, s[44:47], 0 offen sc1")
        e("s_mov_b64 exec, -1")
    if PF >= 2:
        e(f"v_lshlrev_b32 v{PV}, {PF}, v{vLane}")
        e(f"s_cmp_eq_u32 s{sW}, 6")
        e("s_cbranch_scc1 K1_PRO_PFW")
        e(f"buffer_load_dword v{PV+12}, v{PV}, {sr(S_QKV,4)}, 0 offen")
        e(f"buffer_load_dword v{PV+12}, v{PV}, {sr(S_W3,4)}, 0 offen")
        e("s_branch K1_PRO_NODMA0")
        lab("K1_PRO_PFW")
        e(f"buffer_load_dword v{PV+12}, v{PV}, {sr(S_W1,4)}, 0 offen")
        e(f"buffer_load_dword v{PV+12}, v{PV}, {sr(S_X,4)}, 0 offen")
    if PF == 1:
        e("s_and_b32 s3, s2, 7")
        e("s_lshr_b32 s4, s2, 3")
        e(f"s_mul_i32 s5, s3, {RXC}")
        e(f"s_add_u32 s5, s5, {PFO}")
        e(f"s_cmp_eq_u32 s{sW}, 6")
        e("s_cbranch_scc1 K1_PRO_PFW")
        e(f"v_lshrrev_b32 v{PV+8}, 5, v{vLane}")
        e(f"v_add_u32 v{PV+8}, s5, v{PV+8}")
        e(f"v_and_b32 v{PV+9}, 31, v{vLane}")
        e("s_and_b32 s6, s3, 1")
        e("s_lshl_b32 s6, s6, 5")
        e("s_add_u32 s6, s6, s4")
        e("s_lshl_b32 s6, s6, 5")
        e(f"v_add_u32 v{PV+9}, s6, v{PV+9}")
        e(f"v_lshlrev_b32 v{PV+9}, 10, v{PV+9}")
        for i in range(4):
            e(f"v_add_u32 v{PV+10}, {2*i}, v{PV+8}")
            e(f"v_and_b32 v{PV+10}, 7, v{PV+10}")
            e(f"v_lshl_add_u32 v{PV+i}, v{PV+10}, 7, v{PV+9}")
            if i < 2: e(f"buffer_load_dword v{PV+12}, v{PV+i}, {sr(S_X,4)}, 0 offen")
        e("s_branch K1_PRO_NODMA0")
        lab("K1_PRO_PFW")
        e(f"v_lshrrev_b32 v{PV+8}, 4, v{vLane}")
        e(f"v_add_u32 v{PV+8}, s5, v{PV+8}")
        e(f"v_bfe_u32 v{PV+9}, v{vLane}, 3, 1")
        e("s_lshl_b32 s4, s4, 1")
        e(f"v_add_u32 v{PV+9}, s4, v{PV+9}")
        e(f"v_and_b32 v{PV+10}, 7, v{vLane}")
        e(f"v_lshlrev_b32 v{PV+11}, 7, v{PV+10}")
        e(f"v_min_u32 v{PV+11}, 700, v{PV+11}")
        e("s_lshr_b32 s3, s3, 1")
        e("s_mul_i32 s6, s3, 704")
        e(f"v_add_u32 v{PV+11}, s6, v{PV+11}")
        e(f"v_lshrrev_b32 v{PV+13}, 1, v{PV+10}")
        e(f"v_lshlrev_b32 v{PV+13}, 10, v{PV+13}")
        e(f"v_and_b32 v{PV+10}, 1, v{PV+10}")
        e(f"v_lshl_add_u32 v{PV+13}, v{PV+10}, 7, v{PV+13}")
        e("s_lshl_b32 s6, s3, 8")
        e(f"v_add_u32 v{PV+13}, s6, v{PV+13}")
        e("s_movk_i32 s5, 2752")
        e("s_movk_i32 s6, 3072")
        for i in range(2):
            e(f"v_add_u32 v{PV+10}, {4*i}, v{PV+8}")
            e(f"v_and_b32 v{PV+10}, 7, v{PV+10}")
            e(f"v_lshl_add_u32 v{PV+10}, v{PV+10}, 6, v{PV+9}")
            e(f"v_mad_u32_u24 v{PV+2*i}, v{PV+10}, s5, v{PV+11}")
            e(f"v_mad_u32_u24 v{PV+2*i+1}, v{PV+10}, s6, v{PV+13}")
            if i == 0:
                e(f"buffer_load_dword v{PV+12}, v{PV}, {sr(S_W1,4)}, 0 offen")
                e(f"buffer_load_dword v{PV+12}, v{PV+1}, {sr(S_QKV,4)}, 0 offen")
                e(f"buffer_load_dword v{PV+12}, v{PV}, {sr(S_W3,4)}, 0 offen")
    lab("K1_PRO_NODMA0")
    e("s_barrier")
    stamp(2)
    e(f"s_cmp_eq_u32 s{sDMA}, 1")
    e("s_cbranch_scc0 K1_PRO_NODMA1")
    dmaW()
    e("s_branch K1_PRO_DMA1")
    lab("K1_PRO_NODMA1")
    for d in (S_X, S_W1, S_W3, S_QKV): e(f"s_mov_b32 s{d+2}, 0")
    e(f"s_mov_b32 s{sDWs}, {NW*WSLOT}")
    e(f"s_mov_b32 s{sDXs}, {XBASE+NX*XSLOT}")
    e(f"s_mov_b32 s{sWPD}, {NW*WSLOT}")
    e(f"s_mov_b32 s{sWPX}, {XBASE+NX*XSLOT}")
    lab("K1_PRO_DMA1")
    e(f"s_mov_b32 s{S_HF}, s50")
    e(f"s_and_b32 s{S_HF+1}, s51, 0xffff")
    e(f"s_mov_b32 s{S_HF+2}, {HF_BYTES}")
    e(f"s_mov_b32 s{S_HF+3}, 0x00020000")
    e(f"s_add_u32 s{S_W2F}, s50, {W2F_OFF}")
    e(f"s_addc_u32 s{S_W2F+1}, s51, 0")
    e(f"s_and_b32 s{S_W2F+1}, s{S_W2F+1}, 0xffff")
    e(f"s_mov_b32 s{S_W2F+2}, {W2F_BYTES}")
    e(f"s_mov_b32 s{S_W2F+3}, 0x00020000")
    S_FL = 40
    if FUSE:
        e(f"s_add_u32 s{S_FL}, s50, {FLG}")
        e(f"s_addc_u32 s{S_FL+1}, s51, 0")
        e(f"s_and_b32 s{S_FL+1}, s{S_FL+1}, 0xffff")
        e(f"s_mov_b32 s{S_FL+2}, 8192")
        e(f"s_mov_b32 s{S_FL+3}, 0x00020000")
    for i in range(4): e(f"v_mov_b32 v{T+8+i}, 0x3f803f80")
    e(f"v_mov_b32 v{T+4}, {ONES}")
    e(f"ds_write_b128 v{T+4}, {vr(T+8,4)}")
    for o in (768, 3072, 3840):
        e(f"ds_write_b64 v{T+4}, {vr(T+8,2)} offset:{o}")
    e(f"v_and_b32 v{T}, 31, v{vLane}")
    e(f"v_lshrrev_b32 v{T+1}, 5, v{vLane}")
    e(f"v_bfe_u32 v{T+2}, v{vLane}, 1, 3")
    e(f"v_xor_b32 v{T+2}, v{T+2}, v{T+1}")
    e(f"v_lshlrev_b32 v{T+2}, 4, v{T+2}")
    e(f"v_lshl_add_u32 v{T+2}, v{T}, 7, v{T+2}")
    e(f"s_and_b32 s3, s{sG}, 1")
    e(f"s_lshl_b32 s4, s{sMH}, 1")
    e(f"s_add_u32 s{sMT0}, s4, s3")
    e(f"s_xor_b32 s{sMT1}, s{sMT0}, 1")
    e(f"s_lshl_b32 s3, s{sMT0}, 12")
    e(f"s_add_u32 s3, s3, {16*128}")
    e(f"v_add_u32 v{vXa0}, s3, v{T+2}")
    e(f"s_lshl_b32 s3, s{sMT1}, 12")
    e(f"s_add_u32 s3, s3, {16*128}")
    e(f"v_add_u32 v{vXa1}, s3, v{T+2}")
    e(f"v_bfe_u32 v{T}, v{vLane}, 4, 1")
    e(f"v_bfe_u32 v{T+2}, v{vLane}, 2, 2")
    e(f"v_lshl_add_u32 v{T+2}, v{T+1}, 3, v{T+2}")
    e(f"v_mul_u32_u24 v{T+2}, 192, v{T+2}")
    e(f"v_and_b32 v{T+3}, 3, v{vLane}")
    e(f"v_lshl_add_u32 v{T+4}, v{T+3}, 3, v{T+2}")
    e(f"v_lshl_add_u32 v{T+5}, v{T}, 5, v{T+4}")
    e(f"v_add_u32 v{T+5}, {QKVOFF}, v{T+5}")
    e(f"v_mul_u32_u24 v{T+7}, {W3OFF}, v{T}")
    e(f"v_add_u32 v{T+7}, v{T+7}, v{T+4}")
    e(f"v_add_u32 v{T+7}, s{sOF}, v{T+7}")
    for slot, dst in ((0, vWA), (1, vWB)):
        e(f"s_lshl_b32 s3, s{sG}, 1")
        e(f"s_add_u32 s3, s3, {slot}")
        e("s_lshl_b32 s4, s3, 6")
        e("s_sub_u32 s5, s3, 3")
        e("s_lshl_b32 s5, s5, 5")
        e("s_cmp_lt_u32 s3, 3")
        e("s_cselect_b32 s4, s4, s5")
        e(f"s_cselect_b64 {sr(sMK,2)}, -1, 0")
        e(f"v_cndmask_b32 v{dst}, v{T+7}, v{T+5}, {sr(sMK,2)}")
        e(f"v_add_u32 v{dst}, s4, v{dst}")
    e(f"v_lshrrev_b32 v{T+8}, 1, v{T+3}")
    e(f"v_mul_u32_u24 v{T+8}, {W3OFF}, v{T+8}")
    e(f"v_and_b32 v{T+9}, 1, v{T+3}")
    e(f"v_lshl_add_u32 v{T+8}, v{T+9}, 3, v{T+8}")
    e(f"v_add_u32 v{T+8}, v{T+8}, v{T+2}")
    e(f"v_add_u32 v{T+8}, s{sOH}, v{T+8}")
    e(f"v_mov_b32 v{T+9}, {ONES}")
    e(f"v_cmp_eq_u32 vcc, 1, v{T}")
    e(f"v_xor_b32 v{vM9}, 1, v{T}")
    e("s_nop 0")
    e(f"v_cndmask_b32 v{vB9}, v{T+8}, v{T+9}, vcc")
    stamp(3)
    e(f"v_and_b32 v{T}, 15, v{vLane}")
    e(f"v_lshrrev_b32 v{T+1}, 4, v{vLane}")
    e(f"v_bfe_u32 v{T+2}, v{vLane}, 1, 3")
    e(f"v_xor_b32 v{T+2}, v{T+2}, v{T+1}")
    e(f"v_lshlrev_b32 v{T+2}, 4, v{T+2}")
    e(f"v_lshl_add_u32 v{vHXa}, v{T}, 7, v{T+2}")
    e(f"s_lshl_b32 s3, s{sW}, 11")
    e(f"s_add_u32 s3, s3, 2048")
    e(f"v_add_u32 v{vSQa}, s3, v{vHXa}")
    e(f"v_cmp_eq_u32 vcc, 0, v{T}")
    e(f"v_mov_b32 v{T+4}, 0")
    e(f"v_mov_b32 v{T+5}, 1")
    e(f"v_cndmask_b32 v{vCH1}, v{T+4}, v{T+9}, vcc")
    e(f"v_cndmask_b32 v{vMH1}, v{T+5}, v{T+4}, vcc")
    e(f"v_and_b32 v{T+5}, 1, v{T+1}")
    e(f"v_cmp_eq_u32 vcc, v{T+5}, v{T}")
    e(f"v_mov_b32 v{T+5}, 0x3f803f80")
    e("s_nop 0")
    for i in range(4): e(f"v_cndmask_b32 v{SEL+i}, v{T+4}, v{T+5}, vcc")
    e(f"v_bfe_u32 v{T+2}, v{vLane}, 2, 2")
    e(f"v_lshl_add_u32 v{T+2}, v{T+1}, 3, v{T+2}")
    e(f"v_mul_u32_u24 v{T+2}, 192, v{T+2}")
    e(f"v_lshl_add_u32 v{T+2}, v{T+3}, 3, v{T+2}")
    e(f"s_lshl_b32 s3, s{sG}, 5")
    e(f"s_add_u32 s3, s3, {QKVOFF+64}")
    e(f"v_add_u32 v{vHWa}, s3, v{T+2}")
    e(f"v_bfe_u32 v{T}, v{vLane}, 4, 1")
    e(f"v_lshrrev_b32 v{T+1}, 5, v{vLane}")
    e(f"v_bfe_u32 v{T+2}, v{vLane}, 2, 2")
    e(f"s_cmp_eq_u32 s{sT0}, 1")
    e("s_cselect_b32 s3, 3, 2")
    e("s_movk_i32 s4, 512")
    e("s_cselect_b32 s4, 256, s4")
    e(f"v_lshlrev_b32 v{T+1}, s3, v{T+1}")
    e(f"v_add_u32 v{T+1}, v{T+1}, v{T+2}")
    e(f"v_lshlrev_b32 v{T+1}, 6, v{T+1}")
    e(f"v_lshl_add_u32 v{T+1}, v{T}, 5, v{T+1}")
    e(f"v_lshl_add_u32 v{T+1}, v{T+3}, 3, v{T+1}")
    e(f"s_add_u32 s5, s{sWPW}, {TS}")
    e(f"v_add_u32 v{vTA1}, s5, v{T+1}")
    e(f"v_add_u32 v{vTA2}, s4, v{vTA1}")
    for i in range(4): e(f"v_mov_b32 v{96+i}, 0")
    e("s_nop 1")
    for r in (0, 16, 32, 48, 64, 80, 100, 116, 132):
        e(f"v_mfma_f32_32x32x16_bf16 {vr(r,16)}, {vr(96,4)}, {vr(96,4)}, 0")
    e(f"s_mov_b32 s{sRWA}, 0")
    e(f"s_mov_b32 s{sRWB}, {WSLOT}")
    e(f"s_mov_b32 s{sRX}, {XBASE}")
    e(f"s_mov_b32 s{sIT}, 1")
    e(f"s_lshr_b32 s3, s{sG}, 1")
    e(f"s_cmp_eq_u32 s3, s{sMH}")
    e("s_cbranch_scc0 K1_ROLEH")

    uid = [0]
    DL = 6 if LA == 4 else 7
    def adv(sreg, step, lim):
        e(f"s_add_u32 s{sreg}, s{sreg}, {step}")
        e(f"s_sub_u32 s{sT1}, s{sreg}, {lim}")
        e(f"s_cmp_ge_u32 s{sreg}, {lim}")
        e(f"s_cselect_b32 s{sreg}, s{sT1}, s{sreg}")
    def dma_loop(even, role9):
        uid[0] += 1
        lb = f"K1_ND{uid[0]}"
        lim = {4: (6, 6), 3: (7, 6), 2: (7, 7)}[LA][0 if even else 1]
        e(f"s_cmp_{'gt' if lim == DL else 'ge'}_u32 s{sIT}, s{sDMA}")
        e(f"s_cbranch_scc1 {lb}")
        dmaW()
        if even: dmaX()
        lab(lb)
        if even and role9 and PF == 1:
            e(f"s_lshl_b32 s{sT2}, s{sIT}, 3")
            e(f"s_add_u32 s{sT2}, s{sT2}, s{sW}")
            e(f"s_cmp_eq_u32 s{sT2}, {8*PFB+7}")
            e(f"s_cbranch_scc0 {lb}x")
            e(f"buffer_load_dword v{PV+12}, v{PV+2}, {sr(S_X,4)}, 0 offen")
            e(f"buffer_load_dword v{PV+12}, v{PV+3}, {sr(S_X,4)}, 0 offen")
            lab(lb + "x")
            e(f"s_cmp_eq_u32 s{sT2}, {8*PFB+6}")
            e(f"s_cbranch_scc0 {lb}w")
            e(f"buffer_load_dword v{PV+12}, v{PV+2}, {sr(S_W1,4)}, 0 offen")
            e(f"buffer_load_dword v{PV+12}, v{PV+3}, {sr(S_QKV,4)}, 0 offen")
            e(f"buffer_load_dword v{PV+12}, v{PV+2}, {sr(S_W3,4)}, 0 offen")
            lab(lb + "w")
    def vwait(steady, th, n, last0):
        uid[0] += 1
        lb = f"K1_VW{uid[0]}"
        e(f"s_waitcnt vmcnt({steady})")
        e(f"s_cmp_le_u32 s{sIT}, {th}")
        e(f"s_cbranch_scc1 {lb}")
        e(f"s_waitcnt vmcnt({n})")
        if last0:
            e(f"s_cmp_lt_u32 s{sIT}, 8")
            e(f"s_cbranch_scc1 {lb}")
            e("s_waitcnt vmcnt(0)")
        lab(lb)
    def x_addrs():
        r = [f"v_add_u32 v{aX}, s{sRX}, v{vXa0}", f"v_add_u32 v{aX+4}, s{sRX}, v{vXa1}"]
        for ks in range(1, 4):
            r.append(f"v_xor_b32 v{aX+ks}, {32*ks}, v{aX}")
            r.append(f"v_xor_b32 v{aX+4+ks}, {32*ks}, v{aX+4}")
        return r
    def chunk_addrs(srw, c2, role9):
        r = [f"v_add_u32 v{aWA}, s{srw}, v{vWA}", f"v_add_u32 v{aWB}, s{srw}, v{vWB}"]
        if role9:
            r.append(f"v_mad_u32_u24 v{a9}, v{vM9}, s{srw}, v{vB9}")
        else:
            r.append(f"v_add_u32 v{aHW}, s{srw}, v{vHWa}")
            r.append(f"v_add_u32 v{aHX}, s{sRX}, v{vHXa}")
            if c2: r.append(f"v_xor_b32 v{aHX}, 64, v{aHX}")
            r.append(f"v_mad_u32_u24 v{aHX1}, v{vMH1}, v{aHX}, v{vCH1}")
        r.append(f"v_add_u32 v{aSQ}, s{sRX}, v{vSQa}")
        if c2: r.append(f"v_xor_b32 v{aSQ}, 64, v{aSQ}")
        return r
    def reads(st, ks4, role9):
        ks = ks4 & 1
        o = 3072 * ks
        r = [f"ds_read_b128 {vr(FX[st],4)}, v{aX+ks4}",
             f"ds_read_b64_tr_b16 {vr(FW[st],2)}, v{aWA} offset:{o}",
             f"ds_read_b64_tr_b16 {vr(FW[st]+2,2)}, v{aWA} offset:{o+768}",
             f"ds_read_b128 {vr(FX[st]+4,4)}, v{aX+4+ks4}",
             f"ds_read_b64_tr_b16 {vr(FW[st]+4,2)}, v{aWB} offset:{o}",
             f"ds_read_b64_tr_b16 {vr(FW[st]+6,2)}, v{aWB} offset:{o+768}"]
        if role9:
            r += [f"ds_read_b64_tr_b16 {vr(FW[st]+8,2)}, v{a9} offset:{o}",
                  f"ds_read_b64_tr_b16 {vr(FW[st]+10,2)}, v{a9} offset:{o+768}"]
        return r
    def side_reads(role9):
        r = [f"ds_read_b128 {vr(FSQ,4)}, v{aSQ}"]
        if not role9:
            r += [f"ds_read_b128 {vr(FHX,4)}, v{aHX}", f"ds_read_b128 {vr(FHX1,4)}, v{aHX1}",
                  f"ds_read_b64_tr_b16 {vr(FHW,2)}, v{aHW}", f"ds_read_b64_tr_b16 {vr(FHW+2,2)}, v{aHW} offset:768"]
        return r
    def mfma_list(st, ks4, role9):
        mf = [f"v_mfma_f32_32x32x16_bf16 {vr(ACC,16)}, {vr(FW[st],4)}, {vr(FX[st],4)}, {vr(ACC,16)}",
              f"v_mfma_f32_32x32x16_bf16 {vr(ACC+16,16)}, {vr(FW[st],4)}, {vr(FX[st]+4,4)}, {vr(ACC+16,16)}",
              f"v_mfma_f32_32x32x16_bf16 {vr(ACC+32,16)}, {vr(FW[st]+4,4)}, {vr(FX[st],4)}, {vr(ACC+32,16)}",
              f"v_mfma_f32_32x32x16_bf16 {vr(ACC+48,16)}, {vr(FW[st]+4,4)}, {vr(FX[st]+4,4)}, {vr(ACC+48,16)}"]
        small = []
        if role9:
            mf.append(f"v_mfma_f32_32x32x16_bf16 {vr(ACC9,16)}, {vr(FW[st]+8,4)}, {vr(FX[st],4)}, {vr(ACC9,16)}")
            small.append(f"v_mfma_f32_16x16x32_bf16 {vr(CSA,4)}, {vr(FW[st],4)}, {vr(SEL,4)}, {vr(CSA,4)}")
        else:
            small.append(f"v_mfma_f32_16x16x32_bf16 {vr(CSA,4)}, {vr(FW[st]+4,4)}, {vr(SEL,4)}, {vr(CSA,4)}")
        if ks4 & 1:
            small.append(f"v_mfma_f32_16x16x32_bf16 {vr(SQA,4)}, {vr(FSQ,4)}, {vr(FSQ,4)}, {vr(SQA,4)}")
            if not role9:
                small.append(f"v_mfma_f32_16x16x32_bf16 {vr(ACC9,4)}, {vr(FHW,4)}, {vr(FHX,4)}, {vr(ACC9,4)}")
                small.append(f"v_mfma_f32_16x16x32_bf16 {vr(HST,4)}, {vr(FHX1,4)}, {vr(FHX,4)}, {vr(HST,4)}")
        return small, mf
    def group(st, ks4, role9, fill):
        small, mf = mfma_list(st, ks4, role9)
        MODE = os.environ.get("GMODE", "w21")
        def c9():
            if role9:
                uid[0] += 1
                lb = f"K1_C9{uid[0]}"
                e(f"s_cmp_eq_u32 s{sG}, {ks4}")
                e(f"s_cbranch_scc0 {lb}")
                e(f"v_mfma_f32_16x16x32_bf16 {vr(CS9A,4)}, {vr(FW[st]+8,4)}, {vr(SEL,4)}, {vr(CS9A,4)}")
                lab(lb)
        if MODE == "weave":
            for m in small: e(m)
            c9()
            n = len(mf) - 1
            per = [len(fill) * (i + 1) // n - len(fill) * i // n for i in range(n)] + [0]
            k = 0
            for i, m in enumerate(mf):
                e(m)
                for f in fill[k:k + per[i]]: e(f)
                k += per[i]
        elif MODE.startswith("w2"):
            seq = [(mf[0], 2), (mf[1], 2)]
            rest = mf[2:]; sm = list(small)
            while rest or sm:
                if sm: seq.append((sm.pop(0), 1))
                if rest: seq.append((rest.pop(0), 2))
            c9()
            last = int(MODE[2:] or 1)
            wts = [w_ for _, w_ in seq]
            for i in range(last): wts[-1 - i] = 0
            tot = sum(wts); acc = 0; k = 0
            for (m, _), w_ in zip(seq, wts):
                e(m)
                acc += w_
                k2 = len(fill) * acc // tot
                for f in fill[k:k2]: e(f)
                k = k2
        elif MODE == "first":
            for f in fill: e(f)
            for m in mf: e(m)
            for m in small: e(m)
            c9()
        elif MODE == "one":
            e(mf[0])
            for f in fill: e(f)
            for m in mf[1:]: e(m)
            for m in small: e(m)
            c9()
        elif MODE == "two":
            e(mf[0])
            h = len(fill) // 2
            for f in fill[:h]: e(f)
            e(mf[1])
            for f in fill[h:]: e(f)
            for m in mf[2:]: e(m)
            for m in small: e(m)
            c9()

    def mainloop(role9):
        nm = "9" if role9 else "H"
        uid[0] += 1
        lb = f"K1_TJ{uid[0]}"
        e("s_waitcnt vmcnt(9)")
        e(f"s_cmp_eq_u32 s{sDMA}, 1")
        e(f"s_cbranch_scc1 {lb}")
        e(f"s_waitcnt vmcnt({2 if PF else 0})")
        lab(lb)
        e(f"s_mul_i32 s{sDMA}, s{sDMA}, {DL}")
        e(f"v_lshlrev_b32 v{T+10}, 4, v{vLane}")
        e(f"s_add_u32 s3, s{sWPW}, {TS}")
        e(f"v_add_u32 v{T+11}, s3, v{T+10}")
        e(f"ds_write_b128 v{T+11}, {vr(WT,4)}")
        e("s_waitcnt lgkmcnt(0)")
        e(f"ds_read_b64_tr_b16 {vr(WT,2)}, v{vTA1}")
        e(f"ds_read_b64_tr_b16 {vr(WT+2,2)}, v{vTA2}")
        e(f"s_lshl_b32 s3, s{sID}, 10")
        e("s_waitcnt lgkmcnt(0)")
        e(f"buffer_store_dwordx4 {vr(WT,4)}, v{T+10}, {sr(S_W2F,4)}, s3 offen{SC}")
        PB = int(os.environ.get("PB", "1"))
        if LA == 4:
            e("s_barrier")
            e(f"s_cmp_eq_u32 s{sDMA}, 0")
            e(f"s_cbranch_scc1 K1_PND{nm}")
            dmaW(); dmaX()
            lab(f"K1_PND{nm}")
        if LA >= 3:
            e("s_barrier")
            e(f"s_cmp_eq_u32 s{sDMA}, 0")
            e(f"s_cbranch_scc1 K1_PNE{nm}")
            dmaW()
            lab(f"K1_PNE{nm}")
        stamp(1)
        for a_ in x_addrs() + chunk_addrs(sRWA, 0, role9): e(a_)
        lab(f"K1_LOOP{nm}")
        INLOOP[0] = True
        e("s_waitcnt vmcnt(3) lgkmcnt(0)")
        e("s_barrier")
        if STAMP == 2:
            e("s_memtime s[92:93]")
            e(f"s_lshl_b32 s94, s{sIT}, 1")
            e("s_add_u32 m0, s94, 38")
            e("s_waitcnt lgkmcnt(0)")
            e(f"v_writelane_b32 v{STV}, s92, m0")
        DW = os.environ.get("DW", "AB")
        dE = capture(lambda: (dmaW(), dmaX())); dO = capture(dmaW)
        def split(d):
            if DW == "A": return d, []
            if DW == "B": return [], d
            k = 13 if len(d) > 13 else 8
            return d[:k], d[k:]
        d1, d2 = split(dE)
        group(1, 3, role9, reads(0, 0, role9) + d1)
        e("s_waitcnt lgkmcnt(0)")
        group(0, 0, role9, reads(1, 1, role9) + side_reads(role9) + d2 + chunk_addrs(sRWB, 1, role9))
        e("s_waitcnt vmcnt(6) lgkmcnt(0)")
        e("s_barrier")
        if STAMP == 2:
            e("s_memtime s[92:93]")
            e(f"s_lshl_b32 s94, s{sIT}, 1")
            e("s_add_u32 m0, s94, 39")
            e("s_waitcnt lgkmcnt(0)")
            e(f"v_writelane_b32 v{STV}, s92, m0")
        if FUSE and role9:
            e(f"s_lshl_b32 s{sT2}, s{sIT}, 3")
            e(f"s_add_u32 s{sT2}, s{sT2}, s{sW}")
            e(f"s_cmp_eq_u32 s{sT2}, {8*1+7}")
            e("s_cbranch_scc0 K1_S10")
            e("buffer_load_dword v250, v251, s[44:47], 0 offen sc1")
            lab("K1_S10")
            e(f"s_cmp_eq_u32 s{sT2}, {8*2+7}")
            e("s_cbranch_scc0 K1_S1A")
            e("s_mov_b32 s3, 0")
            lab("K1_S1T")
            e("v_readfirstlane_b32 s100, v250")
            e("s_add_u32 s3, s3, 1")
            e("s_cmp_gt_u32 s3, 0x8000")
            e("s_cbranch_scc1 K1_S1U")
            e("s_cmp_lg_u32 s100, 0")
            e("s_cbranch_scc1 K1_S1U")
            e("s_sleep 4")
            e("buffer_load_dword v250, v251, s[44:47], 0 offen sc1")
            e("s_waitcnt vmcnt(0)")
            e("s_branch K1_S1T")
            lab("K1_S1U")
            e(f"v_mov_b32 v251, {TAGL}")
            e("s_mov_b64 exec, 1")
            e("ds_write_b32 v251, v250")
            e(f"buffer_store_dword v250, v244, {sr(S_FL,4)}, 0 offen sc1")
            e("s_mov_b64 exec, -1")
            lab("K1_S1A")
            e(f"s_cmp_eq_u32 s{sT2}, {8*8+7}")
            e("s_cbranch_scc0 K1_S1B")
            e(f"buffer_load_dwordx4 v[246:249], v245, {sr(S_FL,4)}, 0 offen sc1")
            lab("K1_S1B")
        d1, d2 = split(dO)
        group(1, 1, role9, reads(0, 2, role9) + d1)
        e("s_waitcnt lgkmcnt(0)")
        tail = [f"s_cmp_eq_u32 s{sIT}, 7"] + [f"s_cselect_b32 s{d+2}, 0, s{d+2}" for d in (S_X, S_W1, S_W3, S_QKV)]
        def advs():
            adv(sRWA, 2 * WSLOT, NW * WSLOT)
            adv(sRWB, 2 * WSLOT, NW * WSLOT)
            e(f"s_add_u32 s{sRX}, s{sRX}, {XSLOT}")
            e(f"s_cmp_ge_u32 s{sRX}, {XBASE+NX*XSLOT}")
            e(f"s_cselect_b32 s{sRX}, {XBASE}, s{sRX}")
        group(0, 2, role9, reads(1, 3, role9) + side_reads(role9) + d2 + tail + capture(advs) + x_addrs() + chunk_addrs(sRWA, 0, role9))
        INLOOP[0] = False
        if STAMP:
            e("s_memtime s[92:93]")
            e(f"s_add_u32 m0, s{sIT}, 31")
            e("s_waitcnt lgkmcnt(0)")
            e(f"v_writelane_b32 v{STV}, s92, m0")
        e(f"s_add_u32 s{sIT}, s{sIT}, 1")
        e(f"s_cmp_lt_u32 s{sIT}, 9")
        e(f"s_cbranch_scc1 K1_LOOP{nm}")
        e("s_waitcnt lgkmcnt(0)")
        group(1, 3, role9, [])
        stamp(4)
        e(f"v_and_b32 v{T}, 15, v{vLane}")
        e(f"v_lshrrev_b32 v{T+1}, 4, v{vLane}")
        e(f"v_lshlrev_b32 v{T+2}, 6, v{T}")
        e(f"v_lshl_add_u32 v{T+2}, v{T+1}, 4, v{T+2}")
        e(f"s_lshl_b32 s3, s{sG}, 8")
        e(f"s_add_u32 s3, s3, {CS + (0 if role9 else 128)}")
        e(f"v_add_u32 v{T+3}, s3, v{T+2}")
        e(f"s_lshl_b32 s3, s{sG}, 7")
        e(f"s_add_u32 s3, s3, {CS9}")
        e(f"v_add_u32 v{T+4}, s3, v{T+2}")
        e(f"v_and_b32 v{T+5}, 3, v{vLane}")
        e(f"v_lshlrev_b32 v{T+6}, 2, v{vLane}")
        e(f"s_lshl_b32 s3, s{sW}, 8")
        e(f"s_add_u32 s3, s3, {SQ}")
        e(f"v_add_u32 v{T+7}, s3, v{T+6}")
        def diag(dst, src):
            e(f"v_cmp_eq_u32 vcc, 1, v{T+5}")
            e(f"v_cmp_eq_u32 {sr(sMK,2)}, 2, v{T+5}")
            e(f"v_cmp_eq_u32 s[4:5], 3, v{T+5}")
            e(f"v_cndmask_b32 v{dst}, v{src}, v{src+1}, vcc")
            e(f"v_cndmask_b32 v{dst}, v{dst}, v{src+2}, {sr(sMK,2)}")
            e(f"v_cndmask_b32 v{dst}, v{dst}, v{src+3}, s[4:5]")
        diag(T + 8, SQA)
        e(f"ds_write_b32 v{T+7}, v{T+8}")
        if not role9:
            diag(T + 9, HST)
            e(f"s_lshl_b32 s3, s{sG}, 9")
            e(f"s_add_u32 s3, s3, {HSC}")
            e(f"v_add_u32 v{T+10}, s3, v{T+6}")
            e(f"ds_write_b32 v{T+10}, v{T+9}")
            e(f"ds_write_b32 v{T+10}, v{HST} offset:256")
        e(f"v_cmp_gt_u32 vcc, 2, v{T}")
        e("s_and_saveexec_b64 s[4:5], vcc")
        e(f"ds_write_b128 v{T+3}, {vr(CSA,4)}")
        if role9:
            e(f"ds_write_b128 v{T+4}, {vr(CS9A,4)}")
        e("s_mov_b64 exec, s[4:5]")
        e(f"v_and_b32 v{T}, 31, v{vLane}")
        e(f"v_lshlrev_b32 v{T}, 2, v{T}")
        e(f"s_lshl_b32 s3, s{sMT0}, 7")
        e(f"s_lshl_b32 s4, s{sMT1}, 7")
        e(f"v_add_u32 v{T+2}, s3, v{T}")
        e(f"v_add_u32 v{T+3}, s4, v{T}")
        if role9:
            e(f"v_add_u32 v{T+6}, {RS}, v{T+2}")
            e(f"ds_write_b32 v{T+6}, v{ACC9+8}")
        e(f"s_mov_b32 s{sT3}, {1 if role9 else 0}")
        e("s_waitcnt vmcnt(0)")
        if FUSE and role9:
            e(f"s_cmp_eq_u32 s{sW}, 7")
            e("s_cbranch_scc0 K1_EPI")
            e("s_mov_b32 s3, 0")
            lab("K1_S1P")
            e("v_xor_b32 v246, s100, v246")
            e("v_xor_b32 v247, s100, v247")
            e("v_xor_b32 v248, s100, v248")
            e("v_xor_b32 v249, s100, v249")
            e("v_or3_b32 v246, v246, v247, v248")
            e("v_or_b32 v246, v246, v249")
            e("v_cmp_ne_u32 vcc, 0, v246")
            e("s_add_u32 s3, s3, 1")
            e("s_cmp_gt_u32 s3, 0x8000")
            e("s_cbranch_scc1 K1_EPI")
            e("s_cbranch_vccz K1_EPI")
            e("s_sleep 4")
            e(f"buffer_load_dwordx4 v[246:249], v245, {sr(S_FL,4)}, 0 offen sc1")
            e("s_waitcnt vmcnt(0)")
            e("s_branch K1_S1P")
        e("s_branch K1_EPI")

    mainloop(True)
    lab("K1_ROLEH")
    mainloop(False)

    lab("K1_EPI")
    sROLE = sT3
    CA, CB = 80, 96
    C9 = 112
    ST = 120
    RAW = 132
    e("s_waitcnt lgkmcnt(0)")
    e("s_barrier")
    stamp(5)
    if FUSE:
        e(f"s_cmp_lg_u32 s{sW}, 0")
        e("s_cbranch_scc1 K1_FL1")
        e(f"v_mov_b32 v{T+13}, {TAGL}")
        e(f"ds_read_b32 v{T+12}, v{T+13}")
        e("s_waitcnt lgkmcnt(0)")
        e(f"v_readfirstlane_b32 s100, v{T+12}")
        lab("K1_FL1")
        p2_setup(sW, vLane)
        p2_dma(2, S_W2F)
    e(f"v_add_u32 v{T+4}, {RS}, v{T+2}")
    e(f"v_add_u32 v{T+5}, {RS}, v{T+3}")
    e(f"ds_read_b32 v{RAW}, v{T+4}")
    e(f"ds_read_b32 v{RAW+1}, v{T+5}")
    e(f"v_and_b32 v{T+6}, 15, v{vLane}")
    e(f"v_lshrrev_b32 v{T+7}, 2, v{T+6}")
    e(f"v_lshl_add_u32 v{T+6}, v{T+7}, 4, v{T+6}")
    e(f"v_lshlrev_b32 v{T+6}, 2, v{T+6}")
    e(f"v_bfe_u32 v{T+7}, v{vLane}, 4, 1")
    e(f"v_lshl_add_u32 v{T+7}, v{T+7}, 8, v{T+6}")
    e(f"s_lshl_b32 s3, s{sMT0}, 9")
    e(f"s_add_u32 s3, s3, {SQ}")
    e(f"s_lshl_b32 s4, s{sMT1}, 9")
    e(f"s_add_u32 s4, s4, {SQ}")
    e(f"v_add_u32 v{T+8}, s3, v{T+7}")
    e(f"v_add_u32 v{T+7}, s4, v{T+7}")
    e(f"ds_read_b32 v{RAW+2}, v{T+8}")
    e(f"ds_read_b32 v{RAW+3}, v{T+7}")
    e(f"s_lshl_b32 s3, s{sG}, 9")
    e(f"s_add_u32 s3, s3, {HSC}")
    e(f"v_add_u32 v{T+6}, s3, v{T+6}")
    e(f"v_and_b32 v{T+8}, 15, v{vLane}")
    e(f"v_lshlrev_b32 v{T+8}, 2, v{T+8}")
    e(f"v_add_u32 v{T+8}, s3, v{T+8}")
    e(f"ds_read_b32 v{RAW+4}, v{T+8} offset:256")
    e(f"ds_read_b32 v{RAW+5}, v{T+6}")
    e(f"v_lshrrev_b32 v{T+9}, 5, v{vLane}")
    e(f"v_lshlrev_b32 v{T+10}, 4, v{T+9}")
    e(f"s_lshl_b32 s3, s{sG}, 8")
    e(f"s_add_u32 s3, s3, {CS}")
    e(f"v_add_u32 v{T+11}, s3, v{T+10}")
    for q in range(4):
        e(f"ds_read_b128 {vr(CA+4*q,4)}, v{T+11} offset:{32*q}")
    for q in range(4):
        e(f"ds_read_b128 {vr(CB+4*q,4)}, v{T+11} offset:{128+32*q}")
    e("s_waitcnt lgkmcnt(8)")
    e(f"s_cmp_eq_u32 s{sROLE}, 1")
    e("s_cbranch_scc0 K1_E_CH")
    e(f"v_add_u32 v{T+12}, {CS9}, v{T+10}")
    for p in range(4):
        e(f"ds_read_b128 {vr(vTMP+8+8*p,4)}, v{T+12} offset:{128*p}")
        e(f"ds_read_b128 {vr(vTMP+12+8*p,4)}, v{T+12} offset:{128*p+32}")
    e("s_waitcnt lgkmcnt(0)")
    for i in range(8):
        e(f"v_add_f32 v{C9+i}, v{vTMP+8+i}, v{vTMP+16+i}")
        e(f"v_add_f32 v{vTMP+24+i}, v{vTMP+24+i}, v{vTMP+32+i}")
    for i in range(8):
        e(f"v_add_f32 v{C9+i}, v{C9+i}, v{vTMP+24+i}")
    e("s_branch K1_E_CD")
    lab("K1_E_CH")
    e(f"v_lshrrev_b32 v{T+13}, 4, v{vLane}")
    e(f"v_lshlrev_b32 v{T+13}, 4, v{T+13}")
    e(f"s_lshl_b32 s3, s{sG}, 6")
    e(f"s_add_u32 s3, s3, {CS+128}")
    e(f"v_add_u32 v{T+13}, s3, v{T+13}")
    e(f"ds_read_b128 {vr(C9,4)}, v{T+13}")
    lab("K1_E_CD")
    def stats(rs, sq, o):
        t = vTMP
        e(f"v_mul_f32 v{t}, {f2u(1/512):#x}, v{rs}")
        e(f"v_mul_f32 v{t+1}, {f2u(1/512):#x}, v{sq}")
        e(f"v_fma_f32 v{t+1}, -v{t}, v{t}, v{t+1}")
        e(f"v_max_f32 v{t+1}, 0, v{t+1}")
        e(f"v_cvt_pk_bf16_f32 v{t+2}, v{t}, v{t+1}")
        e(f"v_lshlrev_b32 v{t}, 16, v{t+2}")
        e(f"v_and_b32 v{t+1}, 0xffff0000, v{t+2}")
        e(f"v_add_f32 v{t+1}, {f2u(1e-5):#x}, v{t+1}")
        e(f"v_cvt_pk_bf16_f32 v{t+2}, v{t+1}, v{t+1}")
        e(f"v_and_b32 v{t+1}, 0xffff0000, v{t+2}")
        e(f"v_sqrt_f32 v{t+1}, v{t+1}")
        e(f"v_xor_b32 v{o+1}, 0x80000000, v{t}")
        e(f"v_cvt_pk_bf16_f32 v{t+2}, v{t+1}, v{t+1}")
        e(f"v_and_b32 v{t+1}, 0xffff0000, v{t+2}")
        e(f"v_rcp_f32 v{o}, v{t+1}")
        e(f"v_mul_f32 v{o+3}, v{t+1}, v{t+1}")
        e(f"v_mul_f32 v{o+2}, {f2u(-LOG2E):#x}, v{o}")
    stats(RAW, RAW + 2, ST)
    stats(RAW + 1, RAW + 3, ST + 4)
    e(f"v_and_b32 v{T}, 31, v{vLane}")
    e(f"v_mul_u32_u24 v{T}, {SPITCH}, v{T}")
    e(f"v_lshl_add_u32 v{T+1}, v{T+9}, 3, v{T}")
    e(f"v_lshl_add_u32 v{T+2}, v{T+9}, 4, v{T}")
    e(f"s_mul_i32 s3, s{sMT0}, {32*SPITCH}")
    e(f"s_add_u32 s3, s3, {STG+16*SPITCH}")
    e(f"s_mul_i32 s4, s{sMT1}, {32*SPITCH}")
    e(f"s_add_u32 s4, s4, {STG+16*SPITCH}")
    e(f"v_add_u32 v{T+3}, s3, v{T+1}")
    e(f"v_add_u32 v{T+4}, s4, v{T+1}")
    e(f"v_add_u32 v{T+5}, s3, v{T+2}")
    e(f"v_add_u32 v{T+6}, s4, v{T+2}")
    e(f"v_lshlrev_b32 v{T+7}, 4, v{vLane}")
    e(f"s_lshl_b32 s5, s{sRB}, 2")
    e(f"s_add_u32 s{sT1}, s5, s{sMT0}")
    e(f"s_add_u32 s{sT2}, s5, s{sMT1}")
    e("s_waitcnt lgkmcnt(0)")
    def bc(r):
        return (vr(r & ~1, 2), r & 1)
    def pkfma(d, a, b, c, bsel=None, csel=None):
        A = vr(a, 2)
        B, bs = (vr(b, 2), None) if bsel is None else bc(b)
        Cc, cs = (vr(c, 2), None) if csel is None else bc(c)
        lo = [0, bs or 0, cs or 0]; hi = [1, 1 if bs is None else bs, 1 if cs is None else cs]
        e(f"v_pk_fma_f32 {vr(d,2)}, {A}, {B}, {Cc} op_sel:[{lo[0]},{lo[1]},{lo[2]}] op_sel_hi:[{hi[0]},{hi[1]},{hi[2]}]")
    def pkmul(d, a, b, bsel=None):
        B, bs = (vr(b, 2), None) if bsel is None else bc(b)
        e(f"v_pk_mul_f32 {vr(d,2)}, {vr(a,2)}, {B} op_sel:[0,{bs or 0}] op_sel_hi:[1,{1 if bs is None else bs}]")
    def ln16(R, C, st, n, dst):
        for i in range(0, n, 2): pkfma(dst + i, C + i, st + 1, R + i, bsel=1)
        for i in range(0, n, 2): pkmul(dst + i, dst + i, st, bsel=1)
    def tile_qk(R, C, st, addr, sec):
        t = vTMP
        ln16(R, C, st, 16, t)
        for q in range(4):
            e(f"v_cvt_pk_bf16_f32 v{t+16+2*q}, v{t+4*q}, v{t+4*q+1}")
            e(f"v_cvt_pk_bf16_f32 v{t+17+2*q}, v{t+4*q+2}, v{t+4*q+3}")
        for q in range(4):
            e(f"ds_write_b64 v{addr}, {vr(t+16+2*q,2)} offset:{sec*64+16*q}")
    def tile_v(R, C, st, addr):
        t = vTMP + 24
        ln16(R, C, st, 16, t)
        for q in range(4):
            e(f"ds_write_b128 v{addr}, {vr(t+4*q,4)} offset:{128+32*q}")
    def silu(R, C, st, n, goff, uoff, t):
        for i in range(0, n, 2): pkfma(t + i, C + goff + i, st + 1, R + goff + i, bsel=1)
        for i in range(0, n, 2): pkmul(t + n + i, t + i, st + 2, bsel=1)
        for i in range(n):
            e(f"v_exp_f32 v{t+n+i}, v{t+n+i}")
        for i in range(0, n, 2): pkfma(t + 2*n + i, C + uoff + i, st + 1, R + uoff + i, bsel=1)
        for i in range(0, n, 2): pkfma(t + n + i, t + n + i, st + 3, st + 3, bsel=1, csel=1)
        for i in range(n):
            e(f"v_rcp_f32 v{t+n+i}, v{t+n+i}")
        for i in range(0, n, 2): pkmul(t + i, t + i, t + 2*n + i)
        for i in range(0, n, 2): pkmul(t + i, t + i, t + n + i)
        for i in range(n // 2):
            e(f"v_cvt_pk_bf16_f32 v{t+3*n+i}, v{t+2*i}, v{t+2*i+1}")
    def tile_ffn(R, C, st, smt, tau_s, tbase):
        silu(R, C, st, 8, 0, 8, tbase)
        e(f"s_add_u32 s3, s{tau_s}, s{smt}")
        e("s_lshl_b32 s3, s3, 10")
        e(f"buffer_store_dwordx4 {vr(tbase+24,4)}, v{T+7}, {sr(S_HF,4)}, s3 offen{SC}")
    e(f"s_lshl_b32 s6, s{sG}, 1")
    e(f"s_add_u32 s6, s6, s{sTF}")
    e("s_add_u32 s6, s6, 29")
    e("s_lshl_b32 s6, s6, 6")
    e("s_add_u32 s7, s6, 64")
    e(f"s_cmp_eq_u32 s{sROLE}, 1")
    e("s_cbranch_scc1 K1_E_T")
    stats(RAW + 4, RAW + 5, ST + 8)
    t = vTMP + 40
    ln16(ACC9, C9, ST + 8, 4, t)
    e(f"v_and_b32 v{T}, 15, v{vLane}")
    e(f"v_mul_u32_u24 v{T}, {SPITCH}, v{T}")
    e(f"v_lshrrev_b32 v{T+1}, 4, v{vLane}")
    e(f"s_cmp_lt_u32 s{sG}, 2")
    e("s_cbranch_scc0 K1_E_HV")
    e(f"v_cvt_pk_bf16_f32 v{t+4}, v{t}, v{t+1}")
    e(f"v_cvt_pk_bf16_f32 v{t+5}, v{t+2}, v{t+3}")
    e(f"v_lshl_add_u32 v{T}, v{T+1}, 3, v{T}")
    e(f"s_lshl_b32 s3, s{sG}, 5")
    e(f"s_add_u32 s3, s3, {STG+64}")
    e(f"v_add_u32 v{T}, s3, v{T}")
    e(f"ds_write_b64 v{T}, {vr(t+4,2)}")
    e("s_branch K1_E_T")
    lab("K1_E_HV")
    e(f"v_lshl_add_u32 v{T}, v{T+1}, 4, v{T}")
    e(f"s_lshl_b32 s3, s{sG}, 6")
    e(f"s_add_u32 s3, s3, {STG+128-128}")
    e(f"v_add_u32 v{T}, s3, v{T}")
    e(f"ds_write_b128 v{T}, {vr(t,4)}")
    lab("K1_E_T")
    if FUSE: p2_dma(2, S_W2F)
    e(f"s_cmp_eq_u32 s{sG}, 0")
    e("s_cbranch_scc1 K1_E_G0")
    e(f"s_cmp_eq_u32 s{sG}, 1")
    e("s_cbranch_scc1 K1_E_G1")
    tile_ffn(ACC, CA, ST, sT1, 6, vTMP)
    e("s_waitcnt lgkmcnt(0)")
    e("s_barrier")
    tile_ffn(ACC + 16, CA, ST + 4, sT2, 6, vTMP - 54)
    e("s_branch K1_E_B")
    lab("K1_E_G0")
    tile_qk(ACC, CA, ST, T + 3, 0)
    tile_qk(ACC + 16, CA, ST + 4, T + 4, 0)
    tile_qk(ACC + 32, CB, ST, T + 3, 1)
    tile_qk(ACC + 48, CB, ST + 4, T + 4, 1)
    e("s_waitcnt lgkmcnt(0)")
    e("s_barrier")
    e("s_branch K1_E_C")
    lab("K1_E_G1")
    tile_v(ACC, CA, ST, T + 5)
    e("s_nop 1")
    tile_v(ACC + 16, CA, ST + 4, T + 6)
    e("s_waitcnt lgkmcnt(0)")
    e("s_barrier")
    lab("K1_E_B")
    tile_ffn(ACC + 32, CB, ST, sT1, 7, vTMP)
    tile_ffn(ACC + 48, CB, ST + 4, sT2, 7, vTMP - 54)
    lab("K1_E_C")
    if FUSE: p2_dma(2, S_W2F)
    stamp(6)
    e(f"s_and_b32 s3, s{sROLE}, s{sHAS}")
    e("s_cbranch_scc0 K1_E_D")
    silu(ACC9, C9, ST, 4, 0, 4, vTMP + 32)
    e(f"s_add_u32 s3, s{sTH}, 32")
    e("s_lshl_b32 s3, s3, 6")
    e(f"s_add_u32 s3, s3, s{sT1}")
    e("s_lshl_b32 s3, s3, 10")
    e(f"s_lshl_b32 s4, s{sHSEL}, 3")
    e("s_add_u32 s3, s3, s4")
    e(f"buffer_store_dwordx2 {vr(vTMP+44,2)}, v{T+7}, {sr(S_HF,4)}, s3 offen{SC}")
    lab("K1_E_D")
    if FUSE: p2_dma(8, S_W2F)
    sU, sN = sRWA, sRWB
    e(f"s_lshl_b32 s3, s{sW}, 2")
    e(f"s_lshr_b32 s{sU}, {os.environ.get('AU', '0x3527640')}, s3")
    e(f"s_and_b32 s{sU}, s{sU}, 7")
    e(f"s_lshr_b32 s{sN}, {os.environ.get('AN', '0x1111112')}, s3")
    e(f"s_and_b32 s{sN}, s{sN}, 3")
    e("s_cbranch_scc0 K1_ATT_END")
    lab("K1_ATT")
    Q = 0; KK = 4; VV = 36; P = 100; O = 112; A2 = 120
    e(f"v_lshrrev_b32 v{T+8}, 4, v{T+7}")
    e(f"v_and_b32 v{T}, 31, v{T+8}")
    e(f"v_lshrrev_b32 v{T+1}, 5, v{T+8}")
    e(f"s_lshr_b32 s3, s{sU}, 1")
    e(f"s_and_b32 s4, s{sU}, 1")
    e(f"v_mul_u32_u24 v{T+2}, {SPITCH}, v{T}")
    e(f"s_mul_i32 s5, s3, {32*SPITCH}")
    e(f"s_add_u32 s5, s5, {STG+2*SPITCH}")
    e("s_lshl_b32 s6, s4, 5")
    e("s_add_u32 s6, s6, s5")
    e(f"v_lshl_add_u32 v{T+3}, v{T+1}, 4, v{T+2}")
    e(f"v_add_u32 v{T+3}, s6, v{T+3}")
    e("s_lshl_b32 s6, s4, 6")
    e("s_add_u32 s6, s6, s5")
    e(f"v_lshl_add_u32 v{T+4}, v{T+1}, 5, v{T+2}")
    e(f"v_add_u32 v{T+4}, s6, v{T+4}")
    e("s_lshl_b32 s5, s3, 5")
    e(f"s_add_u32 s5, s5, s{sM0}")
    e(f"v_add_u32 v{T+5}, s5, v{T}")
    e(f"v_lshlrev_b32 v{T+6}, 1, v{T+1}")
    e(f"v_sub_u32 v{T+5}, v{T+5}, v{T+6}")
    e(f"s_lshl_b32 s5, s{sCG}, 1")
    e("s_add_u32 s5, s5, s4")
    e("s_lshl_b32 s5, s5, 6")
    e(f"s_lshl_b32 s6, s{sRB}, 2")
    e("s_add_u32 s5, s5, s6")
    e("s_add_u32 s5, s5, s3")
    e(f"s_lshl_b32 s{sT1}, s5, 10")
    e(f"ds_read_b128 {vr(Q,4)}, v{T+3} offset:{14*SPITCH}")
    for w in range(8):
        e(f"ds_read_b128 {vr(KK+4*w,4)}, v{T+3} offset:{(14-2*w)*SPITCH+64}")
    for w in range(3):
        e(f"ds_read_b128 {vr(VV+8*w,4)}, v{T+4} offset:{(14-2*w)*SPITCH+128}")
        e(f"ds_read_b128 {vr(VV+8*w+4,4)}, v{T+4} offset:{(14-2*w)*SPITCH+144}")
    for w in range(8):
        e(f"s_waitcnt lgkmcnt({min(15, 13-w)})")
        e(f"v_dot2_f32_bf16 v{P+w}, v{Q}, v{KK+4*w}, 0")
        for i in range(1, 4):
            e(f"v_dot2_f32_bf16 v{P+w}, v{Q+i}, v{KK+4*w+i}, v{P+w}")
    for w in range(3, 8):
        e(f"ds_read_b128 {vr(VV+8*w,4)}, v{T+4} offset:{(14-2*w)*SPITCH+128}")
        e(f"ds_read_b128 {vr(VV+8*w+4,4)}, v{T+4} offset:{(14-2*w)*SPITCH+144}")
    e("s_nop 2")
    for i in range(4):
        e(f"v_permlane32_swap_b32 v{P+2*i}, v{P+2*i+1}")
    e(f"v_mov_b32 v{T+9}, {f2u(-1e9):#x}")
    for i in range(4):
        e(f"v_add_f32 v{P+2*i}, v{P+2*i}, v{P+2*i+1}")
    for i in range(4):
        e(f"v_cmp_le_i32 vcc, {4*i}, v{T+5}")
        e(f"v_mul_f32 v{P+2*i}, 0.25, v{P+2*i}") if False else e(f"v_mul_f32 v{P+2*i}, {f2u(0.25):#x}, v{P+2*i}")
        e("s_nop 0")
        e(f"v_cndmask_b32 v{P+2*i}, v{T+9}, v{P+2*i}, vcc")
    e(f"v_max3_f32 v{P+1}, v{P}, v{P+2}, v{P+4}")
    e(f"v_max_f32 v{P+1}, v{P+1}, v{P+6}")
    e(f"v_mov_b32 v{P+3}, v{P+1}")
    e("s_nop 1")
    e(f"v_permlane32_swap_b32 v{P+1}, v{P+3}")
    e("s_nop 0")
    e(f"v_max_f32 v{P+1}, v{P+1}, v{P+3}")
    for i in range(4):
        e(f"v_sub_f32 v{P+2*i}, v{P+2*i}, v{P+1}")
    for i in range(4):
        e(f"v_mul_f32 v{P+2*i}, {f2u(LOG2E):#x}, v{P+2*i}")
    for i in range(4):
        e(f"v_exp_f32 v{P+2*i}, v{P+2*i}")
    e("s_nop 0")
    e(f"v_add_f32 v{P+1}, v{P}, v{P+2}")
    e(f"v_add_f32 v{P+3}, v{P+4}, v{P+6}")
    e(f"v_add_f32 v{P+1}, v{P+1}, v{P+3}")
    e(f"v_mov_b32 v{P+3}, v{P+1}")
    e("s_nop 1")
    e(f"v_permlane32_swap_b32 v{P+1}, v{P+3}")
    e("s_nop 0")
    e(f"v_add_f32 v{P+8}, v{P+1}, v{P+3}")
    e(f"v_rcp_f32 v{P+8}, v{P+8}")
    e("s_nop 0")
    for i in range(4):
        e(f"v_mul_f32 v{P+2*i}, v{P+2*i}, v{P+8}")
    for i in range(4):
        e(f"v_mov_b32 v{P+2*i+1}, v{P+2*i}")
    e("s_nop 1")
    for i in range(4):
        e(f"v_permlane32_swap_b32 v{P+2*i}, v{P+2*i+1}")
    e("s_nop 0")
    for w in range(8):
        e(f"s_waitcnt lgkmcnt({14-2*w})")
        for d in range(0, 8, 2):
            if w == 0: pkmul(O + d, VV + d, P, bsel=1)
            else: pkfma(O + d, VV + 8*w + d, P + w, O + d, bsel=1)
    for i in range(4):
        e(f"v_cvt_pk_bf16_f32 v{A2+i}, v{O+2*i}, v{O+2*i+1}")
    e(f"buffer_store_dwordx4 {vr(A2,4)}, v{T+7}, {sr(S_HF,4)}, s{sT1} offen{SC}")
    e(f"s_add_u32 s{sU}, s{sU}, 1")
    e(f"s_sub_u32 s{sN}, s{sN}, 1")
    e(f"s_cmp_lg_u32 s{sN}, 0")
    e("s_cbranch_scc1 K1_ATT")
    lab("K1_ATT_END")
    if os.environ.get("TWICE"):
        e(f"s_cmp_eq_u32 s{sIT}, 77")
        e("s_cbranch_scc1 K1_TW")
        e(f"s_mov_b32 s{sIT}, 77")
        stamp(7)
        e(f"v_lshrrev_b32 v{vLane}, 4, v{T+7}")
        e(f"v_and_b32 v{T}, 31, v{vLane}")
        e(f"v_lshlrev_b32 v{T}, 2, v{T}")
        e(f"s_lshl_b32 s3, s{sMT0}, 7")
        e(f"s_lshl_b32 s4, s{sMT1}, 7")
        e(f"v_add_u32 v{T+2}, s3, v{T}")
        e(f"v_add_u32 v{T+3}, s4, v{T}")
        e("s_waitcnt vmcnt(0)")
        e("s_branch K1_EPI")
        lab("K1_TW")
    stamp(8)
    if STAMP and not FUSE: e("s_waitcnt vmcnt(0)")
    stamp(9)
    stamp_flush(50, 0x1000000, sW)
    if FUSE:
        phase2(sW, sRB, sCG, S_HF, S_W2F, S_FL, T + 7)
    lab("K1_END")
    e("s_endpgm")

def kernel2():
    S_HF, S_W2F, S_X, S_O = 8, 12, 16, 20
    sW, sMB, sNB, sKH, sKW = 30, 31, 32, 33, 34
    ACC = 0
    vLane, vH0, vH1, vW0, vW1, vXO = 64, 65, 66, 67, 68, 69
    XR = 72
    T = 80
    RD = 96
    NK = 30; D = int(os.environ.get('K2D', '15')); ROT = int(os.environ.get('K2ROT', '0'))
    fr = (lambda b, n: vr(128 + b, n)) if FUSE else ar
    if FUSE:
        stamp(0)
        e(f"v_mbcnt_lo_u32_b32 v{vLane}, -1, 0")
        e(f"v_mbcnt_hi_u32_b32 v{vLane}, -1, v{vLane}")
        e("s_and_b32 s3, s2, 7")
    else:
        L.append(".globl k2_kernel\n.p2align 8\n.type k2_kernel,@function\nk2_kernel:")
        e("s_cmp_ge_u32 s2, 256")
        e("s_cbranch_scc1 K2_END")
        e("s_load_dwordx2 s[36:37], s[0:1], 0")
        e("s_load_dwordx2 s[38:39], s[0:1], 56")
        e("s_load_dwordx2 s[40:41], s[0:1], 72")
        stamp(0)
        e(f"v_and_b32 v{vLane}, 63, v0")
        e(f"v_lshrrev_b32 v{T}, 6, v0")
        e("s_and_b32 s3, s2, 7")
        e(f"v_readfirstlane_b32 s{sW}, v{T}")
    e("s_lshr_b32 s4, s2, 3")
    e("s_and_b32 s5, s3, 1")
    e("s_lshl_b32 s5, s5, 1")
    e("s_bfe_u32 s6, s3, 0x10001")
    e("s_add_u32 s5, s5, s6")
    e("s_lshl_b32 s5, s5, 3")
    e("s_and_b32 s6, s4, 7")
    e(f"s_add_u32 s{sMB}, s5, s6")
    e("s_lshr_b32 s5, s3, 2")
    e("s_lshl_b32 s5, s5, 2")
    e("s_lshr_b32 s6, s4, 3")
    e(f"s_add_u32 s{sNB}, s5, s6")
    e(f"v_lshlrev_b32 v{T}, 4, v{vLane}")
    e(f"s_lshr_b32 s3, s{sW}, 1")
    e(f"s_and_b32 s4, s{sW}, 1")
    e(f"s_lshl_b32 s5, s{sMB}, 1")
    e("s_add_u32 s5, s5, s3")
    e("s_lshl_b32 s6, s5, 10")
    e(f"v_add_u32 v{vH0}, s6, v{T}")
    e("s_xor_b32 s6, s6, 1024")
    e(f"v_add_u32 v{vH1}, s6, v{T}")
    e(f"s_lshl_b32 s7, s{sNB}, 1")
    e("s_add_u32 s7, s7, s4")
    e("s_lshl_b32 s6, s7, 10")
    e(f"v_add_u32 v{vW0}, s6, v{T}")
    e("s_xor_b32 s6, s6, 1024")
    e(f"v_add_u32 v{vW1}, s6, v{T}")
    e(f"v_and_b32 v{T+1}, 31, v{vLane}")
    e(f"v_lshrrev_b32 v{T+2}, 5, v{vLane}")
    e(f"v_lshlrev_b32 v{T+1}, 10, v{T+1}")
    e(f"v_lshl_add_u32 v{T+1}, v{T+2}, 3, v{T+1}")
    e("s_lshl_b32 s5, s5, 15")
    e("s_lshl_b32 s7, s7, 6")
    e("s_add_u32 s5, s5, s7")
    e(f"v_add_u32 v{vXO}, s5, v{T+1}")
    e("s_lshr_b32 s4, s2, 3")
    e("s_lshr_b32 s5, s4, 3")
    e("s_lshl_b32 s5, s5, 1")
    e("s_add_u32 s4, s4, s5")
    e("s_and_b32 s4, s4, 7")
    e(f"s_mul_i32 s4, s4, {4*ROT}")
    e(f"s_add_u32 s4, s4, s{sW}")
    e(f"s_lshl_b32 s{sKH}, s4, 16")
    e(f"s_lshl_b32 s{sKW}, s4, 14")
    LEAD = int(os.environ.get("K2L", "12")); P2 = int(os.environ.get("K2P", "0")); PG = int(os.environ.get("K2G", "4"))
    sGJ, sPH, sPW, vPF = 42, 43, 44, 70
    if P2:
        e("s_lshr_b32 s4, s2, 3")
        e(f"s_lshl_b32 s5, s4, 2")
        e(f"s_add_u32 s5, s5, s{sW}")
        e(f"s_and_b32 s6, s{sMB}, 24")
        e("s_lshl_b32 s6, s6, 11")
        e(f"s_lshl_b32 s{sPH}, s5, 16")
        e(f"s_add_u32 s{sPH}, s{sPH}, s6")
        e(f"s_and_b32 s6, s{sNB}, 4")
        e("s_lshl_b32 s6, s6, 11")
        e(f"s_lshl_b32 s{sPW}, s5, 14")
        e(f"s_add_u32 s{sPW}, s{sPW}, s6")
        e(f"s_max_u32 s5, s4, {LEAD}")
        e(f"s_sub_u32 s5, s5, {LEAD}")
        e(f"s_lshr_b32 s{sGJ}, s5, {PG.bit_length()-1}")
        e(f"s_cmp_lt_u32 s4, {D}")
        e(f"s_cselect_b32 s{sGJ}, 99, s{sGJ}")
        e(f"v_lshlrev_b32 v{vPF}, 7, v{vLane}")
    def prefetch(c):
        if not P2: return
        e(f"s_cmp_eq_u32 s{sGJ}, {c}")
        e(f"s_cbranch_scc0 K2_PF{c}")
        e(f"buffer_load_dword v{vPF+1}, v{vPF}, {sr(S_HF,4)}, s{sPH} offen")
        e(f"s_add_u32 s{sPH}, s{sPH}, 8192")
        e(f"buffer_load_dword v{vPF+1}, v{vPF}, {sr(S_W2F,4)}, s{sPW} offen")
        e(f"buffer_load_dword v{vPF+1}, v{vPF}, {sr(S_HF,4)}, s{sPH} offen")
        lab(f"K2_PF{c}")
    e("s_waitcnt lgkmcnt(0)")
    e(f"s_mov_b32 s{S_HF}, s40")
    e(f"s_and_b32 s{S_HF+1}, s41, 0xffff")
    e(f"s_mov_b32 s{S_HF+2}, {HF_BYTES}")
    e(f"s_mov_b32 s{S_HF+3}, 0x00020000")
    e(f"s_add_u32 s{S_W2F}, s40, {W2F_OFF}")
    e(f"s_addc_u32 s{S_W2F+1}, s41, 0")
    e(f"s_and_b32 s{S_W2F+1}, s{S_W2F+1}, 0xffff")
    e(f"s_mov_b32 s{S_W2F+2}, {W2F_BYTES}")
    e(f"s_mov_b32 s{S_W2F+3}, 0x00020000")
    srd(S_X, 36, 2048 * 1024)
    srd(S_O, 38, 2048 * 1024)
    def loads(i):
        b = 16 * (i % D)
        e(f"buffer_load_dwordx4 {fr(b,4)}, v{vW0}, {sr(S_W2F,4)}, s{sKW} offen{SC}")
        e(f"buffer_load_dwordx4 {fr(b+4,4)}, v{vH0}, {sr(S_HF,4)}, s{sKH} offen{SC}")
        e(f"buffer_load_dwordx4 {fr(b+8,4)}, v{vH1}, {sr(S_HF,4)}, s{sKH} offen{SC}")
        e(f"buffer_load_dwordx4 {fr(b+12,4)}, v{vW1}, {sr(S_W2F,4)}, s{sKW} offen{SC}")
        e(f"s_add_u32 s{sKW}, s{sKW}, {4*16384}")
        if ROT:
            e(f"s_sub_u32 s3, s{sKW}, {120*16384}")
            e(f"s_cmp_ge_u32 s{sKW}, {120*16384}")
            e(f"s_cselect_b32 s{sKW}, s3, s{sKW}")
        e(f"s_lshl_b32 s{sKH}, s{sKW}, 2")
    for q in range(4):
        e(f"buffer_load_dwordx2 {vr(XR+2*q,2)}, v{vXO}, {sr(S_X,4)}, 0 offen offset:{16*q}")
    if FUSE:
        e(f"s_cmp_lg_u32 s{sW}, 0")
        e("s_cbranch_scc1 K2_GO")
        e(f"v_lshlrev_b32 v{T+1}, 2, v{vLane}")
        e(f"v_and_b32 v{T+1}, 63, v{T+1}")
        e(f"s_lshr_b32 s4, s{sMB}, 1")
        e("s_lshl_b32 s4, s4, 7")
        e("s_add_u32 s4, s4, 4096")
        e("s_mov_b32 s3, 0")
        lab("K2_POLL")
        e(f"buffer_load_dword v{T+3}, v{T+1}, s[44:47], s4 offen sc1")
        e("s_add_u32 s3, s3, 1")
        e("s_waitcnt vmcnt(0)")
        e(f"v_cmp_ne_u32 vcc, s100, v{T+3}")
        e("s_cmp_gt_u32 s3, 0x8000")
        e("s_cbranch_scc1 K2_GO")
        e("s_cbranch_vccz K2_GO")
        e("s_sleep 1")
        e("s_branch K2_POLL")
        lab("K2_GO")
        e("s_barrier")
    PPOS = int(os.environ.get("K2Q", "2"))
    for i in range(D):
        loads(i)
        if i == PPOS - 1: prefetch(0)
    issued = D
    stamp(1)
    for i in range(NK):
        b = 16 * (i % D)
        out = 4 * (issued - i - 1)
        if i == NK - 6:
            pass
        e(f"s_waitcnt vmcnt({min(63, out + 2)})")
        c = (lambda r: "0") if i == 0 else (lambda r: vr(r, 16))
        e(f"v_mfma_f32_32x32x16_bf16 {vr(ACC,16)}, {fr(b,4)}, {fr(b+4,4)}, {c(ACC)}")
        e(f"s_waitcnt vmcnt({min(63, out + 1)})")
        e(f"v_mfma_f32_32x32x16_bf16 {vr(ACC+32,16)}, {fr(b,4)}, {fr(b+8,4)}, {c(ACC+32)}")
        e(f"s_waitcnt vmcnt({out})")
        e(f"v_mfma_f32_32x32x16_bf16 {vr(ACC+16,16)}, {fr(b+12,4)}, {fr(b+4,4)}, {c(ACC+16)}")
        e(f"v_mfma_f32_32x32x16_bf16 {vr(ACC+48,16)}, {fr(b+12,4)}, {fr(b+8,4)}, {c(ACC+48)}")
        if i in (0, 7, 14, 22): stamp(2 + (0, 7, 14, 22).index(i))
        if issued < NK:
            loads(issued); issued += 1
        if i % PG == PG - 1 and (i + 1) // PG <= (31 - LEAD) // PG: prefetch((i + 1) // PG)
    stamp(6)
    for a in range(1, 4):
        e(f"s_xor_b32 s3, s{sW}, {a}")
        e("s_mul_i32 s3, s3, 12288")
        e(f"s_add_u32 s3, s3, {(a-1)*4096}")
        e(f"v_add_u32 v{T+a}, s3, v{T}")
    e(f"s_mul_i32 s3, s{sW}, 12288")
    e(f"v_add_u32 v{T+4}, s3, v{T}")
    e("s_nop 7")
    for a in (2, 1, 3):
        for q in range(4):
            e(f"ds_write_b128 v{T+a}, {vr(ACC+16*a+4*q,4)} offset:{1024*q}")
    e("s_waitcnt lgkmcnt(0)")
    e("s_barrier")
    for s in range(3):
        for q in range(4):
            e(f"ds_read_b128 {vr(RD+16*s+4*q,4)}, v{T+4} offset:{4096*s+1024*q}")
    e("s_waitcnt vmcnt(0)")
    for q in range(4):
        for i in range(2):
            e(f"v_lshlrev_b32 v{T+8}, 16, v{XR+2*q+i}")
            e(f"v_and_b32 v{T+9}, 0xffff0000, v{XR+2*q+i}")
            e(f"v_add_f32 v{ACC+4*q+2*i}, v{ACC+4*q+2*i}, v{T+8}")
            e(f"v_add_f32 v{ACC+4*q+2*i+1}, v{ACC+4*q+2*i+1}, v{T+9}")
    for s in range(3):
        e(f"s_waitcnt lgkmcnt({8-4*s})")
        for r in range(16):
            e(f"v_add_f32 v{ACC+r}, v{ACC+r}, v{RD+16*s+r}")
    for q in range(4):
        e(f"v_cvt_pk_bf16_f32 v{XR+2*q}, v{ACC+4*q}, v{ACC+4*q+1}")
        e(f"v_cvt_pk_bf16_f32 v{XR+2*q+1}, v{ACC+4*q+2}, v{ACC+4*q+3}")
    for q in range(4):
        e(f"buffer_store_dwordx2 {vr(XR+2*q,2)}, v{vXO}, {sr(S_O,4)}, 0 offen offset:{16*q}")
    stamp(7)
    if STAMP: e("s_waitcnt vmcnt(0)")
    stamp(8)
    stamp_flush(40, 0x1100000, sW)
    if not FUSE:
        lab("K2_END")
        e("s_endpgm")


NL = int(os.environ.get("P2NL", "6")); LB2 = 40960
P2K = [0]
def p2_setup(sW, vLane):
    sMB, sNB, sKH, sKW = 16, 17, 18, 19
    vW = 254
    e(f"v_lshlrev_b32 v{vW}, 4, v{vLane}")
    e("s_and_b32 s3, s2, 7")
    e("s_lshr_b32 s4, s2, 3")
    if os.environ.get("P2MAP", "1") == "1":
        e("s_lshl_b32 s5, s3, 2")
        e("s_and_b32 s6, s4, 3")
        e(f"s_add_u32 s{sMB}, s5, s6")
        e(f"s_lshr_b32 s{sNB}, s4, 2")
    else:
        e("s_and_b32 s5, s3, 1")
        e("s_lshl_b32 s5, s5, 1")
        e("s_bfe_u32 s6, s3, 0x10001")
        e("s_add_u32 s5, s5, s6")
        e("s_lshl_b32 s5, s5, 3")
        e("s_and_b32 s6, s4, 7")
        e(f"s_add_u32 s{sMB}, s5, s6")
        e("s_lshr_b32 s5, s3, 2")
        e("s_lshl_b32 s5, s5, 2")
        e("s_lshr_b32 s6, s4, 3")
        e(f"s_add_u32 s{sNB}, s5, s6")
    e(f"s_lshl_b32 s6, s{sNB}, 11")
    e(f"v_add_u32 v{vW}, s6, v{vW}")
    e(f"s_lshl_b32 s{sKW}, s{sW}, 14")
    e(f"s_mul_i32 s{sKH}, s{sW}, {NL*2048}")
    e(f"s_add_u32 s{sKH}, s{sKH}, {LB2}")
def p2_dma(n, S_W2F):
    sKH, sKW, vW = 18, 19, 254
    for _ in range(n):
        if P2K[0] >= NL: return
        e(f"s_add_u32 m0, s{sKH}, {P2K[0]*2048}")
        e("s_nop 0")
        e(f"buffer_load_dwordx4 v{vW}, {sr(S_W2F,4)}, s{sKW} offen sc1 lds")
        e(f"s_add_u32 m0, s{sKH}, {P2K[0]*2048+1024}")
        e(f"s_add_u32 s{sKW}, s{sKW}, 1024")
        e(f"buffer_load_dwordx4 v{vW}, {sr(S_W2F,4)}, s{sKW} offen sc1 lds")
        e(f"s_add_u32 s{sKW}, s{sKW}, {8*16384-1024}")
        P2K[0] += 1

def phase2(sW, sRB, sCG, S_HF, S_W2F, S_FL, vL16src):
    S_X, S_O = 8, 12
    sMB, sNB, sKH, sKW = 16, 17, 18, 19
    ACC, WF, HR, XR = 0, 64, 184, 240
    vL16, vH, vW, vXO, P1, P2_ = 248, 249, 254, 251, 252, 253
    NK = 15; D = 7; PRE = int(os.environ.get("P2PRE", "2"))
    e(f"v_mov_b32 v{vL16}, v{vL16src}")
    def wl(i):
        e(f"buffer_load_dwordx4 {vr(WF+8*i,4)}, v{vW}, {sr(S_W2F,4)}, s{sKW} offen sc1")
        e(f"buffer_load_dwordx4 {vr(WF+8*i+4,4)}, v{vW}, {sr(S_W2F,4)}, s{sKW} offen offset:1024 sc1")
        e(f"s_add_u32 s{sKW}, s{sKW}, {8*16384}")
    e("s_nop 1")
    for i in range(NL, NL + PRE): wl(i)
    e(f"v_add_u32 v{P1}, s{sKH}, v{vL16}")
    e(f"s_waitcnt vmcnt({2*PRE})")
    for i in range(2 * NL):
        e(f"ds_read_b128 {vr(WF+4*i,4)}, v{P1} offset:{1024*i}")
    e("s_waitcnt lgkmcnt(0)")
    e("s_barrier")
    stamp(0)
    e(f"s_cmp_lg_u32 s{sW}, 0")
    e("s_cbranch_scc1 P2_NF")
    e(f"s_lshl_b32 s3, s{sRB}, 7")
    e(f"s_lshl_b32 s4, s{sCG}, 2")
    e("s_add_u32 s3, s3, s4")
    e("s_add_u32 s3, s3, 4096")
    e(f"v_mov_b32 v{P1}, s3")
    e(f"v_mov_b32 v{P2_}, s100")
    e("s_mov_b64 exec, 1")
    e(f"buffer_store_dword v{P2_}, v{P1}, {sr(S_FL,4)}, 0 offen sc1")
    e("s_mov_b64 exec, -1")
    lab("P2_NF")
    for i in range(NL + PRE, NK): wl(i)
    srd(S_X, 36, 2048 * 1024)
    srd(S_O, 96, 2048 * 1024)
    e(f"s_lshl_b32 s6, s{sMB}, 11")
    e(f"v_add_u32 v{vH}, s6, v{vL16}")
    e(f"s_lshl_b32 s{sKH}, s{sW}, 16")
    e(f"v_bfe_u32 v{P1}, v{vL16}, 4, 5")
    e(f"v_lshrrev_b32 v{vXO}, 9, v{vL16}")
    e(f"v_lshlrev_b32 v{P1}, 10, v{P1}")
    e(f"v_lshl_add_u32 v{vXO}, v{vXO}, 3, v{P1}")
    e(f"s_lshl_b32 s3, s{sMB}, 16")
    e(f"s_lshr_b32 s4, s{sW}, 2")
    e("s_lshl_b32 s4, s4, 15")
    e("s_add_u32 s3, s3, s4")
    e(f"s_lshl_b32 s4, s{sNB}, 7")
    e("s_add_u32 s3, s3, s4")
    e(f"s_and_b32 s4, s{sW}, 3")
    e("s_lshl_b32 s4, s4, 5")
    e("s_add_u32 s3, s3, s4")
    e(f"v_add_u32 v{vXO}, s3, v{vXO}")
    for q in range(2):
        e(f"buffer_load_dwordx2 {vr(XR+2*q,2)}, v{vXO}, {sr(S_X,4)}, 0 offen offset:{16*q}")
    stamp(1)
    e(f"s_cmp_lg_u32 s{sW}, 0")
    e("s_cbranch_scc1 P2_GO")
    e(f"v_bfe_u32 v{P1}, v{vL16}, 2, 6")
    e(f"s_lshr_b32 s4, s{sMB}, 1")
    e("s_lshl_b32 s4, s4, 7")
    e("s_add_u32 s4, s4, 4096")
    e("s_mov_b32 s3, 0")
    lab("P2_POLL")
    e(f"buffer_load_dword v{P2_}, v{P1}, {sr(S_FL,4)}, s4 offen sc1")
    e("s_add_u32 s3, s3, 1")
    e("s_waitcnt vmcnt(0)")
    e(f"v_cmp_ne_u32 vcc, s100, v{P2_}")
    e("s_cmp_gt_u32 s3, 0x8000")
    e("s_cbranch_scc1 P2_GO")
    e("s_cbranch_vccz P2_GO")
    e("s_sleep 1")
    e("s_branch P2_POLL")
    lab("P2_GO")
    e("s_barrier")
    stamp(2)
    def hl(i):
        b = HR + 8 * (i % D)
        e(f"buffer_load_dwordx4 {vr(b,4)}, v{vH}, {sr(S_HF,4)}, s{sKH} offen sc1")
        e(f"buffer_load_dwordx4 {vr(b+4,4)}, v{vH}, {sr(S_HF,4)}, s{sKH} offen offset:1024 sc1")
        e(f"s_add_u32 s{sKH}, s{sKH}, {8*65536}")
    for i in range(D): hl(i)
    issued = D
    stamp(3)
    for i in range(NK):
        b = HR + 8 * (i % D); w = WF + 8 * i
        out = 2 * (issued - i - 1)
        c = (lambda r: "0") if i == 0 else (lambda r: vr(r, 16))
        e(f"s_waitcnt vmcnt({out + 1})")
        e(f"v_mfma_f32_32x32x16_bf16 {vr(ACC,16)}, {vr(w,4)}, {vr(b,4)}, {c(ACC)}")
        e(f"v_mfma_f32_32x32x16_bf16 {vr(ACC+16,16)}, {vr(w+4,4)}, {vr(b,4)}, {c(ACC+16)}")
        e(f"s_waitcnt vmcnt({out})")
        e(f"v_mfma_f32_32x32x16_bf16 {vr(ACC+32,16)}, {vr(w,4)}, {vr(b+4,4)}, {c(ACC+32)}")
        e(f"v_mfma_f32_32x32x16_bf16 {vr(ACC+48,16)}, {vr(w+4,4)}, {vr(b+4,4)}, {c(ACC+48)}")
        if i == 7: stamp(4)
        if issued < NK:
            hl(issued); issued += 1
    stamp(6)
    e(f"s_lshl_b32 s3, s{sW}, 10")
    e(f"v_add_u32 v{P1}, s3, v{vL16}")
    e(f"v_add_u32 v{vW}, 0x10000, v{P1}")
    e(f"s_lshl_b32 s3, s{sW}, 14")
    e(f"v_add_u32 v{P2_}, s3, v{vL16}")
    e("s_nop 7")
    for g in range(16):
        e(f"ds_write_b128 v{P1 if g < 8 else vW}, {vr(ACC+4*g,4)} offset:{(g % 8)*8192}")
    e("s_waitcnt lgkmcnt(0)")
    e("s_barrier")
    RD = 64
    for sidx in range(8):
        for q in range(2):
            e(f"ds_read_b128 {vr(RD+8*sidx+4*q,4)}, v{P2_} offset:{8192*q+1024*sidx}")
    for i in range(4):
        e(f"v_lshlrev_b32 v{2*i}, 16, v{XR+i}")
        e(f"v_and_b32 v{2*i+1}, 0xffff0000, v{XR+i}")
    for sidx in range(8):
        e(f"s_waitcnt lgkmcnt({14-2*sidx})")
        for r in range(0, 8, 2):
            e(f"v_pk_add_f32 {vr(r,2)}, {vr(r,2)}, {vr(RD+8*sidx+r,2)}")
    for i in range(4):
        e(f"v_cvt_pk_bf16_f32 v{XR+i}, v{2*i}, v{2*i+1}")
    for q in range(2):
        e(f"buffer_store_dwordx2 {vr(XR+2*q,2)}, v{vXO}, {sr(S_O,4)}, 0 offen offset:{16*q}")
    stamp(7)
    if STAMP: e("s_waitcnt vmcnt(0)")
    stamp(8)
    stamp_flush(50, 0x1100000, sW)

def desc(name, nv, acc):
    L.append(f""".amdhsa_kernel {name}
  .amdhsa_next_free_vgpr {nv}
  .amdhsa_next_free_sgpr 102
  .amdhsa_accum_offset {acc}
  .amdhsa_group_segment_fixed_size 0
  .amdhsa_kernarg_size 80
  .amdhsa_user_sgpr_count 2
  .amdhsa_user_sgpr_kernarg_segment_ptr 1
  .amdhsa_system_sgpr_workgroup_id_x 1
.end_amdhsa_kernel""")

L.append(HEADER.rstrip())
L.append("; @launch kernel=k1_kernel grid=(256,1,1) block=(512,1,1) lds=163840")
if not FUSE: L.append("; @launch kernel=k2_kernel grid=(256,1,1) block=(256,1,1) lds=49152")
L.append('.amdgcn_target "amdgcn-amd-amdhsa--gfx950"\n.text')
kernel1()
if not FUSE: kernel2()
L.append('.section .rodata,"a"\n.p2align 6')
desc("k1_kernel", 256, 256)
if not FUSE:
    L.append(".p2align 6")
    desc("k2_kernel", 496, 256)
open(OUT, "w").write("\n".join(x for x in L if x is not None) + "\n")
print("wrote", OUT, len(L), "lines")
```

```python
import sys
OUT = sys.argv[1] if len(sys.argv) > 1 else "parallel_sum__sliding_local_dilated__glu_gated_swiglu__prompt.s"
L = []
import os
EXP = os.environ.get("EXP", "")
INLOOP = [False]
PD = [int(c) for c in os.environ.get("PD", "222")]
FUSE = int(os.environ.get("FUSE", "1"))
SC = " sc1" if FUSE else ""
def e(s):
    if INLOOP[0]:
        if "nodma" in EXP and ("offen lds" in s): return
        if "nomfma" in EXP and s.startswith("v_mfma"): return
        if "nolds" in EXP and s.startswith("ds_read"): return
        if "novalu" in EXP and (s.startswith("v_lshlrev_b32") or s.startswith("v_and_b32") or s.startswith("v_add_f32") or s.startswith("v_fmac")): return
        if "nox" in EXP and ("offen lds" in s) and "s[8:11]" in s: return
        if "noqkv" in EXP and ("offen lds" in s) and "s[20:23]" in s: return
        if "now13" in EXP and ("offen lds" in s) and ("s[12:15]" in s or "s[16:19]" in s): return
    L.append("    " + s)
def lab(s): L.append(s + ":")
def capture(fn):
    n = len(L); fn(); r = [x.strip() for x in L[n:]]; del L[n:]
    return r
def vr(b, n): return f"v[{b}:{b+n-1}]"
def ar(b, n): return f"a[{b}:{b+n-1}]"
def sr(b, n): return f"s[{b}:{b+n-1}]"

WSLOT = 18496; NW = 3
W1OFF = 0; QKVOFF = 6144; W3OFF = 12320
XBASE = 92544; XSLOT = 18432; NX = 2
MISC = XBASE + 3 * XSLOT
ONES = MISC
TS = MISC + 4096
CS = MISC + 12288
CS9 = CS + 1024
RS = CS9 + 512
SQ = MISC + 1024
HSC = RS + 512
HSC = TS
assert RS + 512 <= 163840
STG = 0; SPITCH = 272
TAGL = RS + 512; FLG = 0xC00000
HF_BYTES = 118 * 64 * 1024
W2F_OFF = 0x800000; W2F_BYTES = 118 * 16 * 1024
LOG2E = 1.4426950408889634
import struct
def f2u(x): return struct.unpack("<I", struct.pack("<f", x))[0]

HEADER = open("parallel_sum__sliding_local_dilated__glu_gated_swiglu__prompt.s.ref").read().split("; Override launch")[0]

def srd(d, base, nbytes):
    e(f"s_mov_b32 s{d}, s{base}")
    e(f"s_and_b32 s{d+1}, s{base+1}, 0xffff")
    e(f"s_mov_b32 s{d+2}, {nbytes}")
    e(f"s_mov_b32 s{d+3}, 0x00020000")

import os
STAMP = int(os.environ.get("STAMP", "0"))
def stamp(idx, sbase=90):
    if not STAMP: return
    e(f"s_memrealtime s[{sbase}:{sbase+1}]")
    e(f"s_memtime s[{sbase+2}:{sbase+3}]")
    e("s_waitcnt lgkmcnt(0)")
    e(f"v_writelane_b32 v{STV}, s{sbase}, {2*idx}")
    e(f"v_writelane_b32 v{STV}, s{sbase+2}, {2*idx+1}")
def stamp_flush(wsreg, off, swave, lanereg_x16=None):
    if not STAMP: return
    e(f"s_add_u32 s92, s{wsreg}, {off}")
    e(f"s_addc_u32 s93, s{wsreg+1}, 0")
    e("s_and_b32 s93, s93, 0xffff")
    e("s_mov_b32 s94, 0x100000")
    e("s_mov_b32 s95, 0x00020000")
    e(f"s_lshl_b32 s90, s2, 3")
    e(f"s_add_u32 s90, s90, s{swave}")
    e("s_lshl_b32 s90, s90, 8")
    e("v_mbcnt_lo_u32_b32 v1, -1, 0")
    e("v_mbcnt_hi_u32_b32 v1, -1, v1")
    e("v_lshlrev_b32 v1, 2, v1")
    e(f"buffer_store_dword v{STV}, v1, s[92:95], s90 offen")
STV = 255
def weave(mf, va):
    out = []
    n = len(mf);
    per = [len(va) * (i + 1) // n - len(va) * i // n for i in range(n)]
    k = 0
    for i, m in enumerate(mf):
        out.append(m)
        out.extend(va[k:k + per[i]]); k += per[i]
    return out

def kernel1():
    ROT1 = int(os.environ.get("K1ROT", "1"))
    S_X, S_W1, S_W3, S_QKV, S_WT, S_HF, S_W2F = 8, 12, 16, 20, 24, 28, 32
    sW, sG, sMH, sRB, sCG, sM0, sTF, sTH, sFW, sOF, sOH, sHSEL, sHAS = 52, 53, 54, 55, 56, 57, 58, 59, 60, 61, 62, 63, 64
    sRWA, sRWB, sRX, sKC, sKD, sKO1, sKOQ, sKOX, sIT, sT0, sT1, sT2, sT3 = 65, 66, 67, 68, 69, 70, 71, 72, 73, 74, 75, 76, 77
    sDMA, sMT0, sMT1, sID = 78, 79, 80, 81
    sDWs, sDXs = 83, 84
    sMK = 86
    sWPW, sWPX, sWPD = 88, 89, 85
    ACC = 0
    ACC9 = 64
    HST = 68
    CSA, CS9A, SQA = 80, 84, 88
    FX = [92, 100]
    FW = [108, 120]
    FHX, FHX1, FHW, FSQ, SEL = 132, 136, 140, 144, 148
    vLane, vTid = 152, 153
    vDW13, vDQKV, vDX = 154, 155, 156
    vXa0, vXa1 = 159, 160
    vWA, vWB, vB9, vM9 = 161, 162, 163, 164
    vHXa, vHWa, vMH1, vCH1, vSQa = 165, 166, 167, 168, 169
    aX = 170
    aWA, aWB, a9 = 178, 179, 180
    aHX, aHX1, aHW, aSQ = 181, 182, 183, 184
    T = 186
    WT = 200
    vTA1, vTA2 = 204, 205
    vTMP = 206
    PF = int(os.environ.get("PF", "0")); LA = int(os.environ.get("LA", "2")); PFO = int(os.environ.get("PFO", "1")); PFB = int(os.environ.get("PFB", "2")); PV = 210

    L.append(".globl k1_kernel\n.p2align 8\n.type k1_kernel,@function\nk1_kernel:")
    e("s_cmp_ge_u32 s2, 256")
    e("s_cbranch_scc1 K1_END")
    e("s_load_dwordx4 s[36:39], s[0:1], 0")
    e("s_load_dwordx2 s[40:41], s[0:1], 16")
    e("s_load_dwordx4 s[44:47], s[0:1], 32")
    e("s_load_dwordx2 s[48:49], s[0:1], 48")
    e("s_load_dwordx2 s[50:51], s[0:1], 72")
    if FUSE: e("s_load_dwordx4 s[96:99], s[0:1], 56")
    stamp(0)
    e(f"v_mov_b32 v{vTid}, v0")
    if FUSE:
        for r_ in (251, 244, 245): e(f"v_mov_b32 v{r_}, 0")
    e(f"v_and_b32 v{vLane}, 63, v0")
    e(f"v_lshrrev_b32 v{T}, 6, v0")
    e("s_and_b32 s3, s2, 7")
    e(f"v_readfirstlane_b32 s{sW}, v{T}")
    e("s_lshr_b32 s4, s2, 3")
    e("s_and_b32 s5, s3, 1")
    e("s_lshl_b32 s5, s5, 3")
    e("s_and_b32 s6, s4, 7")
    e(f"s_add_u32 s{sRB}, s5, s6")
    e("s_lshr_b32 s5, s3, 1")
    e("s_lshl_b32 s5, s5, 2")
    e("s_lshr_b32 s6, s4, 3")
    e(f"s_add_u32 s{sCG}, s5, s6")
    RC, RR, RXC = [int(t) for t in os.environ.get("K1R", "4,4,1").split(",")]
    e(f"s_mul_i32 s6, s6, {RC}")
    e(f"s_mul_i32 s5, s4, {RR}")
    e("s_add_u32 s6, s6, s5")
    RA, RB = [int(t) for t in os.environ.get("K1X", "2,2").split(",")]
    e("s_and_b32 s5, s3, 1")
    e(f"s_mul_i32 s5, s5, {RA}")
    e("s_add_u32 s6, s6, s5")
    e("s_lshr_b32 s5, s3, 1")
    e(f"s_mul_i32 s5, s5, {RB}")
    e("s_add_u32 s6, s6, s5")
    e(f"s_and_b32 s{sKD}, s6, 7")
    e(f"s_lshl_b32 s{sKC}, s{sKD}, 1")
    e(f"s_lshl_b32 s{sM0}, s{sRB}, 7")
    e(f"s_and_b32 s{sG}, s{sW}, 3")
    e(f"s_lshr_b32 s{sMH}, s{sW}, 2")
    e(f"s_lshr_b32 s3, s{sCG}, 1")
    e("s_mul_i32 s3, s3, 11")
    e(f"s_and_b32 s4, s{sCG}, 1")
    e(f"s_mul_i32 s5, s{sCG}, 5")
    e("s_add_u32 s5, s5, 6")
    e(f"s_cmp_lt_u32 s{sCG}, 12")
    e("s_cselect_b32 s3, s3, s5")
    e(f"s_cselect_b32 s{sHSEL}, s4, 0")
    e(f"s_cselect_b32 s{sHAS}, 1, 0")
    e(f"s_add_u32 s{sTH}, s3, 5")
    e(f"s_mul_i32 s4, s{sHSEL}, 6")
    e(f"s_add_u32 s{sTF}, s3, s4")
    e(f"s_lshl_b32 s5, s3, 5")
    e(f"s_mul_i32 s4, s{sHSEL}, 176")
    e(f"s_add_u32 s{sFW}, s5, s4")
    e(f"s_lshl_b32 s{sOF}, s{sHSEL}, 4")
    e(f"s_mul_i32 s4, s{sHSEL}, 160")
    e(f"s_sub_u32 s{sOH}, 160, s4")
    e(f"v_mul_u32_u24 v{T}, 43691, v{vTid}")
    e(f"v_lshrrev_b32 v{T}, 19, v{T}")
    e(f"v_mul_u32_u24 v{T+1}, 12, v{T}")
    e(f"v_sub_u32 v{T+1}, v{vTid}, v{T+1}")
    e(f"v_mul_u32_u24 v{vDW13}, 2752, v{T}")
    e(f"v_lshl_add_u32 v{vDW13}, v{T+1}, 4, v{vDW13}")
    e(f"v_add_u32 v{vDW13}, s{sFW}, v{vDW13}")
    e(f"v_mul_u32_u24 v{vDQKV}, 3072, v{T}")
    e(f"v_lshrrev_b32 v{T+2}, 2, v{T+1}")
    e(f"v_lshl_add_u32 v{vDQKV}, v{T+2}, 10, v{vDQKV}")
    e(f"v_and_b32 v{T+2}, 3, v{T+1}")
    e(f"v_lshl_add_u32 v{vDQKV}, v{T+2}, 4, v{vDQKV}")
    e(f"s_lshl_b32 s3, s{sCG}, 6")
    e(f"v_add_u32 v{vDQKV}, s3, v{vDQKV}")
    e(f"s_mul_i32 s3, s{sW}, 24")
    e(f"v_lshrrev_b32 v{T}, 3, v{vLane}")
    e(f"v_add_u32 v{T}, s3, v{T}")
    e(f"v_and_b32 v{T+1}, 7, v{vLane}")
    e(f"s_sub_u32 s4, s{sM0}, 16")
    e(f"v_bfe_u32 v{T+3}, v{T}, 1, 3")
    e(f"v_xor_b32 v{T+3}, v{T+3}, v{T+1}")
    e(f"v_add_u32 v{T+2}, s4, v{T}")
    e(f"v_lshlrev_b32 v{T+4}, 10, v{T+2}")
    e(f"v_lshl_add_u32 v{vDX}, v{T+3}, 4, v{T+4}")
    e(f"v_xor_b32 v{vDX+1}, 64, v{vDX}")
    e(f"v_add_u32 v{vDX+1}, 0x2000, v{vDX+1}")
    e(f"v_add_u32 v{vDX+2}, 0x4000, v{vDX}")
    e(f"v_min_u32 v{vDX}, 0x80000000, v{vDX}")
    e(f"v_min_u32 v{vDX+1}, 0x80000000, v{vDX+1}")
    e(f"s_lshl_b32 s{sID}, s2, 3")
    e(f"s_add_u32 s{sID}, s{sID}, s{sW}")
    e(f"s_lshr_b32 s3, s{sID}, 4")
    e(f"s_and_b32 s4, s{sID}, 15")
    e("s_sub_u32 s5, s3, 32")
    e("s_cmp_lt_u32 s3, 32")
    e("s_cselect_b32 s5, s3, s5")
    e(f"s_cselect_b32 s{sT0}, 1, 0")
    e("s_lshl_b32 s5, s5, 14")
    e("s_lshl_b32 s4, s4, 6")
    e("s_add_u32 s5, s5, s4")
    e(f"v_lshrrev_b32 v{T}, 2, v{vLane}")
    e(f"v_lshlrev_b32 v{T}, 10, v{T}")
    e(f"v_and_b32 v{T+1}, 3, v{vLane}")
    e(f"v_lshl_add_u32 v{T}, v{T+1}, 4, v{T}")
    e(f"v_add_u32 v{T+6}, s5, v{T}")
    e(f"s_lshl_b32 s{sWPW}, s{sW}, 10")
    e(f"s_mul_i32 s{sWPX}, s{sW}, 3072")
    e(f"s_add_u32 s{sWPX}, s{sWPX}, {XBASE}")
    e(f"s_mov_b32 s{sDWs}, s{sWPW}")
    e(f"s_mov_b32 s{sWPD}, s{sWPW}")
    e(f"s_mov_b32 s{sDXs}, s{sWPX}")
    e("s_waitcnt lgkmcnt(0)")
    srd(S_X, 36, 2048 * 1024)
    srd(S_QKV, 38, 512 * 3072)
    srd(S_W1, 44, 512 * 2752)
    srd(S_W3, 46, 512 * 2752)
    def dmaW():
        e(f"s_mul_i32 s{sKO1}, s{sKC}, {32*2752}")
        e(f"s_mul_i32 s{sKOQ}, s{sKC}, {32*3072}")
        e(f"s_add_u32 m0, s{sDWs}, {W1OFF}")
        e(f"s_add_u32 s{sKC}, s{sKC}, 1")
        e(f"buffer_load_dwordx4 v{vDW13}, {sr(S_W1,4)}, s{sKO1} offen lds")
        e(f"s_add_u32 m0, s{sDWs}, {QKVOFF}")
        e(f"s_and_b32 s{sKC}, s{sKC}, 15")
        e(f"buffer_load_dwordx4 v{vDQKV}, {sr(S_QKV,4)}, s{sKOQ} offen lds")
        e(f"s_add_u32 m0, s{sDWs}, {W3OFF}")
        e(f"s_add_u32 s{sDWs}, s{sDWs}, {WSLOT}")
        e(f"buffer_load_dwordx4 v{vDW13}, {sr(S_W3,4)}, s{sKO1} offen lds")
        e(f"s_cmp_ge_u32 s{sDWs}, {NW*WSLOT}")
        e(f"s_cselect_b32 s{sDWs}, s{sWPD}, s{sDWs}")
    def dmaX():
        e(f"s_lshl_b32 s{sKOX}, s{sKD}, 7")
        e(f"s_add_u32 m0, s{sDXs}, 0")
        e(f"s_add_u32 s{sKD}, s{sKD}, 1")
        e(f"buffer_load_dwordx4 v{vDX}, {sr(S_X,4)}, s{sKOX} offen lds")
        e(f"s_add_u32 m0, s{sDXs}, 1024")
        e(f"s_and_b32 s{sKD}, s{sKD}, 7")
        e(f"buffer_load_dwordx4 v{vDX+1}, {sr(S_X,4)}, s{sKOX} offen lds")
        e(f"s_add_u32 m0, s{sDXs}, 2048")
        e(f"s_add_u32 s{sDXs}, s{sDXs}, {XSLOT}")
        e(f"buffer_load_dwordx4 v{vDX+2}, {sr(S_X,4)}, s{sKOX} offen lds")
        e(f"s_cmp_ge_u32 s{sDXs}, {XBASE+NX*XSLOT}")
        e(f"s_cselect_b32 s{sDXs}, s{sWPX}, s{sDXs}")
    e(f"s_cmp_eq_u32 s{sT0}, 1")
    e(f"s_cselect_b32 s{S_WT}, s40, s48")
    e(f"s_cselect_b32 s{S_WT+1}, s41, s49")
    e(f"s_mov_b32 s3, {1376*1024}")
    e(f"s_cselect_b32 s{S_WT+2}, {512*1024}, s3")
    e(f"s_and_b32 s{S_WT+1}, s{S_WT+1}, 0xffff")
    e(f"s_mov_b32 s{S_WT+3}, 0x00020000")
    e(f"buffer_load_dwordx4 {vr(WT,4)}, v{T+6}, {sr(S_WT,4)}, 0 offen")
    e(f"s_cmp_lt_u32 s{sW}, 6")
    e(f"s_cselect_b32 s{sDMA}, 1, 0")
    e("s_cbranch_scc0 K1_PRO_PF")
    dmaW(); dmaX()
    if PF:
        e("s_branch K1_PRO_NODMA0")
    if FUSE and not PF: e("s_branch K1_PRO_NODMA0")
    lab("K1_PRO_PF")
    if FUSE:
        srd(44, 98, 256)
        e(f"s_lshl_b32 s3, s{sCG}, 6")
        e(f"s_lshl_b32 s4, s{sRB}, 2")
        e("s_add_u32 s3, s3, s4")
        e("v_mov_b32 v244, s3")
        e(f"v_lshlrev_b32 v245, 4, v{vLane}")
        e("s_lshr_b32 s3, s2, 3")
        e("s_lshl_b32 s3, s3, 3")
        e(f"s_add_u32 s3, s3, s{sW}")
        e("s_cmp_eq_u32 s3, 7")
        e("s_cbranch_scc0 K1_PRO_NODMA0")
        e("s_memrealtime s[100:101]")
        e("s_waitcnt lgkmcnt(0)")
        e("s_or_b32 s100, s100, 1")
        e("v_mov_b32 v250, s100")
        e("s_mov_b64 exec, 1")
        e("buffer_atomic_cmpswap v[250:251], v251, s[44:47], 0 offen sc1")
        e("s_mov_b64 exec, -1")
    if PF >= 2:
        e(f"v_lshlrev_b32 v{PV}, {PF}, v{vLane}")
        e(f"s_cmp_eq_u32 s{sW}, 6")
        e("s_cbranch_scc1 K1_PRO_PFW")
        e(f"buffer_load_dword v{PV+12}, v{PV}, {sr(S_QKV,4)}, 0 offen")
        e(f"buffer_load_dword v{PV+12}, v{PV}, {sr(S_W3,4)}, 0 offen")
        e("s_branch K1_PRO_NODMA0")
        lab("K1_PRO_PFW")
        e(f"buffer_load_dword v{PV+12}, v{PV}, {sr(S_W1,4)}, 0 offen")
        e(f"buffer_load_dword v{PV+12}, v{PV}, {sr(S_X,4)}, 0 offen")
    if PF == 1:
        e("s_and_b32 s3, s2, 7")
        e("s_lshr_b32 s4, s2, 3")
        e(f"s_mul_i32 s5, s3, {RXC}")
        e(f"s_add_u32 s5, s5, {PFO}")
        e(f"s_cmp_eq_u32 s{sW}, 6")
        e("s_cbranch_scc1 K1_PRO_PFW")
        e(f"v_lshrrev_b32 v{PV+8}, 5, v{vLane}")
        e(f"v_add_u32 v{PV+8}, s5, v{PV+8}")
        e(f"v_and_b32 v{PV+9}, 31, v{vLane}")
        e("s_and_b32 s6, s3, 1")
        e("s_lshl_b32 s6, s6, 5")
        e("s_add_u32 s6, s6, s4")
        e("s_lshl_b32 s6, s6, 5")
        e(f"v_add_u32 v{PV+9}, s6, v{PV+9}")
        e(f"v_lshlrev_b32 v{PV+9}, 10, v{PV+9}")
        for i in range(4):
            e(f"v_add_u32 v{PV+10}, {2*i}, v{PV+8}")
            e(f"v_and_b32 v{PV+10}, 7, v{PV+10}")
            e(f"v_lshl_add_u32 v{PV+i}, v{PV+10}, 7, v{PV+9}")
            if i < 2: e(f"buffer_load_dword v{PV+12}, v{PV+i}, {sr(S_X,4)}, 0 offen")
        e("s_branch K1_PRO_NODMA0")
        lab("K1_PRO_PFW")
        e(f"v_lshrrev_b32 v{PV+8}, 4, v{vLane}")
        e(f"v_add_u32 v{PV+8}, s5, v{PV+8}")
        e(f"v_bfe_u32 v{PV+9}, v{vLane}, 3, 1")
        e("s_lshl_b32 s4, s4, 1")
        e(f"v_add_u32 v{PV+9}, s4, v{PV+9}")
        e(f"v_and_b32 v{PV+10}, 7, v{vLane}")
        e(f"v_lshlrev_b32 v{PV+11}, 7, v{PV+10}")
        e(f"v_min_u32 v{PV+11}, 700, v{PV+11}")
        e("s_lshr_b32 s3, s3, 1")
        e("s_mul_i32 s6, s3, 704")
        e(f"v_add_u32 v{PV+11}, s6, v{PV+11}")
        e(f"v_lshrrev_b32 v{PV+13}, 1, v{PV+10}")
        e(f"v_lshlrev_b32 v{PV+13}, 10, v{PV+13}")
        e(f"v_and_b32 v{PV+10}, 1, v{PV+10}")
        e(f"v_lshl_add_u32 v{PV+13}, v{PV+10}, 7, v{PV+13}")
        e("s_lshl_b32 s6, s3, 8")
        e(f"v_add_u32 v{PV+13}, s6, v{PV+13}")
        e("s_movk_i32 s5, 2752")
        e("s_movk_i32 s6, 3072")
        for i in range(2):
            e(f"v_add_u32 v{PV+10}, {4*i}, v{PV+8}")
            e(f"v_and_b32 v{PV+10}, 7, v{PV+10}")
            e(f"v_lshl_add_u32 v{PV+10}, v{PV+10}, 6, v{PV+9}")
            e(f"v_mad_u32_u24 v{PV+2*i}, v{PV+10}, s5, v{PV+11}")
            e(f"v_mad_u32_u24 v{PV+2*i+1}, v{PV+10}, s6, v{PV+13}")
            if i == 0:
                e(f"buffer_load_dword v{PV+12}, v{PV}, {sr(S_W1,4)}, 0 offen")
                e(f"buffer_load_dword v{PV+12}, v{PV+1}, {sr(S_QKV,4)}, 0 offen")
                e(f"buffer_load_dword v{PV+12}, v{PV}, {sr(S_W3,4)}, 0 offen")
    lab("K1_PRO_NODMA0")
    e("s_barrier")
    stamp(2)
    e(f"s_cmp_eq_u32 s{sDMA}, 1")
    e("s_cbranch_scc0 K1_PRO_NODMA1")
    dmaW()
    e("s_branch K1_PRO_DMA1")
    lab("K1_PRO_NODMA1")
    for d in (S_X, S_W1, S_W3, S_QKV): e(f"s_mov_b32 s{d+2}, 0")
    e(f"s_mov_b32 s{sDWs}, {NW*WSLOT}")
    e(f"s_mov_b32 s{sDXs}, {XBASE+NX*XSLOT}")
    e(f"s_mov_b32 s{sWPD}, {NW*WSLOT}")
    e(f"s_mov_b32 s{sWPX}, {XBASE+NX*XSLOT}")
    lab("K1_PRO_DMA1")
    e(f"s_mov_b32 s{S_HF}, s50")
    e(f"s_and_b32 s{S_HF+1}, s51, 0xffff")
    e(f"s_mov_b32 s{S_HF+2}, {HF_BYTES}")
    e(f"s_mov_b32 s{S_HF+3}, 0x00020000")
    e(f"s_add_u32 s{S_W2F}, s50, {W2F_OFF}")
    e(f"s_addc_u32 s{S_W2F+1}, s51, 0")
    e(f"s_and_b32 s{S_W2F+1}, s{S_W2F+1}, 0xffff")
    e(f"s_mov_b32 s{S_W2F+2}, {W2F_BYTES}")
    e(f"s_mov_b32 s{S_W2F+3}, 0x00020000")
    S_FL = 40
    if FUSE:
        e(f"s_add_u32 s{S_FL}, s50, {FLG}")
        e(f"s_addc_u32 s{S_FL+1}, s51, 0")
        e(f"s_and_b32 s{S_FL+1}, s{S_FL+1}, 0xffff")
        e(f"s_mov_b32 s{S_FL+2}, 8192")
        e(f"s_mov_b32 s{S_FL+3}, 0x00020000")
    for i in range(4): e(f"v_mov_b32 v{T+8+i}, 0x3f803f80")
    e(f"v_mov_b32 v{T+4}, {ONES}")
    e(f"ds_write_b128 v{T+4}, {vr(T+8,4)}")
    for o in (768, 3072, 3840):
        e(f"ds_write_b64 v{T+4}, {vr(T+8,2)} offset:{o}")
    e(f"v_and_b32 v{T}, 31, v{vLane}")
    e(f"v_lshrrev_b32 v{T+1}, 5, v{vLane}")
    e(f"v_bfe_u32 v{T+2}, v{vLane}, 1, 3")
    e(f"v_xor_b32 v{T+2}, v{T+2}, v{T+1}")
    e(f"v_lshlrev_b32 v{T+2}, 4, v{T+2}")
    e(f"v_lshl_add_u32 v{T+2}, v{T}, 7, v{T+2}")
    e(f"s_and_b32 s3, s{sG}, 1")
    e(f"s_lshl_b32 s4, s{sMH}, 1")
    e(f"s_add_u32 s{sMT0}, s4, s3")
    e(f"s_xor_b32 s{sMT1}, s{sMT0}, 1")
    e(f"s_lshl_b32 s3, s{sMT0}, 12")
    e(f"s_add_u32 s3, s3, {16*128}")
    e(f"v_add_u32 v{vXa0}, s3, v{T+2}")
    e(f"s_lshl_b32 s3, s{sMT1}, 12")
    e(f"s_add_u32 s3, s3, {16*128}")
    e(f"v_add_u32 v{vXa1}, s3, v{T+2}")
    e(f"v_bfe_u32 v{T}, v{vLane}, 4, 1")
    e(f"v_bfe_u32 v{T+2}, v{vLane}, 2, 2")
    e(f"v_lshl_add_u32 v{T+2}, v{T+1}, 3, v{T+2}")
    e(f"v_mul_u32_u24 v{T+2}, 192, v{T+2}")
    e(f"v_and_b32 v{T+3}, 3, v{vLane}")
    e(f"v_lshl_add_u32 v{T+4}, v{T+3}, 3, v{T+2}")
    e(f"v_lshl_add_u32 v{T+5}, v{T}, 5, v{T+4}")
    e(f"v_add_u32 v{T+5}, {QKVOFF}, v{T+5}")
    e(f"v_mul_u32_u24 v{T+7}, {W3OFF}, v{T}")
    e(f"v_add_u32 v{T+7}, v{T+7}, v{T+4}")
    e(f"v_add_u32 v{T+7}, s{sOF}, v{T+7}")
    for slot, dst in ((0, vWA), (1, vWB)):
        e(f"s_lshl_b32 s3, s{sG}, 1")
        e(f"s_add_u32 s3, s3, {slot}")
        e("s_lshl_b32 s4, s3, 6")
        e("s_sub_u32 s5, s3, 3")
        e("s_lshl_b32 s5, s5, 5")
        e("s_cmp_lt_u32 s3, 3")
        e("s_cselect_b32 s4, s4, s5")
        e(f"s_cselect_b64 {sr(sMK,2)}, -1, 0")
        e(f"v_cndmask_b32 v{dst}, v{T+7}, v{T+5}, {sr(sMK,2)}")
        e(f"v_add_u32 v{dst}, s4, v{dst}")
    e(f"v_lshrrev_b32 v{T+8}, 1, v{T+3}")
    e(f"v_mul_u32_u24 v{T+8}, {W3OFF}, v{T+8}")
    e(f"v_and_b32 v{T+9}, 1, v{T+3}")
    e(f"v_lshl_add_u32 v{T+8}, v{T+9}, 3, v{T+8}")
    e(f"v_add_u32 v{T+8}, v{T+8}, v{T+2}")
    e(f"v_add_u32 v{T+8}, s{sOH}, v{T+8}")
    e(f"v_mov_b32 v{T+9}, {ONES}")
    e(f"v_cmp_eq_u32 vcc, 1, v{T}")
    e(f"v_xor_b32 v{vM9}, 1, v{T}")
    e("s_nop 0")
    e(f"v_cndmask_b32 v{vB9}, v{T+8}, v{T+9}, vcc")
    stamp(3)
    e(f"v_and_b32 v{T}, 15, v{vLane}")
    e(f"v_lshrrev_b32 v{T+1}, 4, v{vLane}")
    e(f"v_bfe_u32 v{T+2}, v{vLane}, 1, 3")
    e(f"v_xor_b32 v{T+2}, v{T+2}, v{T+1}")
    e(f"v_lshlrev_b32 v{T+2}, 4, v{T+2}")
    e(f"v_lshl_add_u32 v{vHXa}, v{T}, 7, v{T+2}")
    e(f"s_lshl_b32 s3, s{sW}, 11")
    e(f"s_add_u32 s3, s3, 2048")
    e(f"v_add_u32 v{vSQa}, s3, v{vHXa}")
    e(f"v_cmp_eq_u32 vcc, 0, v{T}")
    e(f"v_mov_b32 v{T+4}, 0")
    e(f"v_mov_b32 v{T+5}, 1")
    e(f"v_cndmask_b32 v{vCH1}, v{T+4}, v{T+9}, vcc")
    e(f"v_cndmask_b32 v{vMH1}, v{T+5}, v{T+4}, vcc")
    e(f"v_and_b32 v{T+5}, 1, v{T+1}")
    e(f"v_cmp_eq_u32 vcc, v{T+5}, v{T}")
    e(f"v_mov_b32 v{T+5}, 0x3f803f80")
    e("s_nop 0")
    for i in range(4): e(f"v_cndmask_b32 v{SEL+i}, v{T+4}, v{T+5}, vcc")
    e(f"v_bfe_u32 v{T+2}, v{vLane}, 2, 2")
    e(f"v_lshl_add_u32 v{T+2}, v{T+1}, 3, v{T+2}")
    e(f"v_mul_u32_u24 v{T+2}, 192, v{T+2}")
    e(f"v_lshl_add_u32 v{T+2}, v{T+3}, 3, v{T+2}")
    e(f"s_lshl_b32 s3, s{sG}, 5")
    e(f"s_add_u32 s3, s3, {QKVOFF+64}")
    e(f"v_add_u32 v{vHWa}, s3, v{T+2}")
    e(f"v_bfe_u32 v{T}, v{vLane}, 4, 1")
    e(f"v_lshrrev_b32 v{T+1}, 5, v{vLane}")
    e(f"v_bfe_u32 v{T+2}, v{vLane}, 2, 2")
    e(f"s_cmp_eq_u32 s{sT0}, 1")
    e("s_cselect_b32 s3, 3, 2")
    e("s_movk_i32 s4, 512")
    e("s_cselect_b32 s4, 256, s4")
    e(f"v_lshlrev_b32 v{T+1}, s3, v{T+1}")
    e(f"v_add_u32 v{T+1}, v{T+1}, v{T+2}")
    e(f"v_lshlrev_b32 v{T+1}, 6, v{T+1}")
    e(f"v_lshl_add_u32 v{T+1}, v{T}, 5, v{T+1}")
    e(f"v_lshl_add_u32 v{T+1}, v{T+3}, 3, v{T+1}")
    e(f"s_add_u32 s5, s{sWPW}, {TS}")
    e(f"v_add_u32 v{vTA1}, s5, v{T+1}")
    e(f"v_add_u32 v{vTA2}, s4, v{vTA1}")
    for i in range(4): e(f"v_mov_b32 v{96+i}, 0")
    e("s_nop 1")
    for r in (0, 16, 32, 48, 64, 80, 100, 116, 132):
        e(f"v_mfma_f32_32x32x16_bf16 {vr(r,16)}, {vr(96,4)}, {vr(96,4)}, 0")
    e(f"s_mov_b32 s{sRWA}, 0")
    e(f"s_mov_b32 s{sRWB}, {WSLOT}")
    e(f"s_mov_b32 s{sRX}, {XBASE}")
    e(f"s_mov_b32 s{sIT}, 1")
    e(f"s_lshr_b32 s3, s{sG}, 1")
    e(f"s_cmp_eq_u32 s3, s{sMH}")
    e("s_cbranch_scc0 K1_ROLEH")

    uid = [0]
    DL = 6 if LA == 4 else 7
    def adv(sreg, step, lim):
        e(f"s_add_u32 s{sreg}, s{sreg}, {step}")
        e(f"s_sub_u32 s{sT1}, s{sreg}, {lim}")
        e(f"s_cmp_ge_u32 s{sreg}, {lim}")
        e(f"s_cselect_b32 s{sreg}, s{sT1}, s{sreg}")
    def dma_loop(even, role9):
        uid[0] += 1
        lb = f"K1_ND{uid[0]}"
        lim = {4: (6, 6), 3: (7, 6), 2: (7, 7)}[LA][0 if even else 1]
        e(f"s_cmp_{'gt' if lim == DL else 'ge'}_u32 s{sIT}, s{sDMA}")
        e(f"s_cbranch_scc1 {lb}")
        dmaW()
        if even: dmaX()
        lab(lb)
        if even and role9 and PF == 1:
            e(f"s_lshl_b32 s{sT2}, s{sIT}, 3")
            e(f"s_add_u32 s{sT2}, s{sT2}, s{sW}")
            e(f"s_cmp_eq_u32 s{sT2}, {8*PFB+7}")
            e(f"s_cbranch_scc0 {lb}x")
            e(f"buffer_load_dword v{PV+12}, v{PV+2}, {sr(S_X,4)}, 0 offen")
            e(f"buffer_load_dword v{PV+12}, v{PV+3}, {sr(S_X,4)}, 0 offen")
            lab(lb + "x")
            e(f"s_cmp_eq_u32 s{sT2}, {8*PFB+6}")
            e(f"s_cbranch_scc0 {lb}w")
            e(f"buffer_load_dword v{PV+12}, v{PV+2}, {sr(S_W1,4)}, 0 offen")
            e(f"buffer_load_dword v{PV+12}, v{PV+3}, {sr(S_QKV,4)}, 0 offen")
            e(f"buffer_load_dword v{PV+12}, v{PV+2}, {sr(S_W3,4)}, 0 offen")
            lab(lb + "w")
    def vwait(steady, th, n, last0):
        uid[0] += 1
        lb = f"K1_VW{uid[0]}"
        e(f"s_waitcnt vmcnt({steady})")
        e(f"s_cmp_le_u32 s{sIT}, {th}")
        e(f"s_cbranch_scc1 {lb}")
        e(f"s_waitcnt vmcnt({n})")
        if last0:
            e(f"s_cmp_lt_u32 s{sIT}, 8")
            e(f"s_cbranch_scc1 {lb}")
            e("s_waitcnt vmcnt(0)")
        lab(lb)
    def x_addrs():
        r = [f"v_add_u32 v{aX}, s{sRX}, v{vXa0}", f"v_add_u32 v{aX+4}, s{sRX}, v{vXa1}"]
        for ks in range(1, 4):
            r.append(f"v_xor_b32 v{aX+ks}, {32*ks}, v{aX}")
            r.append(f"v_xor_b32 v{aX+4+ks}, {32*ks}, v{aX+4}")
        return r
    def chunk_addrs(srw, c2, role9):
        r = [f"v_add_u32 v{aWA}, s{srw}, v{vWA}", f"v_add_u32 v{aWB}, s{srw}, v{vWB}"]
        if role9:
            r.append(f"v_mad_u32_u24 v{a9}, v{vM9}, s{srw}, v{vB9}")
        else:
            r.append(f"v_add_u32 v{aHW}, s{srw}, v{vHWa}")
            r.append(f"v_add_u32 v{aHX}, s{sRX}, v{vHXa}")
            if c2: r.append(f"v_xor_b32 v{aHX}, 64, v{aHX}")
            r.append(f"v_mad_u32_u24 v{aHX1}, v{vMH1}, v{aHX}, v{vCH1}")
        r.append(f"v_add_u32 v{aSQ}, s{sRX}, v{vSQa}")
        if c2: r.append(f"v_xor_b32 v{aSQ}, 64, v{aSQ}")
        return r
    def reads(st, ks4, role9):
        ks = ks4 & 1
        o = 3072 * ks
        r = [f"ds_read_b128 {vr(FX[st],4)}, v{aX+ks4}",
             f"ds_read_b64_tr_b16 {vr(FW[st],2)}, v{aWA} offset:{o}",
             f"ds_read_b64_tr_b16 {vr(FW[st]+2,2)}, v{aWA} offset:{o+768}",
             f"ds_read_b128 {vr(FX[st]+4,4)}, v{aX+4+ks4}",
             f"ds_read_b64_tr_b16 {vr(FW[st]+4,2)}, v{aWB} offset:{o}",
             f"ds_read_b64_tr_b16 {vr(FW[st]+6,2)}, v{aWB} offset:{o+768}"]
        if role9:
            r += [f"ds_read_b64_tr_b16 {vr(FW[st]+8,2)}, v{a9} offset:{o}",
                  f"ds_read_b64_tr_b16 {vr(FW[st]+10,2)}, v{a9} offset:{o+768}"]
        return r
    def side_reads(role9):
        r = [f"ds_read_b128 {vr(FSQ,4)}, v{aSQ}"]
        if not role9:
            r += [f"ds_read_b128 {vr(FHX,4)}, v{aHX}", f"ds_read_b128 {vr(FHX1,4)}, v{aHX1}",
                  f"ds_read_b64_tr_b16 {vr(FHW,2)}, v{aHW}", f"ds_read_b64_tr_b16 {vr(FHW+2,2)}, v{aHW} offset:768"]
        return r
    def mfma_list(st, ks4, role9):
        mf = [f"v_mfma_f32_32x32x16_bf16 {vr(ACC,16)}, {vr(FW[st],4)}, {vr(FX[st],4)}, {vr(ACC,16)}",
              f"v_mfma_f32_32x32x16_bf16 {vr(ACC+16,16)}, {vr(FW[st],4)}, {vr(FX[st]+4,4)}, {vr(ACC+16,16)}",
              f"v_mfma_f32_32x32x16_bf16 {vr(ACC+32,16)}, {vr(FW[st]+4,4)}, {vr(FX[st],4)}, {vr(ACC+32,16)}",
              f"v_mfma_f32_32x32x16_bf16 {vr(ACC+48,16)}, {vr(FW[st]+4,4)}, {vr(FX[st]+4,4)}, {vr(ACC+48,16)}"]
        small = []
        if role9:
            mf.append(f"v_mfma_f32_32x32x16_bf16 {vr(ACC9,16)}, {vr(FW[st]+8,4)}, {vr(FX[st],4)}, {vr(ACC9,16)}")
            small.append(f"v_mfma_f32_16x16x32_bf16 {vr(CSA,4)}, {vr(FW[st],4)}, {vr(SEL,4)}, {vr(CSA,4)}")
        else:
            small.append(f"v_mfma_f32_16x16x32_bf16 {vr(CSA,4)}, {vr(FW[st]+4,4)}, {vr(SEL,4)}, {vr(CSA,4)}")
        if ks4 & 1:
            small.append(f"v_mfma_f32_16x16x32_bf16 {vr(SQA,4)}, {vr(FSQ,4)}, {vr(FSQ,4)}, {vr(SQA,4)}")
            if not role9:
                small.append(f"v_mfma_f32_16x16x32_bf16 {vr(ACC9,4)}, {vr(FHW,4)}, {vr(FHX,4)}, {vr(ACC9,4)}")
                small.append(f"v_mfma_f32_16x16x32_bf16 {vr(HST,4)}, {vr(FHX1,4)}, {vr(FHX,4)}, {vr(HST,4)}")
        return small, mf
    def group(st, ks4, role9, fill):
        small, mf = mfma_list(st, ks4, role9)
        MODE = os.environ.get("GMODE", "w21")
        def c9():
            if role9:
                uid[0] += 1
                lb = f"K1_C9{uid[0]}"
                e(f"s_cmp_eq_u32 s{sG}, {ks4}")
                e(f"s_cbranch_scc0 {lb}")
                e(f"v_mfma_f32_16x16x32_bf16 {vr(CS9A,4)}, {vr(FW[st]+8,4)}, {vr(SEL,4)}, {vr(CS9A,4)}")
                lab(lb)
        if MODE == "weave":
            for m in small: e(m)
            c9()
            n = len(mf) - 1
            per = [len(fill) * (i + 1) // n - len(fill) * i // n for i in range(n)] + [0]
            k = 0
            for i, m in enumerate(mf):
                e(m)
                for f in fill[k:k + per[i]]: e(f)
                k += per[i]
        elif MODE.startswith("w2"):
            seq = [(mf[0], 2), (mf[1], 2)]
            rest = mf[2:]; sm = list(small)
            while rest or sm:
                if sm: seq.append((sm.pop(0), 1))
                if rest: seq.append((rest.pop(0), 2))
            c9()
            last = int(MODE[2:] or 1)
            wts = [w_ for _, w_ in seq]
            for i in range(last): wts[-1 - i] = 0
            tot = sum(wts); acc = 0; k = 0
            for (m, _), w_ in zip(seq, wts):
                e(m)
                acc += w_
                k2 = len(fill) * acc // tot
                for f in fill[k:k2]: e(f)
                k = k2
        elif MODE == "first":
            for f in fill: e(f)
            for m in mf: e(m)
            for m in small: e(m)
            c9()
        elif MODE == "one":
            e(mf[0])
            for f in fill: e(f)
            for m in mf[1:]: e(m)
            for m in small: e(m)
            c9()
        elif MODE == "two":
            e(mf[0])
            h = len(fill) // 2
            for f in fill[:h]: e(f)
            e(mf[1])
            for f in fill[h:]: e(f)
            for m in mf[2:]: e(m)
            for m in small: e(m)
            c9()

    def mainloop(role9):
        nm = "9" if role9 else "H"
        uid[0] += 1
        lb = f"K1_TJ{uid[0]}"
        e("s_waitcnt vmcnt(9)")
        e(f"s_cmp_eq_u32 s{sDMA}, 1")
        e(f"s_cbranch_scc1 {lb}")
        e(f"s_waitcnt vmcnt({2 if PF else 0})")
        lab(lb)
        e(f"s_mul_i32 s{sDMA}, s{sDMA}, {DL}")
        e(f"v_lshlrev_b32 v{T+10}, 4, v{vLane}")
        e(f"s_add_u32 s3, s{sWPW}, {TS}")
        e(f"v_add_u32 v{T+11}, s3, v{T+10}")
        e(f"ds_write_b128 v{T+11}, {vr(WT,4)}")
        e("s_waitcnt lgkmcnt(0)")
        e(f"ds_read_b64_tr_b16 {vr(WT,2)}, v{vTA1}")
        e(f"ds_read_b64_tr_b16 {vr(WT+2,2)}, v{vTA2}")
        e(f"s_lshl_b32 s3, s{sID}, 10")
        e("s_waitcnt lgkmcnt(0)")
        e(f"buffer_store_dwordx4 {vr(WT,4)}, v{T+10}, {sr(S_W2F,4)}, s3 offen{SC}")
        PB = int(os.environ.get("PB", "1"))
        if LA == 4:
            e("s_barrier")
            e(f"s_cmp_eq_u32 s{sDMA}, 0")
            e(f"s_cbranch_scc1 K1_PND{nm}")
            dmaW(); dmaX()
            lab(f"K1_PND{nm}")
        if LA >= 3:
            e("s_barrier")
            e(f"s_cmp_eq_u32 s{sDMA}, 0")
            e(f"s_cbranch_scc1 K1_PNE{nm}")
            dmaW()
            lab(f"K1_PNE{nm}")
        stamp(1)
        for a_ in x_addrs() + chunk_addrs(sRWA, 0, role9): e(a_)
        lab(f"K1_LOOP{nm}")
        INLOOP[0] = True
        e("s_waitcnt vmcnt(3) lgkmcnt(0)")
        e("s_barrier")
        if STAMP == 2:
            e("s_memtime s[92:93]")
            e(f"s_lshl_b32 s94, s{sIT}, 1")
            e("s_add_u32 m0, s94, 38")
            e("s_waitcnt lgkmcnt(0)")
            e(f"v_writelane_b32 v{STV}, s92, m0")
        DW = os.environ.get("DW", "AB")
        dE = capture(lambda: (dmaW(), dmaX())); dO = capture(dmaW)
        def split(d):
            if DW == "A": return d, []
            if DW == "B": return [], d
            k = 13 if len(d) > 13 else 8
            return d[:k], d[k:]
        d1, d2 = split(dE)
        group(1, 3, role9, reads(0, 0, role9) + d1)
        e("s_waitcnt lgkmcnt(0)")
        group(0, 0, role9, reads(1, 1, role9) + side_reads(role9) + d2 + chunk_addrs(sRWB, 1, role9))
        e("s_waitcnt vmcnt(6) lgkmcnt(0)")
        e("s_barrier")
        if STAMP == 2:
            e("s_memtime s[92:93]")
            e(f"s_lshl_b32 s94, s{sIT}, 1")
            e("s_add_u32 m0, s94, 39")
            e("s_waitcnt lgkmcnt(0)")
            e(f"v_writelane_b32 v{STV}, s92, m0")
        if FUSE and role9:
            e(f"s_lshl_b32 s{sT2}, s{sIT}, 3")
            e(f"s_add_u32 s{sT2}, s{sT2}, s{sW}")
            e(f"s_cmp_eq_u32 s{sT2}, {8*1+7}")
            e("s_cbranch_scc0 K1_S10")
            e("buffer_load_dword v250, v251, s[44:47], 0 offen sc1")
            lab("K1_S10")
            e(f"s_cmp_eq_u32 s{sT2}, {8*2+7}")
            e("s_cbranch_scc0 K1_S1A")
            e("s_mov_b32 s3, 0")
            lab("K1_S1T")
            e("v_readfirstlane_b32 s100, v250")
            e("s_add_u32 s3, s3, 1")
            e("s_cmp_gt_u32 s3, 0x8000")
            e("s_cbranch_scc1 K1_S1U")
            e("s_cmp_lg_u32 s100, 0")
            e("s_cbranch_scc1 K1_S1U")
            e("s_sleep 4")
            e("buffer_load_dword v250, v251, s[44:47], 0 offen sc1")
            e("s_waitcnt vmcnt(0)")
            e("s_branch K1_S1T")
            lab("K1_S1U")
            e(f"v_mov_b32 v251, {TAGL}")
            e("s_mov_b64 exec, 1")
            e("ds_write_b32 v251, v250")
            e(f"buffer_store_dword v250, v244, {sr(S_FL,4)}, 0 offen sc1")
            e("s_mov_b64 exec, -1")
            lab("K1_S1A")
            e(f"s_cmp_eq_u32 s{sT2}, {8*8+7}")
            e("s_cbranch_scc0 K1_S1B")
            e(f"buffer_load_dwordx4 v[246:249], v245, {sr(S_FL,4)}, 0 offen sc1")
            lab("K1_S1B")
        d1, d2 = split(dO)
        group(1, 1, role9, reads(0, 2, role9) + d1)
        e("s_waitcnt lgkmcnt(0)")
        tail = [f"s_cmp_eq_u32 s{sIT}, 7"] + [f"s_cselect_b32 s{d+2}, 0, s{d+2}" for d in (S_X, S_W1, S_W3, S_QKV)]
        def advs():
            adv(sRWA, 2 * WSLOT, NW * WSLOT)
            adv(sRWB, 2 * WSLOT, NW * WSLOT)
            e(f"s_add_u32 s{sRX}, s{sRX}, {XSLOT}")
            e(f"s_cmp_ge_u32 s{sRX}, {XBASE+NX*XSLOT}")
            e(f"s_cselect_b32 s{sRX}, {XBASE}, s{sRX}")
        group(0, 2, role9, reads(1, 3, role9) + side_reads(role9) + d2 + tail + capture(advs) + x_addrs() + chunk_addrs(sRWA, 0, role9))
        INLOOP[0] = False
        if STAMP:
            e("s_memtime s[92:93]")
            e(f"s_add_u32 m0, s{sIT}, 31")
            e("s_waitcnt lgkmcnt(0)")
            e(f"v_writelane_b32 v{STV}, s92, m0")
        e(f"s_add_u32 s{sIT}, s{sIT}, 1")
        e(f"s_cmp_lt_u32 s{sIT}, 9")
        e(f"s_cbranch_scc1 K1_LOOP{nm}")
        e("s_waitcnt lgkmcnt(0)")
        group(1, 3, role9, [])
        stamp(4)
        e(f"v_and_b32 v{T}, 15, v{vLane}")
        e(f"v_lshrrev_b32 v{T+1}, 4, v{vLane}")
        e(f"v_lshlrev_b32 v{T+2}, 6, v{T}")
        e(f"v_lshl_add_u32 v{T+2}, v{T+1}, 4, v{T+2}")
        e(f"s_lshl_b32 s3, s{sG}, 8")
        e(f"s_add_u32 s3, s3, {CS + (0 if role9 else 128)}")
        e(f"v_add_u32 v{T+3}, s3, v{T+2}")
        e(f"s_lshl_b32 s3, s{sG}, 7")
        e(f"s_add_u32 s3, s3, {CS9}")
        e(f"v_add_u32 v{T+4}, s3, v{T+2}")
        e(f"v_and_b32 v{T+5}, 3, v{vLane}")
        e(f"v_lshlrev_b32 v{T+6}, 2, v{vLane}")
        e(f"s_lshl_b32 s3, s{sW}, 8")
        e(f"s_add_u32 s3, s3, {SQ}")
        e(f"v_add_u32 v{T+7}, s3, v{T+6}")
        def diag(dst, src):
            e(f"v_cmp_eq_u32 vcc, 1, v{T+5}")
            e(f"v_cmp_eq_u32 {sr(sMK,2)}, 2, v{T+5}")
            e(f"v_cmp_eq_u32 s[4:5], 3, v{T+5}")
            e(f"v_cndmask_b32 v{dst}, v{src}, v{src+1}, vcc")
            e(f"v_cndmask_b32 v{dst}, v{dst}, v{src+2}, {sr(sMK,2)}")
            e(f"v_cndmask_b32 v{dst}, v{dst}, v{src+3}, s[4:5]")
        diag(T + 8, SQA)
        e(f"ds_write_b32 v{T+7}, v{T+8}")
        if not role9:
            diag(T + 9, HST)
            e(f"s_lshl_b32 s3, s{sG}, 9")
            e(f"s_add_u32 s3, s3, {HSC}")
            e(f"v_add_u32 v{T+10}, s3, v{T+6}")
            e(f"ds_write_b32 v{T+10}, v{T+9}")
            e(f"ds_write_b32 v{T+10}, v{HST} offset:256")
        e(f"v_cmp_gt_u32 vcc, 2, v{T}")
        e("s_and_saveexec_b64 s[4:5], vcc")
        e(f"ds_write_b128 v{T+3}, {vr(CSA,4)}")
        if role9:
            e(f"ds_write_b128 v{T+4}, {vr(CS9A,4)}")
        e("s_mov_b64 exec, s[4:5]")
        e(f"v_and_b32 v{T}, 31, v{vLane}")
        e(f"v_lshlrev_b32 v{T}, 2, v{T}")
        e(f"s_lshl_b32 s3, s{sMT0}, 7")
        e(f"s_lshl_b32 s4, s{sMT1}, 7")
        e(f"v_add_u32 v{T+2}, s3, v{T}")
        e(f"v_add_u32 v{T+3}, s4, v{T}")
        if role9:
            e(f"v_add_u32 v{T+6}, {RS}, v{T+2}")
            e(f"ds_write_b32 v{T+6}, v{ACC9+8}")
        e(f"s_mov_b32 s{sT3}, {1 if role9 else 0}")
        e("s_waitcnt vmcnt(0)")
        if FUSE and role9:
            e(f"s_cmp_eq_u32 s{sW}, 7")
            e("s_cbranch_scc0 K1_EPI")
            e("s_mov_b32 s3, 0")
            lab("K1_S1P")
            e("v_xor_b32 v246, s100, v246")
            e("v_xor_b32 v247, s100, v247")
            e("v_xor_b32 v248, s100, v248")
            e("v_xor_b32 v249, s100, v249")
            e("v_or3_b32 v246, v246, v247, v248")
            e("v_or_b32 v246, v246, v249")
            e("v_cmp_ne_u32 vcc, 0, v246")
            e("s_add_u32 s3, s3, 1")
            e("s_cmp_gt_u32 s3, 0x8000")
            e("s_cbranch_scc1 K1_EPI")
            e("s_cbranch_vccz K1_EPI")
            e("s_sleep 4")
            e(f"buffer_load_dwordx4 v[246:249], v245, {sr(S_FL,4)}, 0 offen sc1")
            e("s_waitcnt vmcnt(0)")
            e("s_branch K1_S1P")
        e("s_branch K1_EPI")

    mainloop(True)
    lab("K1_ROLEH")
    mainloop(False)

    lab("K1_EPI")
    sROLE = sT3
    CA, CB = 80, 96
    C9 = 112
    ST = 120
    RAW = 132
    e("s_waitcnt lgkmcnt(0)")
    e("s_barrier")
    stamp(5)
    if FUSE:
        e(f"s_cmp_lg_u32 s{sW}, 0")
        e("s_cbranch_scc1 K1_FL1")
        e(f"v_mov_b32 v{T+13}, {TAGL}")
        e(f"ds_read_b32 v{T+12}, v{T+13}")
        e("s_waitcnt lgkmcnt(0)")
        e(f"v_readfirstlane_b32 s100, v{T+12}")
        lab("K1_FL1")
        p2_setup(sW, vLane)
        p2_dma(PD[0], S_W2F)
    e(f"v_add_u32 v{T+4}, {RS}, v{T+2}")
    e(f"v_add_u32 v{T+5}, {RS}, v{T+3}")
    e(f"ds_read_b32 v{RAW}, v{T+4}")
    e(f"ds_read_b32 v{RAW+1}, v{T+5}")
    e(f"v_and_b32 v{T+6}, 15, v{vLane}")
    e(f"v_lshrrev_b32 v{T+7}, 2, v{T+6}")
    e(f"v_lshl_add_u32 v{T+6}, v{T+7}, 4, v{T+6}")
    e(f"v_lshlrev_b32 v{T+6}, 2, v{T+6}")
    e(f"v_bfe_u32 v{T+7}, v{vLane}, 4, 1")
    e(f"v_lshl_add_u32 v{T+7}, v{T+7}, 8, v{T+6}")
    e(f"s_lshl_b32 s3, s{sMT0}, 9")
    e(f"s_add_u32 s3, s3, {SQ}")
    e(f"s_lshl_b32 s4, s{sMT1}, 9")
    e(f"s_add_u32 s4, s4, {SQ}")
    e(f"v_add_u32 v{T+8}, s3, v{T+7}")
    e(f"v_add_u32 v{T+7}, s4, v{T+7}")
    e(f"ds_read_b32 v{RAW+2}, v{T+8}")
    e(f"ds_read_b32 v{RAW+3}, v{T+7}")
    e(f"s_lshl_b32 s3, s{sG}, 9")
    e(f"s_add_u32 s3, s3, {HSC}")
    e(f"v_add_u32 v{T+6}, s3, v{T+6}")
    e(f"v_and_b32 v{T+8}, 15, v{vLane}")
    e(f"v_lshlrev_b32 v{T+8}, 2, v{T+8}")
    e(f"v_add_u32 v{T+8}, s3, v{T+8}")
    e(f"ds_read_b32 v{RAW+4}, v{T+8} offset:256")
    e(f"ds_read_b32 v{RAW+5}, v{T+6}")
    e(f"v_lshrrev_b32 v{T+9}, 5, v{vLane}")
    e(f"v_lshlrev_b32 v{T+10}, 4, v{T+9}")
    e(f"s_lshl_b32 s3, s{sG}, 8")
    e(f"s_add_u32 s3, s3, {CS}")
    e(f"v_add_u32 v{T+11}, s3, v{T+10}")
    for q in range(4):
        e(f"ds_read_b128 {vr(CA+4*q,4)}, v{T+11} offset:{32*q}")
    for q in range(4):
        e(f"ds_read_b128 {vr(CB+4*q,4)}, v{T+11} offset:{128+32*q}")
    e("s_waitcnt lgkmcnt(8)")
    e(f"s_cmp_eq_u32 s{sROLE}, 1")
    e("s_cbranch_scc0 K1_E_CH")
    e(f"v_add_u32 v{T+12}, {CS9}, v{T+10}")
    for p in range(4):
        e(f"ds_read_b128 {vr(vTMP+8+8*p,4)}, v{T+12} offset:{128*p}")
        e(f"ds_read_b128 {vr(vTMP+12+8*p,4)}, v{T+12} offset:{128*p+32}")
    e("s_waitcnt lgkmcnt(0)")
    for i in range(8):
        e(f"v_add_f32 v{C9+i}, v{vTMP+8+i}, v{vTMP+16+i}")
        e(f"v_add_f32 v{vTMP+24+i}, v{vTMP+24+i}, v{vTMP+32+i}")
    for i in range(8):
        e(f"v_add_f32 v{C9+i}, v{C9+i}, v{vTMP+24+i}")
    e("s_branch K1_E_CD")
    lab("K1_E_CH")
    e(f"v_lshrrev_b32 v{T+13}, 4, v{vLane}")
    e(f"v_lshlrev_b32 v{T+13}, 4, v{T+13}")
    e(f"s_lshl_b32 s3, s{sG}, 6")
    e(f"s_add_u32 s3, s3, {CS+128}")
    e(f"v_add_u32 v{T+13}, s3, v{T+13}")
    e(f"ds_read_b128 {vr(C9,4)}, v{T+13}")
    lab("K1_E_CD")
    def stats(rs, sq, o):
        t = vTMP
        e(f"v_mul_f32 v{t}, {f2u(1/512):#x}, v{rs}")
        e(f"v_mul_f32 v{t+1}, {f2u(1/512):#x}, v{sq}")
        e(f"v_fma_f32 v{t+1}, -v{t}, v{t}, v{t+1}")
        e(f"v_max_f32 v{t+1}, 0, v{t+1}")
        e(f"v_cvt_pk_bf16_f32 v{t+2}, v{t}, v{t+1}")
        e(f"v_lshlrev_b32 v{t}, 16, v{t+2}")
        e(f"v_and_b32 v{t+1}, 0xffff0000, v{t+2}")
        e(f"v_add_f32 v{t+1}, {f2u(1e-5):#x}, v{t+1}")
        e(f"v_cvt_pk_bf16_f32 v{t+2}, v{t+1}, v{t+1}")
        e(f"v_and_b32 v{t+1}, 0xffff0000, v{t+2}")
        e(f"v_sqrt_f32 v{t+1}, v{t+1}")
        e(f"v_xor_b32 v{o+1}, 0x80000000, v{t}")
        e(f"v_cvt_pk_bf16_f32 v{t+2}, v{t+1}, v{t+1}")
        e(f"v_and_b32 v{t+1}, 0xffff0000, v{t+2}")
        e(f"v_rcp_f32 v{o}, v{t+1}")
        e(f"v_mul_f32 v{o+3}, v{t+1}, v{t+1}")
        e(f"v_mul_f32 v{o+2}, {f2u(-LOG2E):#x}, v{o}")
    stats(RAW, RAW + 2, ST)
    stats(RAW + 1, RAW + 3, ST + 4)
    e(f"v_and_b32 v{T}, 31, v{vLane}")
    e(f"v_mul_u32_u24 v{T}, {SPITCH}, v{T}")
    e(f"v_lshl_add_u32 v{T+1}, v{T+9}, 3, v{T}")
    e(f"v_lshl_add_u32 v{T+2}, v{T+9}, 4, v{T}")
    e(f"s_mul_i32 s3, s{sMT0}, {32*SPITCH}")
    e(f"s_add_u32 s3, s3, {STG+16*SPITCH}")
    e(f"s_mul_i32 s4, s{sMT1}, {32*SPITCH}")
    e(f"s_add_u32 s4, s4, {STG+16*SPITCH}")
    e(f"v_add_u32 v{T+3}, s3, v{T+1}")
    e(f"v_add_u32 v{T+4}, s4, v{T+1}")
    e(f"v_add_u32 v{T+5}, s3, v{T+2}")
    e(f"v_add_u32 v{T+6}, s4, v{T+2}")
    e(f"v_lshlrev_b32 v{T+7}, 4, v{vLane}")
    e(f"s_lshl_b32 s5, s{sRB}, 2")
    e(f"s_add_u32 s{sT1}, s5, s{sMT0}")
    e(f"s_add_u32 s{sT2}, s5, s{sMT1}")
    e("s_waitcnt lgkmcnt(0)")
    def bc(r):
        return (vr(r & ~1, 2), r & 1)
    def pkfma(d, a, b, c, bsel=None, csel=None):
        A = vr(a, 2)
        B, bs = (vr(b, 2), None) if bsel is None else bc(b)
        Cc, cs = (vr(c, 2), None) if csel is None else bc(c)
        lo = [0, bs or 0, cs or 0]; hi = [1, 1 if bs is None else bs, 1 if cs is None else cs]
        e(f"v_pk_fma_f32 {vr(d,2)}, {A}, {B}, {Cc} op_sel:[{lo[0]},{lo[1]},{lo[2]}] op_sel_hi:[{hi[0]},{hi[1]},{hi[2]}]")
    def pkmul(d, a, b, bsel=None):
        B, bs = (vr(b, 2), None) if bsel is None else bc(b)
        e(f"v_pk_mul_f32 {vr(d,2)}, {vr(a,2)}, {B} op_sel:[0,{bs or 0}] op_sel_hi:[1,{1 if bs is None else bs}]")
    def ln16(R, C, st, n, dst):
        for i in range(0, n, 2): pkfma(dst + i, C + i, st + 1, R + i, bsel=1)
        for i in range(0, n, 2): pkmul(dst + i, dst + i, st, bsel=1)
    def tile_qk(R, C, st, addr, sec):
        t = vTMP
        ln16(R, C, st, 16, t)
        for q in range(4):
            e(f"v_cvt_pk_bf16_f32 v{t+16+2*q}, v{t+4*q}, v{t+4*q+1}")
            e(f"v_cvt_pk_bf16_f32 v{t+17+2*q}, v{t+4*q+2}, v{t+4*q+3}")
        for q in range(4):
            e(f"ds_write_b64 v{addr}, {vr(t+16+2*q,2)} offset:{sec*64+16*q}")
    def tile_v(R, C, st, addr):
        t = vTMP + 24
        ln16(R, C, st, 16, t)
        for q in range(4):
            e(f"ds_write_b128 v{addr}, {vr(t+4*q,4)} offset:{128+32*q}")
    def silu(R, C, st, n, goff, uoff, t):
        for i in range(0, n, 2): pkfma(t + i, C + goff + i, st + 1, R + goff + i, bsel=1)
        for i in range(0, n, 2): pkmul(t + n + i, t + i, st + 2, bsel=1)
        for i in range(n):
            e(f"v_exp_f32 v{t+n+i}, v{t+n+i}")
        for i in range(0, n, 2): pkfma(t + 2*n + i, C + uoff + i, st + 1, R + uoff + i, bsel=1)
        for i in range(0, n, 2): pkfma(t + n + i, t + n + i, st + 3, st + 3, bsel=1, csel=1)
        for i in range(n):
            e(f"v_rcp_f32 v{t+n+i}, v{t+n+i}")
        for i in range(0, n, 2): pkmul(t + i, t + i, t + 2*n + i)
        for i in range(0, n, 2): pkmul(t + i, t + i, t + n + i)
        for i in range(n // 2):
            e(f"v_cvt_pk_bf16_f32 v{t+3*n+i}, v{t+2*i}, v{t+2*i+1}")
    def tile_ffn(R, C, st, smt, tau_s, tbase):
        silu(R, C, st, 8, 0, 8, tbase)
        e(f"s_add_u32 s3, s{tau_s}, s{smt}")
        e("s_lshl_b32 s3, s3, 10")
        e(f"buffer_store_dwordx4 {vr(tbase+24,4)}, v{T+7}, {sr(S_HF,4)}, s3 offen{SC}")
    e(f"s_lshl_b32 s6, s{sG}, 1")
    e(f"s_add_u32 s6, s6, s{sTF}")
    e("s_add_u32 s6, s6, 29")
    e("s_lshl_b32 s6, s6, 6")
    e("s_add_u32 s7, s6, 64")
    e(f"s_cmp_eq_u32 s{sROLE}, 1")
    e("s_cbranch_scc1 K1_E_T")
    stats(RAW + 4, RAW + 5, ST + 8)
    t = vTMP + 40
    ln16(ACC9, C9, ST + 8, 4, t)
    e(f"v_and_b32 v{T}, 15, v{vLane}")
    e(f"v_mul_u32_u24 v{T}, {SPITCH}, v{T}")
    e(f"v_lshrrev_b32 v{T+1}, 4, v{vLane}")
    e(f"s_cmp_lt_u32 s{sG}, 2")
    e("s_cbranch_scc0 K1_E_HV")
    e(f"v_cvt_pk_bf16_f32 v{t+4}, v{t}, v{t+1}")
    e(f"v_cvt_pk_bf16_f32 v{t+5}, v{t+2}, v{t+3}")
    e(f"v_lshl_add_u32 v{T}, v{T+1}, 3, v{T}")
    e(f"s_lshl_b32 s3, s{sG}, 5")
    e(f"s_add_u32 s3, s3, {STG+64}")
    e(f"v_add_u32 v{T}, s3, v{T}")
    e(f"ds_write_b64 v{T}, {vr(t+4,2)}")
    e("s_branch K1_E_T")
    lab("K1_E_HV")
    e(f"v_lshl_add_u32 v{T}, v{T+1}, 4, v{T}")
    e(f"s_lshl_b32 s3, s{sG}, 6")
    e(f"s_add_u32 s3, s3, {STG+128-128}")
    e(f"v_add_u32 v{T}, s3, v{T}")
    e(f"ds_write_b128 v{T}, {vr(t,4)}")
    lab("K1_E_T")
    if FUSE: p2_dma(PD[1], S_W2F)
    e(f"s_cmp_eq_u32 s{sG}, 0")
    e("s_cbranch_scc1 K1_E_G0")
    e(f"s_cmp_eq_u32 s{sG}, 1")
    e("s_cbranch_scc1 K1_E_G1")
    tile_ffn(ACC, CA, ST, sT1, 6, vTMP)
    e("s_waitcnt lgkmcnt(0)")
    e("s_barrier")
    tile_ffn(ACC + 16, CA, ST + 4, sT2, 6, vTMP - 54)
    e("s_branch K1_E_B")
    lab("K1_E_G0")
    tile_qk(ACC, CA, ST, T + 3, 0)
    tile_qk(ACC + 16, CA, ST + 4, T + 4, 0)
    tile_qk(ACC + 32, CB, ST, T + 3, 1)
    tile_qk(ACC + 48, CB, ST + 4, T + 4, 1)
    e("s_waitcnt lgkmcnt(0)")
    e("s_barrier")
    e("s_branch K1_E_C")
    lab("K1_E_G1")
    tile_v(ACC, CA, ST, T + 5)
    e("s_nop 1")
    tile_v(ACC + 16, CA, ST + 4, T + 6)
    e("s_waitcnt lgkmcnt(0)")
    e("s_barrier")
    lab("K1_E_B")
    tile_ffn(ACC + 32, CB, ST, sT1, 7, vTMP)
    tile_ffn(ACC + 48, CB, ST + 4, sT2, 7, vTMP - 54)
    lab("K1_E_C")
    if FUSE: p2_dma(PD[2], S_W2F)
    stamp(6)
    e(f"s_and_b32 s3, s{sROLE}, s{sHAS}")
    e("s_cbranch_scc0 K1_E_D")
    silu(ACC9, C9, ST, 4, 0, 4, vTMP + 32)
    e(f"s_add_u32 s3, s{sTH}, 32")
    e("s_lshl_b32 s3, s3, 6")
    e(f"s_add_u32 s3, s3, s{sT1}")
    e("s_lshl_b32 s3, s3, 10")
    e(f"s_lshl_b32 s4, s{sHSEL}, 3")
    e("s_add_u32 s3, s3, s4")
    e(f"buffer_store_dwordx2 {vr(vTMP+44,2)}, v{T+7}, {sr(S_HF,4)}, s3 offen{SC}")
    lab("K1_E_D")
    if FUSE: p2_dma(8, S_W2F)
    sU, sN = sRWA, sRWB
    e(f"s_lshl_b32 s3, s{sW}, 2")
    e(f"s_lshr_b32 s{sU}, {os.environ.get('AU', '0x3527640')}, s3")
    e(f"s_and_b32 s{sU}, s{sU}, 7")
    e(f"s_lshr_b32 s{sN}, {os.environ.get('AN', '0x1111112')}, s3")
    e(f"s_and_b32 s{sN}, s{sN}, 3")
    e("s_cbranch_scc0 K1_ATT_END")
    lab("K1_ATT")
    Q = 0; KK = 4; VV = 36; P = 100; O = 112; A2 = 120
    e(f"v_lshrrev_b32 v{T+8}, 4, v{T+7}")
    e(f"v_and_b32 v{T}, 31, v{T+8}")
    e(f"v_lshrrev_b32 v{T+1}, 5, v{T+8}")
    e(f"s_lshr_b32 s3, s{sU}, 1")
    e(f"s_and_b32 s4, s{sU}, 1")
    e(f"v_mul_u32_u24 v{T+2}, {SPITCH}, v{T}")
    e(f"s_mul_i32 s5, s3, {32*SPITCH}")
    e(f"s_add_u32 s5, s5, {STG+2*SPITCH}")
    e("s_lshl_b32 s6, s4, 5")
    e("s_add_u32 s6, s6, s5")
    e(f"v_lshl_add_u32 v{T+3}, v{T+1}, 4, v{T+2}")
    e(f"v_add_u32 v{T+3}, s6, v{T+3}")
    e("s_lshl_b32 s6, s4, 6")
    e("s_add_u32 s6, s6, s5")
    e(f"v_lshl_add_u32 v{T+4}, v{T+1}, 5, v{T+2}")
    e(f"v_add_u32 v{T+4}, s6, v{T+4}")
    e("s_lshl_b32 s5, s3, 5")
    e(f"s_add_u32 s5, s5, s{sM0}")
    e(f"v_add_u32 v{T+5}, s5, v{T}")
    e(f"v_lshlrev_b32 v{T+6}, 1, v{T+1}")
    e(f"v_sub_u32 v{T+5}, v{T+5}, v{T+6}")
    e(f"s_lshl_b32 s5, s{sCG}, 1")
    e("s_add_u32 s5, s5, s4")
    e("s_lshl_b32 s5, s5, 6")
    e(f"s_lshl_b32 s6, s{sRB}, 2")
    e("s_add_u32 s5, s5, s6")
    e("s_add_u32 s5, s5, s3")
    e(f"s_lshl_b32 s{sT1}, s5, 10")
    e(f"ds_read_b128 {vr(Q,4)}, v{T+3} offset:{14*SPITCH}")
    for w in range(8):
        e(f"ds_read_b128 {vr(KK+4*w,4)}, v{T+3} offset:{(14-2*w)*SPITCH+64}")
    for w in range(3):
        e(f"ds_read_b128 {vr(VV+8*w,4)}, v{T+4} offset:{(14-2*w)*SPITCH+128}")
        e(f"ds_read_b128 {vr(VV+8*w+4,4)}, v{T+4} offset:{(14-2*w)*SPITCH+144}")
    for w in range(8):
        e(f"s_waitcnt lgkmcnt({min(15, 13-w)})")
        e(f"v_dot2_f32_bf16 v{P+w}, v{Q}, v{KK+4*w}, 0")
        for i in range(1, 4):
            e(f"v_dot2_f32_bf16 v{P+w}, v{Q+i}, v{KK+4*w+i}, v{P+w}")
    for w in range(3, 8):
        e(f"ds_read_b128 {vr(VV+8*w,4)}, v{T+4} offset:{(14-2*w)*SPITCH+128}")
        e(f"ds_read_b128 {vr(VV+8*w+4,4)}, v{T+4} offset:{(14-2*w)*SPITCH+144}")
    e("s_nop 2")
    for i in range(4):
        e(f"v_permlane32_swap_b32 v{P+2*i}, v{P+2*i+1}")
    e(f"v_mov_b32 v{T+9}, {f2u(-1e9):#x}")
    for i in range(4):
        e(f"v_add_f32 v{P+2*i}, v{P+2*i}, v{P+2*i+1}")
    for i in range(4):
        e(f"v_cmp_le_i32 vcc, {4*i}, v{T+5}")
        e(f"v_mul_f32 v{P+2*i}, 0.25, v{P+2*i}") if False else e(f"v_mul_f32 v{P+2*i}, {f2u(0.25):#x}, v{P+2*i}")
        e("s_nop 0")
        e(f"v_cndmask_b32 v{P+2*i}, v{T+9}, v{P+2*i}, vcc")
    e(f"v_max3_f32 v{P+1}, v{P}, v{P+2}, v{P+4}")
    e(f"v_max_f32 v{P+1}, v{P+1}, v{P+6}")
    e(f"v_mov_b32 v{P+3}, v{P+1}")
    e("s_nop 1")
    e(f"v_permlane32_swap_b32 v{P+1}, v{P+3}")
    e("s_nop 0")
    e(f"v_max_f32 v{P+1}, v{P+1}, v{P+3}")
    for i in range(4):
        e(f"v_sub_f32 v{P+2*i}, v{P+2*i}, v{P+1}")
    for i in range(4):
        e(f"v_mul_f32 v{P+2*i}, {f2u(LOG2E):#x}, v{P+2*i}")
    for i in range(4):
        e(f"v_exp_f32 v{P+2*i}, v{P+2*i}")
    e("s_nop 0")
    e(f"v_add_f32 v{P+1}, v{P}, v{P+2}")
    e(f"v_add_f32 v{P+3}, v{P+4}, v{P+6}")
    e(f"v_add_f32 v{P+1}, v{P+1}, v{P+3}")
    e(f"v_mov_b32 v{P+3}, v{P+1}")
    e("s_nop 1")
    e(f"v_permlane32_swap_b32 v{P+1}, v{P+3}")
    e("s_nop 0")
    e(f"v_add_f32 v{P+8}, v{P+1}, v{P+3}")
    e(f"v_rcp_f32 v{P+8}, v{P+8}")
    e("s_nop 0")
    for i in range(4):
        e(f"v_mul_f32 v{P+2*i}, v{P+2*i}, v{P+8}")
    for i in range(4):
        e(f"v_mov_b32 v{P+2*i+1}, v{P+2*i}")
    e("s_nop 1")
    for i in range(4):
        e(f"v_permlane32_swap_b32 v{P+2*i}, v{P+2*i+1}")
    e("s_nop 0")
    for w in range(8):
        e(f"s_waitcnt lgkmcnt({14-2*w})")
        for d in range(0, 8, 2):
            if w == 0: pkmul(O + d, VV + d, P, bsel=1)
            else: pkfma(O + d, VV + 8*w + d, P + w, O + d, bsel=1)
    for i in range(4):
        e(f"v_cvt_pk_bf16_f32 v{A2+i}, v{O+2*i}, v{O+2*i+1}")
    e(f"buffer_store_dwordx4 {vr(A2,4)}, v{T+7}, {sr(S_HF,4)}, s{sT1} offen{SC}")
    e(f"s_add_u32 s{sU}, s{sU}, 1")
    e(f"s_sub_u32 s{sN}, s{sN}, 1")
    e(f"s_cmp_lg_u32 s{sN}, 0")
    e("s_cbranch_scc1 K1_ATT")
    lab("K1_ATT_END")
    if os.environ.get("TWICE"):
        e(f"s_cmp_eq_u32 s{sIT}, 77")
        e("s_cbranch_scc1 K1_TW")
        e(f"s_mov_b32 s{sIT}, 77")
        stamp(7)
        e(f"v_lshrrev_b32 v{vLane}, 4, v{T+7}")
        e(f"v_and_b32 v{T}, 31, v{vLane}")
        e(f"v_lshlrev_b32 v{T}, 2, v{T}")
        e(f"s_lshl_b32 s3, s{sMT0}, 7")
        e(f"s_lshl_b32 s4, s{sMT1}, 7")
        e(f"v_add_u32 v{T+2}, s3, v{T}")
        e(f"v_add_u32 v{T+3}, s4, v{T}")
        e("s_waitcnt vmcnt(0)")
        e("s_branch K1_EPI")
        lab("K1_TW")
    stamp(8)
    if STAMP and not FUSE: e("s_waitcnt vmcnt(0)")
    stamp(9)
    stamp_flush(50, 0x1000000, sW)
    if FUSE:
        phase2(sW, sRB, sCG, S_HF, S_W2F, S_FL, T + 7)
    lab("K1_END")
    e("s_endpgm")

def kernel2():
    S_HF, S_W2F, S_X, S_O = 8, 12, 16, 20
    sW, sMB, sNB, sKH, sKW = 30, 31, 32, 33, 34
    ACC = 0
    vLane, vH0, vH1, vW0, vW1, vXO = 64, 65, 66, 67, 68, 69
    XR = 72
    T = 80
    RD = 96
    NK = 30; D = int(os.environ.get('K2D', '15')); ROT = int(os.environ.get('K2ROT', '0'))
    fr = (lambda b, n: vr(128 + b, n)) if FUSE else ar
    if FUSE:
        stamp(0)
        e(f"v_mbcnt_lo_u32_b32 v{vLane}, -1, 0")
        e(f"v_mbcnt_hi_u32_b32 v{vLane}, -1, v{vLane}")
        e("s_and_b32 s3, s2, 7")
    else:
        L.append(".globl k2_kernel\n.p2align 8\n.type k2_kernel,@function\nk2_kernel:")
        e("s_cmp_ge_u32 s2, 256")
        e("s_cbranch_scc1 K2_END")
        e("s_load_dwordx2 s[36:37], s[0:1], 0")
        e("s_load_dwordx2 s[38:39], s[0:1], 56")
        e("s_load_dwordx2 s[40:41], s[0:1], 72")
        stamp(0)
        e(f"v_and_b32 v{vLane}, 63, v0")
        e(f"v_lshrrev_b32 v{T}, 6, v0")
        e("s_and_b32 s3, s2, 7")
        e(f"v_readfirstlane_b32 s{sW}, v{T}")
    e("s_lshr_b32 s4, s2, 3")
    e("s_and_b32 s5, s3, 1")
    e("s_lshl_b32 s5, s5, 1")
    e("s_bfe_u32 s6, s3, 0x10001")
    e("s_add_u32 s5, s5, s6")
    e("s_lshl_b32 s5, s5, 3")
    e("s_and_b32 s6, s4, 7")
    e(f"s_add_u32 s{sMB}, s5, s6")
    e("s_lshr_b32 s5, s3, 2")
    e("s_lshl_b32 s5, s5, 2")
    e("s_lshr_b32 s6, s4, 3")
    e(f"s_add_u32 s{sNB}, s5, s6")
    e(f"v_lshlrev_b32 v{T}, 4, v{vLane}")
    e(f"s_lshr_b32 s3, s{sW}, 1")
    e(f"s_and_b32 s4, s{sW}, 1")
    e(f"s_lshl_b32 s5, s{sMB}, 1")
    e("s_add_u32 s5, s5, s3")
    e("s_lshl_b32 s6, s5, 10")
    e(f"v_add_u32 v{vH0}, s6, v{T}")
    e("s_xor_b32 s6, s6, 1024")
    e(f"v_add_u32 v{vH1}, s6, v{T}")
    e(f"s_lshl_b32 s7, s{sNB}, 1")
    e("s_add_u32 s7, s7, s4")
    e("s_lshl_b32 s6, s7, 10")
    e(f"v_add_u32 v{vW0}, s6, v{T}")
    e("s_xor_b32 s6, s6, 1024")
    e(f"v_add_u32 v{vW1}, s6, v{T}")
    e(f"v_and_b32 v{T+1}, 31, v{vLane}")
    e(f"v_lshrrev_b32 v{T+2}, 5, v{vLane}")
    e(f"v_lshlrev_b32 v{T+1}, 10, v{T+1}")
    e(f"v_lshl_add_u32 v{T+1}, v{T+2}, 3, v{T+1}")
    e("s_lshl_b32 s5, s5, 15")
    e("s_lshl_b32 s7, s7, 6")
    e("s_add_u32 s5, s5, s7")
    e(f"v_add_u32 v{vXO}, s5, v{T+1}")
    e("s_lshr_b32 s4, s2, 3")
    e("s_lshr_b32 s5, s4, 3")
    e("s_lshl_b32 s5, s5, 1")
    e("s_add_u32 s4, s4, s5")
    e("s_and_b32 s4, s4, 7")
    e(f"s_mul_i32 s4, s4, {4*ROT}")
    e(f"s_add_u32 s4, s4, s{sW}")
    e(f"s_lshl_b32 s{sKH}, s4, 16")
    e(f"s_lshl_b32 s{sKW}, s4, 14")
    LEAD = int(os.environ.get("K2L", "12")); P2 = int(os.environ.get("K2P", "0")); PG = int(os.environ.get("K2G", "4"))
    sGJ, sPH, sPW, vPF = 42, 43, 44, 70
    if P2:
        e("s_lshr_b32 s4, s2, 3")
        e(f"s_lshl_b32 s5, s4, 2")
        e(f"s_add_u32 s5, s5, s{sW}")
        e(f"s_and_b32 s6, s{sMB}, 24")
        e("s_lshl_b32 s6, s6, 11")
        e(f"s_lshl_b32 s{sPH}, s5, 16")
        e(f"s_add_u32 s{sPH}, s{sPH}, s6")
        e(f"s_and_b32 s6, s{sNB}, 4")
        e("s_lshl_b32 s6, s6, 11")
        e(f"s_lshl_b32 s{sPW}, s5, 14")
        e(f"s_add_u32 s{sPW}, s{sPW}, s6")
        e(f"s_max_u32 s5, s4, {LEAD}")
        e(f"s_sub_u32 s5, s5, {LEAD}")
        e(f"s_lshr_b32 s{sGJ}, s5, {PG.bit_length()-1}")
        e(f"s_cmp_lt_u32 s4, {D}")
        e(f"s_cselect_b32 s{sGJ}, 99, s{sGJ}")
        e(f"v_lshlrev_b32 v{vPF}, 7, v{vLane}")
    def prefetch(c):
        if not P2: return
        e(f"s_cmp_eq_u32 s{sGJ}, {c}")
        e(f"s_cbranch_scc0 K2_PF{c}")
        e(f"buffer_load_dword v{vPF+1}, v{vPF}, {sr(S_HF,4)}, s{sPH} offen")
        e(f"s_add_u32 s{sPH}, s{sPH}, 8192")
        e(f"buffer_load_dword v{vPF+1}, v{vPF}, {sr(S_W2F,4)}, s{sPW} offen")
        e(f"buffer_load_dword v{vPF+1}, v{vPF}, {sr(S_HF,4)}, s{sPH} offen")
        lab(f"K2_PF{c}")
    e("s_waitcnt lgkmcnt(0)")
    e(f"s_mov_b32 s{S_HF}, s40")
    e(f"s_and_b32 s{S_HF+1}, s41, 0xffff")
    e(f"s_mov_b32 s{S_HF+2}, {HF_BYTES}")
    e(f"s_mov_b32 s{S_HF+3}, 0x00020000")
    e(f"s_add_u32 s{S_W2F}, s40, {W2F_OFF}")
    e(f"s_addc_u32 s{S_W2F+1}, s41, 0")
    e(f"s_and_b32 s{S_W2F+1}, s{S_W2F+1}, 0xffff")
    e(f"s_mov_b32 s{S_W2F+2}, {W2F_BYTES}")
    e(f"s_mov_b32 s{S_W2F+3}, 0x00020000")
    srd(S_X, 36, 2048 * 1024)
    srd(S_O, 38, 2048 * 1024)
    def loads(i):
        b = 16 * (i % D)
        e(f"buffer_load_dwordx4 {fr(b,4)}, v{vW0}, {sr(S_W2F,4)}, s{sKW} offen{SC}")
        e(f"buffer_load_dwordx4 {fr(b+4,4)}, v{vH0}, {sr(S_HF,4)}, s{sKH} offen{SC}")
        e(f"buffer_load_dwordx4 {fr(b+8,4)}, v{vH1}, {sr(S_HF,4)}, s{sKH} offen{SC}")
        e(f"buffer_load_dwordx4 {fr(b+12,4)}, v{vW1}, {sr(S_W2F,4)}, s{sKW} offen{SC}")
        e(f"s_add_u32 s{sKW}, s{sKW}, {4*16384}")
        if ROT:
            e(f"s_sub_u32 s3, s{sKW}, {120*16384}")
            e(f"s_cmp_ge_u32 s{sKW}, {120*16384}")
            e(f"s_cselect_b32 s{sKW}, s3, s{sKW}")
        e(f"s_lshl_b32 s{sKH}, s{sKW}, 2")
    for q in range(4):
        e(f"buffer_load_dwordx2 {vr(XR+2*q,2)}, v{vXO}, {sr(S_X,4)}, 0 offen offset:{16*q}")
    if FUSE:
        e(f"s_cmp_lg_u32 s{sW}, 0")
        e("s_cbranch_scc1 K2_GO")
        e(f"v_lshlrev_b32 v{T+1}, 2, v{vLane}")
        e(f"v_and_b32 v{T+1}, 63, v{T+1}")
        e(f"s_lshr_b32 s4, s{sMB}, 1")
        e("s_lshl_b32 s4, s4, 7")
        e("s_add_u32 s4, s4, 4096")
        e("s_mov_b32 s3, 0")
        lab("K2_POLL")
        e(f"buffer_load_dword v{T+3}, v{T+1}, s[44:47], s4 offen sc1")
        e("s_add_u32 s3, s3, 1")
        e("s_waitcnt vmcnt(0)")
        e(f"v_cmp_ne_u32 vcc, s100, v{T+3}")
        e("s_cmp_gt_u32 s3, 0x8000")
        e("s_cbranch_scc1 K2_GO")
        e("s_cbranch_vccz K2_GO")
        e("s_sleep 1")
        e("s_branch K2_POLL")
        lab("K2_GO")
        e("s_barrier")
    PPOS = int(os.environ.get("K2Q", "2"))
    for i in range(D):
        loads(i)
        if i == PPOS - 1: prefetch(0)
    issued = D
    stamp(1)
    for i in range(NK):
        b = 16 * (i % D)
        out = 4 * (issued - i - 1)
        if i == NK - 6:
            pass
        e(f"s_waitcnt vmcnt({min(63, out + 2)})")
        c = (lambda r: "0") if i == 0 else (lambda r: vr(r, 16))
        e(f"v_mfma_f32_32x32x16_bf16 {vr(ACC,16)}, {fr(b,4)}, {fr(b+4,4)}, {c(ACC)}")
        e(f"s_waitcnt vmcnt({min(63, out + 1)})")
        e(f"v_mfma_f32_32x32x16_bf16 {vr(ACC+32,16)}, {fr(b,4)}, {fr(b+8,4)}, {c(ACC+32)}")
        e(f"s_waitcnt vmcnt({out})")
        e(f"v_mfma_f32_32x32x16_bf16 {vr(ACC+16,16)}, {fr(b+12,4)}, {fr(b+4,4)}, {c(ACC+16)}")
        e(f"v_mfma_f32_32x32x16_bf16 {vr(ACC+48,16)}, {fr(b+12,4)}, {fr(b+8,4)}, {c(ACC+48)}")
        if i in (0, 7, 14, 22): stamp(2 + (0, 7, 14, 22).index(i))
        if issued < NK:
            loads(issued); issued += 1
        if i % PG == PG - 1 and (i + 1) // PG <= (31 - LEAD) // PG: prefetch((i + 1) // PG)
    stamp(6)
    for a in range(1, 4):
        e(f"s_xor_b32 s3, s{sW}, {a}")
        e("s_mul_i32 s3, s3, 12288")
        e(f"s_add_u32 s3, s3, {(a-1)*4096}")
        e(f"v_add_u32 v{T+a}, s3, v{T}")
    e(f"s_mul_i32 s3, s{sW}, 12288")
    e(f"v_add_u32 v{T+4}, s3, v{T}")
    e("s_nop 7")
    for a in (2, 1, 3):
        for q in range(4):
            e(f"ds_write_b128 v{T+a}, {vr(ACC+16*a+4*q,4)} offset:{1024*q}")
    e("s_waitcnt lgkmcnt(0)")
    e("s_barrier")
    for s in range(3):
        for q in range(4):
            e(f"ds_read_b128 {vr(RD+16*s+4*q,4)}, v{T+4} offset:{4096*s+1024*q}")
    e("s_waitcnt vmcnt(0)")
    for q in range(4):
        for i in range(2):
            e(f"v_lshlrev_b32 v{T+8}, 16, v{XR+2*q+i}")
            e(f"v_and_b32 v{T+9}, 0xffff0000, v{XR+2*q+i}")
            e(f"v_add_f32 v{ACC+4*q+2*i}, v{ACC+4*q+2*i}, v{T+8}")
            e(f"v_add_f32 v{ACC+4*q+2*i+1}, v{ACC+4*q+2*i+1}, v{T+9}")
    for s in range(3):
        e(f"s_waitcnt lgkmcnt({8-4*s})")
        for r in range(16):
            e(f"v_add_f32 v{ACC+r}, v{ACC+r}, v{RD+16*s+r}")
    for q in range(4):
        e(f"v_cvt_pk_bf16_f32 v{XR+2*q}, v{ACC+4*q}, v{ACC+4*q+1}")
        e(f"v_cvt_pk_bf16_f32 v{XR+2*q+1}, v{ACC+4*q+2}, v{ACC+4*q+3}")
    for q in range(4):
        e(f"buffer_store_dwordx2 {vr(XR+2*q,2)}, v{vXO}, {sr(S_O,4)}, 0 offen offset:{16*q}")
    stamp(7)
    if STAMP: e("s_waitcnt vmcnt(0)")
    stamp(8)
    stamp_flush(40, 0x1100000, sW)
    if not FUSE:
        lab("K2_END")
        e("s_endpgm")


NL = int(os.environ.get("P2NL", "6")); LB2 = 40960
P2K = [0]
def p2_setup(sW, vLane):
    sMB, sNB, sKH, sKW = 16, 17, 18, 19
    vW = 254
    e(f"v_lshlrev_b32 v{vW}, 4, v{vLane}")
    e("s_and_b32 s3, s2, 7")
    e("s_lshr_b32 s4, s2, 3")
    if os.environ.get("P2MAP", "1") == "1":
        e("s_lshl_b32 s5, s3, 2")
        e("s_and_b32 s6, s4, 3")
        e(f"s_add_u32 s{sMB}, s5, s6")
        e(f"s_lshr_b32 s{sNB}, s4, 2")
    else:
        e("s_and_b32 s5, s3, 1")
        e("s_lshl_b32 s5, s5, 1")
        e("s_bfe_u32 s6, s3, 0x10001")
        e("s_add_u32 s5, s5, s6")
        e("s_lshl_b32 s5, s5, 3")
        e("s_and_b32 s6, s4, 7")
        e(f"s_add_u32 s{sMB}, s5, s6")
        e("s_lshr_b32 s5, s3, 2")
        e("s_lshl_b32 s5, s5, 2")
        e("s_lshr_b32 s6, s4, 3")
        e(f"s_add_u32 s{sNB}, s5, s6")
    e(f"s_lshl_b32 s6, s{sNB}, 11")
    e(f"v_add_u32 v{vW}, s6, v{vW}")
    e(f"s_lshl_b32 s{sKW}, s{sW}, 14")
    e(f"s_mul_i32 s{sKH}, s{sW}, {NL*2048}")
    e(f"s_add_u32 s{sKH}, s{sKH}, {LB2}")
def p2_dma(n, S_W2F):
    sKH, sKW, vW = 18, 19, 254
    for _ in range(n):
        if P2K[0] >= NL: return
        e(f"s_add_u32 m0, s{sKH}, {P2K[0]*2048}")
        e("s_nop 0")
        e(f"buffer_load_dwordx4 v{vW}, {sr(S_W2F,4)}, s{sKW} offen sc1 lds")
        e(f"s_add_u32 m0, s{sKH}, {P2K[0]*2048+1024}")
        e(f"s_add_u32 s{sKW}, s{sKW}, 1024")
        e(f"buffer_load_dwordx4 v{vW}, {sr(S_W2F,4)}, s{sKW} offen sc1 lds")
        e(f"s_add_u32 s{sKW}, s{sKW}, {8*16384-1024}")
        P2K[0] += 1

def phase2(sW, sRB, sCG, S_HF, S_W2F, S_FL, vL16src):
    S_X, S_O = 8, 12
    sMB, sNB, sKH, sKW = 16, 17, 18, 19
    ACC, WF, HR, XR = 0, 64, 184, 240
    vL16, vH, vW, vXO, P1, P2_ = 248, 249, 254, 251, 252, 253
    NK = 15; D = int(os.environ.get("P2D", "7")); PRE = int(os.environ.get("P2PRE", "2"))
    e(f"v_mov_b32 v{vL16}, v{vL16src}")
    def wl(i):
        e(f"buffer_load_dwordx4 {vr(WF+8*i,4)}, v{vW}, {sr(S_W2F,4)}, s{sKW} offen sc1")
        e(f"buffer_load_dwordx4 {vr(WF+8*i+4,4)}, v{vW}, {sr(S_W2F,4)}, s{sKW} offen offset:1024 sc1")
        e(f"s_add_u32 s{sKW}, s{sKW}, {8*16384}")
    e("s_nop 1")
    for i in range(NL, NL + PRE): wl(i)
    e(f"v_add_u32 v{vH}, s{sKH}, v{vL16}")
    e(f"s_waitcnt vmcnt({2*PRE})")
    e("s_barrier")
    stamp(0)
    e(f"s_cmp_lg_u32 s{sW}, 0")
    e("s_cbranch_scc1 P2_NF")
    e(f"s_lshl_b32 s3, s{sRB}, 7")
    e(f"s_lshl_b32 s4, s{sCG}, 2")
    e("s_add_u32 s3, s3, s4")
    e("s_add_u32 s3, s3, 4096")
    e(f"v_mov_b32 v{P1}, s3")
    e(f"v_mov_b32 v{P2_}, s100")
    e("s_mov_b64 exec, 1")
    e(f"buffer_store_dword v{P2_}, v{P1}, {sr(S_FL,4)}, 0 offen sc1")
    e("s_mov_b64 exec, -1")
    lab("P2_NF")
    for i in range(2 * NL):
        e(f"ds_read_b128 {vr(WF+4*i,4)}, v{vH} offset:{1024*i}")
    for i in range(NL + PRE, NK): wl(i)
    srd(S_X, 36, 2048 * 1024)
    srd(S_O, 96, 2048 * 1024)
    e(f"s_lshl_b32 s6, s{sMB}, 11")
    e(f"v_add_u32 v{vH}, s6, v{vL16}")
    e(f"s_lshl_b32 s{sKH}, s{sW}, 16")
    e(f"v_bfe_u32 v{P1}, v{vL16}, 4, 5")
    e(f"v_lshrrev_b32 v{vXO}, 9, v{vL16}")
    e(f"v_lshlrev_b32 v{P1}, 10, v{P1}")
    e(f"v_lshl_add_u32 v{vXO}, v{vXO}, 3, v{P1}")
    e(f"s_lshl_b32 s3, s{sMB}, 16")
    e(f"s_lshr_b32 s4, s{sW}, 2")
    e("s_lshl_b32 s4, s4, 15")
    e("s_add_u32 s3, s3, s4")
    e(f"s_lshl_b32 s4, s{sNB}, 7")
    e("s_add_u32 s3, s3, s4")
    e(f"s_and_b32 s4, s{sW}, 3")
    e("s_lshl_b32 s4, s4, 5")
    e("s_add_u32 s3, s3, s4")
    e(f"v_add_u32 v{vXO}, s3, v{vXO}")
    for q in range(2):
        e(f"buffer_load_dwordx2 {vr(XR+2*q,2)}, v{vXO}, {sr(S_X,4)}, 0 offen offset:{16*q}")
    stamp(1)
    e(f"s_cmp_lg_u32 s{sW}, 0")
    e("s_cbranch_scc1 P2_GO")
    e(f"v_bfe_u32 v{P1}, v{vL16}, 2, 6")
    e(f"s_lshr_b32 s4, s{sMB}, 1")
    e("s_lshl_b32 s4, s4, 7")
    e("s_add_u32 s4, s4, 4096")
    e("s_mov_b32 s3, 0")
    lab("P2_POLL")
    e(f"buffer_load_dword v{P2_}, v{P1}, {sr(S_FL,4)}, s4 offen sc1")
    e("s_add_u32 s3, s3, 1")
    e("s_waitcnt vmcnt(0)")
    e(f"v_cmp_ne_u32 vcc, s100, v{P2_}")
    e("s_cmp_gt_u32 s3, 0x8000")
    e("s_cbranch_scc1 P2_GO")
    e("s_cbranch_vccz P2_GO")
    e("s_sleep 1")
    e("s_branch P2_POLL")
    lab("P2_GO")
    e("s_waitcnt lgkmcnt(0)")
    e("s_barrier")
    stamp(2)
    def hl(i):
        b = HR + 8 * (i % D)
        e(f"buffer_load_dwordx4 {vr(b,4)}, v{vH}, {sr(S_HF,4)}, s{sKH} offen sc1")
        e(f"buffer_load_dwordx4 {vr(b+4,4)}, v{vH}, {sr(S_HF,4)}, s{sKH} offen offset:1024 sc1")
        e(f"s_add_u32 s{sKH}, s{sKH}, {8*65536}")
    for i in range(D): hl(i)
    issued = D
    stamp(3)
    for i in range(NK):
        b = HR + 8 * (i % D); w = WF + 8 * i
        out = 2 * (issued - i - 1)
        c = (lambda r: "0") if i == 0 else (lambda r: vr(r, 16))
        e(f"s_waitcnt vmcnt({out + 1})")
        e(f"v_mfma_f32_32x32x16_bf16 {vr(ACC,16)}, {vr(w,4)}, {vr(b,4)}, {c(ACC)}")
        e(f"v_mfma_f32_32x32x16_bf16 {vr(ACC+16,16)}, {vr(w+4,4)}, {vr(b,4)}, {c(ACC+16)}")
        e(f"s_waitcnt vmcnt({out})")
        e(f"v_mfma_f32_32x32x16_bf16 {vr(ACC+32,16)}, {vr(w,4)}, {vr(b+4,4)}, {c(ACC+32)}")
        e(f"v_mfma_f32_32x32x16_bf16 {vr(ACC+48,16)}, {vr(w+4,4)}, {vr(b+4,4)}, {c(ACC+48)}")
        if i == 7: stamp(4)
        if issued < NK:
            hl(issued); issued += 1
    stamp(6)
    e(f"s_lshl_b32 s3, s{sW}, 10")
    e(f"v_add_u32 v{P1}, s3, v{vL16}")
    e(f"v_add_u32 v{vW}, 0x10000, v{P1}")
    e(f"s_lshl_b32 s3, s{sW}, 14")
    e(f"v_add_u32 v{P2_}, s3, v{vL16}")
    e("s_nop 7")
    for g in range(16):
        e(f"ds_write_b128 v{P1 if g < 8 else vW}, {vr(ACC+4*g,4)} offset:{(g % 8)*8192}")
    e("s_waitcnt lgkmcnt(0)")
    e("s_barrier")
    RD = 64
    for sidx in range(8):
        for q in range(2):
            e(f"ds_read_b128 {vr(RD+8*sidx+4*q,4)}, v{P2_} offset:{8192*q+1024*sidx}")
    for i in range(4):
        e(f"v_lshlrev_b32 v{2*i}, 16, v{XR+i}")
        e(f"v_and_b32 v{2*i+1}, 0xffff0000, v{XR+i}")
    for sidx in range(8):
        e(f"s_waitcnt lgkmcnt({14-2*sidx})")
        for r in range(0, 8, 2):
            e(f"v_pk_add_f32 {vr(r,2)}, {vr(r,2)}, {vr(RD+8*sidx+r,2)}")
    for i in range(4):
        e(f"v_cvt_pk_bf16_f32 v{XR+i}, v{2*i}, v{2*i+1}")
    for q in range(2):
        e(f"buffer_store_dwordx2 {vr(XR+2*q,2)}, v{vXO}, {sr(S_O,4)}, 0 offen offset:{16*q}")
    stamp(7)
    if STAMP: e("s_waitcnt vmcnt(0)")
    stamp(8)
    stamp_flush(50, 0x1100000, sW)

def desc(name, nv, acc):
    L.append(f""".amdhsa_kernel {name}
  .amdhsa_next_free_vgpr {nv}
  .amdhsa_next_free_sgpr 102
  .amdhsa_accum_offset {acc}
  .amdhsa_group_segment_fixed_size 0
  .amdhsa_kernarg_size 80
  .amdhsa_user_sgpr_count 2
  .amdhsa_user_sgpr_kernarg_segment_ptr 1
  .amdhsa_system_sgpr_workgroup_id_x 1
.end_amdhsa_kernel""")

L.append(HEADER.rstrip())
L.append("; @launch kernel=k1_kernel grid=(256,1,1) block=(512,1,1) lds=163840")
if not FUSE: L.append("; @launch kernel=k2_kernel grid=(256,1,1) block=(256,1,1) lds=49152")
L.append('.amdgcn_target "amdgcn-amd-amdhsa--gfx950"\n.text')
kernel1()
if not FUSE: kernel2()
L.append('.section .rodata,"a"\n.p2align 6')
desc("k1_kernel", 256, 256)
if not FUSE:
    L.append(".p2align 6")
    desc("k2_kernel", 496, 256)
open(OUT, "w").write("\n".join(x for x in L if x is not None) + "\n")
print("wrote", OUT, len(L), "lines")
```

```python
import sys
OUT = sys.argv[1] if len(sys.argv) > 1 else "parallel_sum__sliding_local_dilated__glu_gated_swiglu__prompt.s"
L = []
import os
EXP = os.environ.get("EXP", "")
INLOOP = [False]
PD = [int(c) for c in os.environ.get("PD", "222")]
FUSE = int(os.environ.get("FUSE", "1"))
SC = " sc1" if FUSE else ""
def e(s):
    if INLOOP[0]:
        if "nodma" in EXP and ("offen lds" in s): return
        if "nomfma" in EXP and s.startswith("v_mfma"): return
        if "nolds" in EXP and s.startswith("ds_read"): return
        if "novalu" in EXP and (s.startswith("v_lshlrev_b32") or s.startswith("v_and_b32") or s.startswith("v_add_f32") or s.startswith("v_fmac")): return
        if "nox" in EXP and ("offen lds" in s) and "s[8:11]" in s: return
        if "noqkv" in EXP and ("offen lds" in s) and "s[20:23]" in s: return
        if "now13" in EXP and ("offen lds" in s) and ("s[12:15]" in s or "s[16:19]" in s): return
    L.append("    " + s)
def lab(s): L.append(s + ":")
def capture(fn):
    n = len(L); fn(); r = [x.strip() for x in L[n:]]; del L[n:]
    return r
def vr(b, n): return f"v[{b}:{b+n-1}]"
def ar(b, n): return f"a[{b}:{b+n-1}]"
def sr(b, n): return f"s[{b}:{b+n-1}]"

WSLOT = 18496; NW = 3
W1OFF = 0; QKVOFF = 6144; W3OFF = 12320
XBASE = 92544; XSLOT = 18432; NX = 2
MISC = XBASE + 3 * XSLOT
ONES = MISC
TS = MISC + 4096
CS = MISC + 12288
CS9 = CS + 1024
RS = CS9 + 512
SQ = MISC + 1024
HSC = RS + 512
HSC = TS
assert RS + 512 <= 163840
STG = 0; SPITCH = 272
TAGL = RS + 512; FLG = 0xC00000
HF_BYTES = 118 * 64 * 1024
W2F_OFF = 0x800000; W2F_BYTES = 118 * 16 * 1024
LOG2E = 1.4426950408889634
import struct
def f2u(x): return struct.unpack("<I", struct.pack("<f", x))[0]

HEADER = open("parallel_sum__sliding_local_dilated__glu_gated_swiglu__prompt.s.ref").read().split("; Override launch")[0]

def srd(d, base, nbytes):
    e(f"s_mov_b32 s{d}, s{base}")
    e(f"s_and_b32 s{d+1}, s{base+1}, 0xffff")
    e(f"s_mov_b32 s{d+2}, {nbytes}")
    e(f"s_mov_b32 s{d+3}, 0x00020000")

import os
STAMP = int(os.environ.get("STAMP", "0"))
def stamp(idx, sbase=90):
    if not STAMP: return
    e(f"s_memrealtime s[{sbase}:{sbase+1}]")
    e(f"s_memtime s[{sbase+2}:{sbase+3}]")
    e("s_waitcnt lgkmcnt(0)")
    e(f"v_writelane_b32 v{STV}, s{sbase}, {2*idx}")
    e(f"v_writelane_b32 v{STV}, s{sbase+2}, {2*idx+1}")
def stamp_flush(wsreg, off, swave, lanereg_x16=None):
    if not STAMP: return
    e(f"s_add_u32 s92, s{wsreg}, {off}")
    e(f"s_addc_u32 s93, s{wsreg+1}, 0")
    e("s_and_b32 s93, s93, 0xffff")
    e("s_mov_b32 s94, 0x100000")
    e("s_mov_b32 s95, 0x00020000")
    e(f"s_lshl_b32 s90, s2, 3")
    e(f"s_add_u32 s90, s90, s{swave}")
    e("s_lshl_b32 s90, s90, 8")
    e("v_mbcnt_lo_u32_b32 v1, -1, 0")
    e("v_mbcnt_hi_u32_b32 v1, -1, v1")
    e("v_lshlrev_b32 v1, 2, v1")
    e(f"buffer_store_dword v{STV}, v1, s[92:95], s90 offen")
STV = 255
def weave(mf, va):
    out = []
    n = len(mf);
    per = [len(va) * (i + 1) // n - len(va) * i // n for i in range(n)]
    k = 0
    for i, m in enumerate(mf):
        out.append(m)
        out.extend(va[k:k + per[i]]); k += per[i]
    return out

def kernel1():
    ROT1 = int(os.environ.get("K1ROT", "1"))
    S_X, S_W1, S_W3, S_QKV, S_WT, S_HF, S_W2F = 8, 12, 16, 20, 24, 28, 32
    sW, sG, sMH, sRB, sCG, sM0, sTF, sTH, sFW, sOF, sOH, sHSEL, sHAS = 52, 53, 54, 55, 56, 57, 58, 59, 60, 61, 62, 63, 64
    sRWA, sRWB, sRX, sKC, sKD, sKO1, sKOQ, sKOX, sIT, sT0, sT1, sT2, sT3 = 65, 66, 67, 68, 69, 70, 71, 72, 73, 74, 75, 76, 77
    sDMA, sMT0, sMT1, sID = 78, 79, 80, 81
    sDWs, sDXs = 83, 84
    sMK = 86
    sWPW, sWPX, sWPD = 88, 89, 85
    ACC = 0
    ACC9 = 64
    HST = 68
    CSA, CS9A, SQA = 80, 84, 88
    FX = [92, 100]
    FW = [108, 120]
    FHX, FHX1, FHW, FSQ, SEL = 132, 136, 140, 144, 148
    vLane, vTid = 152, 153
    vDW13, vDQKV, vDX = 154, 155, 156
    vXa0, vXa1 = 159, 160
    vWA, vWB, vB9, vM9 = 161, 162, 163, 164
    vHXa, vHWa, vMH1, vCH1, vSQa = 165, 166, 167, 168, 169
    aX = 170
    aWA, aWB, a9 = 178, 179, 180
    aHX, aHX1, aHW, aSQ = 181, 182, 183, 184
    T = 186
    WT = 200
    vTA1, vTA2 = 204, 205
    vTMP = 206
    PF = int(os.environ.get("PF", "0")); LA = int(os.environ.get("LA", "2")); PFO = int(os.environ.get("PFO", "1")); PFB = int(os.environ.get("PFB", "2")); PV = 210

    L.append(".globl k1_kernel\n.p2align 8\n.type k1_kernel,@function\nk1_kernel:")
    e("s_cmp_ge_u32 s2, 256")
    e("s_cbranch_scc1 K1_END")
    e("s_load_dwordx4 s[36:39], s[0:1], 0")
    e("s_load_dwordx2 s[40:41], s[0:1], 16")
    e("s_load_dwordx4 s[44:47], s[0:1], 32")
    e("s_load_dwordx2 s[48:49], s[0:1], 48")
    e("s_load_dwordx2 s[50:51], s[0:1], 72")
    if FUSE: e("s_load_dwordx4 s[96:99], s[0:1], 56")
    stamp(0)
    e(f"v_mov_b32 v{vTid}, v0")
    if FUSE:
        for r_ in (251, 244, 245): e(f"v_mov_b32 v{r_}, 0")
    e(f"v_and_b32 v{vLane}, 63, v0")
    e(f"v_lshrrev_b32 v{T}, 6, v0")
    e("s_and_b32 s3, s2, 7")
    e(f"v_readfirstlane_b32 s{sW}, v{T}")
    e("s_lshr_b32 s4, s2, 3")
    e("s_and_b32 s5, s3, 1")
    e("s_lshl_b32 s5, s5, 3")
    e("s_and_b32 s6, s4, 7")
    e(f"s_add_u32 s{sRB}, s5, s6")
    e("s_lshr_b32 s5, s3, 1")
    e("s_lshl_b32 s5, s5, 2")
    e("s_lshr_b32 s6, s4, 3")
    e(f"s_add_u32 s{sCG}, s5, s6")
    RC, RR, RXC = [int(t) for t in os.environ.get("K1R", "4,4,1").split(",")]
    e(f"s_mul_i32 s6, s6, {RC}")
    e(f"s_mul_i32 s5, s4, {RR}")
    e("s_add_u32 s6, s6, s5")
    RA, RB = [int(t) for t in os.environ.get("K1X", "2,2").split(",")]
    e("s_and_b32 s5, s3, 1")
    e(f"s_mul_i32 s5, s5, {RA}")
    e("s_add_u32 s6, s6, s5")
    e("s_lshr_b32 s5, s3, 1")
    e(f"s_mul_i32 s5, s5, {RB}")
    e("s_add_u32 s6, s6, s5")
    e(f"s_and_b32 s{sKD}, s6, 7")
    e(f"s_lshl_b32 s{sKC}, s{sKD}, 1")
    e(f"s_lshl_b32 s{sM0}, s{sRB}, 7")
    e(f"s_and_b32 s{sG}, s{sW}, 3")
    e(f"s_lshr_b32 s{sMH}, s{sW}, 2")
    e(f"s_lshr_b32 s3, s{sCG}, 1")
    e("s_mul_i32 s3, s3, 11")
    e(f"s_and_b32 s4, s{sCG}, 1")
    e(f"s_mul_i32 s5, s{sCG}, 5")
    e("s_add_u32 s5, s5, 6")
    e(f"s_cmp_lt_u32 s{sCG}, 12")
    e("s_cselect_b32 s3, s3, s5")
    e(f"s_cselect_b32 s{sHSEL}, s4, 0")
    e(f"s_cselect_b32 s{sHAS}, 1, 0")
    e(f"s_add_u32 s{sTH}, s3, 5")
    e(f"s_mul_i32 s4, s{sHSEL}, 6")
    e(f"s_add_u32 s{sTF}, s3, s4")
    e(f"s_lshl_b32 s5, s3, 5")
    e(f"s_mul_i32 s4, s{sHSEL}, 176")
    e(f"s_add_u32 s{sFW}, s5, s4")
    e(f"s_lshl_b32 s{sOF}, s{sHSEL}, 4")
    e(f"s_mul_i32 s4, s{sHSEL}, 160")
    e(f"s_sub_u32 s{sOH}, 160, s4")
    e(f"v_mul_u32_u24 v{T}, 43691, v{vTid}")
    e(f"v_lshrrev_b32 v{T}, 19, v{T}")
    e(f"v_mul_u32_u24 v{T+1}, 12, v{T}")
    e(f"v_sub_u32 v{T+1}, v{vTid}, v{T+1}")
    e(f"v_mul_u32_u24 v{vDW13}, 2752, v{T}")
    e(f"v_lshl_add_u32 v{vDW13}, v{T+1}, 4, v{vDW13}")
    e(f"v_add_u32 v{vDW13}, s{sFW}, v{vDW13}")
    e(f"v_mul_u32_u24 v{vDQKV}, 3072, v{T}")
    e(f"v_lshrrev_b32 v{T+2}, 2, v{T+1}")
    e(f"v_lshl_add_u32 v{vDQKV}, v{T+2}, 10, v{vDQKV}")
    e(f"v_and_b32 v{T+2}, 3, v{T+1}")
    e(f"v_lshl_add_u32 v{vDQKV}, v{T+2}, 4, v{vDQKV}")
    e(f"s_lshl_b32 s3, s{sCG}, 6")
    e(f"v_add_u32 v{vDQKV}, s3, v{vDQKV}")
    e(f"s_mul_i32 s3, s{sW}, 24")
    e(f"v_lshrrev_b32 v{T}, 3, v{vLane}")
    e(f"v_add_u32 v{T}, s3, v{T}")
    e(f"v_and_b32 v{T+1}, 7, v{vLane}")
    e(f"s_sub_u32 s4, s{sM0}, 16")
    e(f"v_bfe_u32 v{T+3}, v{T}, 1, 3")
    e(f"v_xor_b32 v{T+3}, v{T+3}, v{T+1}")
    e(f"v_add_u32 v{T+2}, s4, v{T}")
    e(f"v_lshlrev_b32 v{T+4}, 10, v{T+2}")
    e(f"v_lshl_add_u32 v{vDX}, v{T+3}, 4, v{T+4}")
    e(f"v_xor_b32 v{vDX+1}, 64, v{vDX}")
    e(f"v_add_u32 v{vDX+1}, 0x2000, v{vDX+1}")
    e(f"v_add_u32 v{vDX+2}, 0x4000, v{vDX}")
    e(f"v_min_u32 v{vDX}, 0x80000000, v{vDX}")
    e(f"v_min_u32 v{vDX+1}, 0x80000000, v{vDX+1}")
    e(f"s_lshl_b32 s{sID}, s2, 3")
    e(f"s_add_u32 s{sID}, s{sID}, s{sW}")
    e(f"s_lshr_b32 s3, s{sID}, 4")
    e(f"s_and_b32 s4, s{sID}, 15")
    e("s_sub_u32 s5, s3, 32")
    e("s_cmp_lt_u32 s3, 32")
    e("s_cselect_b32 s5, s3, s5")
    e(f"s_cselect_b32 s{sT0}, 1, 0")
    e("s_lshl_b32 s5, s5, 14")
    e("s_lshl_b32 s4, s4, 6")
    e("s_add_u32 s5, s5, s4")
    e(f"v_lshrrev_b32 v{T}, 2, v{vLane}")
    e(f"v_lshlrev_b32 v{T}, 10, v{T}")
    e(f"v_and_b32 v{T+1}, 3, v{vLane}")
    e(f"v_lshl_add_u32 v{T}, v{T+1}, 4, v{T}")
    e(f"v_add_u32 v{T+6}, s5, v{T}")
    e(f"s_lshl_b32 s{sWPW}, s{sW}, 10")
    e(f"s_mul_i32 s{sWPX}, s{sW}, 3072")
    e(f"s_add_u32 s{sWPX}, s{sWPX}, {XBASE}")
    e(f"s_mov_b32 s{sDWs}, s{sWPW}")
    e(f"s_mov_b32 s{sWPD}, s{sWPW}")
    e(f"s_mov_b32 s{sDXs}, s{sWPX}")
    e("s_waitcnt lgkmcnt(0)")
    srd(S_X, 36, 2048 * 1024)
    srd(S_QKV, 38, 512 * 3072)
    srd(S_W1, 44, 512 * 2752)
    srd(S_W3, 46, 512 * 2752)
    def dmaW():
        e(f"s_mul_i32 s{sKO1}, s{sKC}, {32*2752}")
        e(f"s_mul_i32 s{sKOQ}, s{sKC}, {32*3072}")
        e(f"s_add_u32 m0, s{sDWs}, {W1OFF}")
        e(f"s_add_u32 s{sKC}, s{sKC}, 1")
        e(f"buffer_load_dwordx4 v{vDW13}, {sr(S_W1,4)}, s{sKO1} offen lds")
        e(f"s_add_u32 m0, s{sDWs}, {QKVOFF}")
        e(f"s_and_b32 s{sKC}, s{sKC}, 15")
        e(f"buffer_load_dwordx4 v{vDQKV}, {sr(S_QKV,4)}, s{sKOQ} offen lds")
        e(f"s_add_u32 m0, s{sDWs}, {W3OFF}")
        e(f"s_add_u32 s{sDWs}, s{sDWs}, {WSLOT}")
        e(f"buffer_load_dwordx4 v{vDW13}, {sr(S_W3,4)}, s{sKO1} offen lds")
        e(f"s_cmp_ge_u32 s{sDWs}, {NW*WSLOT}")
        e(f"s_cselect_b32 s{sDWs}, s{sWPD}, s{sDWs}")
    def dmaX():
        e(f"s_lshl_b32 s{sKOX}, s{sKD}, 7")
        e(f"s_add_u32 m0, s{sDXs}, 0")
        e(f"s_add_u32 s{sKD}, s{sKD}, 1")
        e(f"buffer_load_dwordx4 v{vDX}, {sr(S_X,4)}, s{sKOX} offen lds")
        e(f"s_add_u32 m0, s{sDXs}, 1024")
        e(f"s_and_b32 s{sKD}, s{sKD}, 7")
        e(f"buffer_load_dwordx4 v{vDX+1}, {sr(S_X,4)}, s{sKOX} offen lds")
        e(f"s_add_u32 m0, s{sDXs}, 2048")
        e(f"s_add_u32 s{sDXs}, s{sDXs}, {XSLOT}")
        e(f"buffer_load_dwordx4 v{vDX+2}, {sr(S_X,4)}, s{sKOX} offen lds")
        e(f"s_cmp_ge_u32 s{sDXs}, {XBASE+NX*XSLOT}")
        e(f"s_cselect_b32 s{sDXs}, s{sWPX}, s{sDXs}")
    e(f"s_cmp_eq_u32 s{sT0}, 1")
    e(f"s_cselect_b32 s{S_WT}, s40, s48")
    e(f"s_cselect_b32 s{S_WT+1}, s41, s49")
    e(f"s_mov_b32 s3, {1376*1024}")
    e(f"s_cselect_b32 s{S_WT+2}, {512*1024}, s3")
    e(f"s_and_b32 s{S_WT+1}, s{S_WT+1}, 0xffff")
    e(f"s_mov_b32 s{S_WT+3}, 0x00020000")
    e(f"buffer_load_dwordx4 {vr(WT,4)}, v{T+6}, {sr(S_WT,4)}, 0 offen")
    e(f"s_cmp_lt_u32 s{sW}, 6")
    e(f"s_cselect_b32 s{sDMA}, 1, 0")
    e("s_cbranch_scc0 K1_PRO_PF")
    dmaW(); dmaX()
    if PF:
        e("s_branch K1_PRO_NODMA0")
    if FUSE and not PF: e("s_branch K1_PRO_NODMA0")
    lab("K1_PRO_PF")
    if FUSE:
        srd(44, 98, 256)
        e(f"s_lshl_b32 s3, s{sCG}, 6")
        e(f"s_lshl_b32 s4, s{sRB}, 2")
        e("s_add_u32 s3, s3, s4")
        e("v_mov_b32 v244, s3")
        e(f"v_lshlrev_b32 v245, 4, v{vLane}")
        e("s_lshr_b32 s3, s2, 3")
        e("s_lshl_b32 s3, s3, 3")
        e(f"s_add_u32 s3, s3, s{sW}")
        e("s_cmp_eq_u32 s3, 7")
        e("s_cbranch_scc0 K1_PRO_NODMA0")
        e("s_memrealtime s[100:101]")
        e("s_waitcnt lgkmcnt(0)")
        e("s_or_b32 s100, s100, 1")
        e("v_mov_b32 v250, s100")
        e("s_mov_b64 exec, 1")
        e("buffer_atomic_cmpswap v[250:251], v251, s[44:47], 0 offen sc1")
        e("s_mov_b64 exec, -1")
    if PF >= 2:
        e(f"v_lshlrev_b32 v{PV}, {PF}, v{vLane}")
        e(f"s_cmp_eq_u32 s{sW}, 6")
        e("s_cbranch_scc1 K1_PRO_PFW")
        e(f"buffer_load_dword v{PV+12}, v{PV}, {sr(S_QKV,4)}, 0 offen")
        e(f"buffer_load_dword v{PV+12}, v{PV}, {sr(S_W3,4)}, 0 offen")
        e("s_branch K1_PRO_NODMA0")
        lab("K1_PRO_PFW")
        e(f"buffer_load_dword v{PV+12}, v{PV}, {sr(S_W1,4)}, 0 offen")
        e(f"buffer_load_dword v{PV+12}, v{PV}, {sr(S_X,4)}, 0 offen")
    if PF == 1:
        e("s_and_b32 s3, s2, 7")
        e("s_lshr_b32 s4, s2, 3")
        e(f"s_mul_i32 s5, s3, {RXC}")
        e(f"s_add_u32 s5, s5, {PFO}")
        e(f"s_cmp_eq_u32 s{sW}, 6")
        e("s_cbranch_scc1 K1_PRO_PFW")
        e(f"v_lshrrev_b32 v{PV+8}, 5, v{vLane}")
        e(f"v_add_u32 v{PV+8}, s5, v{PV+8}")
        e(f"v_and_b32 v{PV+9}, 31, v{vLane}")
        e("s_and_b32 s6, s3, 1")
        e("s_lshl_b32 s6, s6, 5")
        e("s_add_u32 s6, s6, s4")
        e("s_lshl_b32 s6, s6, 5")
        e(f"v_add_u32 v{PV+9}, s6, v{PV+9}")
        e(f"v_lshlrev_b32 v{PV+9}, 10, v{PV+9}")
        for i in range(4):
            e(f"v_add_u32 v{PV+10}, {2*i}, v{PV+8}")
            e(f"v_and_b32 v{PV+10}, 7, v{PV+10}")
            e(f"v_lshl_add_u32 v{PV+i}, v{PV+10}, 7, v{PV+9}")
            if i < 2: e(f"buffer_load_dword v{PV+12}, v{PV+i}, {sr(S_X,4)}, 0 offen")
        e("s_branch K1_PRO_NODMA0")
        lab("K1_PRO_PFW")
        e(f"v_lshrrev_b32 v{PV+8}, 4, v{vLane}")
        e(f"v_add_u32 v{PV+8}, s5, v{PV+8}")
        e(f"v_bfe_u32 v{PV+9}, v{vLane}, 3, 1")
        e("s_lshl_b32 s4, s4, 1")
        e(f"v_add_u32 v{PV+9}, s4, v{PV+9}")
        e(f"v_and_b32 v{PV+10}, 7, v{vLane}")
        e(f"v_lshlrev_b32 v{PV+11}, 7, v{PV+10}")
        e(f"v_min_u32 v{PV+11}, 700, v{PV+11}")
        e("s_lshr_b32 s3, s3, 1")
        e("s_mul_i32 s6, s3, 704")
        e(f"v_add_u32 v{PV+11}, s6, v{PV+11}")
        e(f"v_lshrrev_b32 v{PV+13}, 1, v{PV+10}")
        e(f"v_lshlrev_b32 v{PV+13}, 10, v{PV+13}")
        e(f"v_and_b32 v{PV+10}, 1, v{PV+10}")
        e(f"v_lshl_add_u32 v{PV+13}, v{PV+10}, 7, v{PV+13}")
        e("s_lshl_b32 s6, s3, 8")
        e(f"v_add_u32 v{PV+13}, s6, v{PV+13}")
        e("s_movk_i32 s5, 2752")
        e("s_movk_i32 s6, 3072")
        for i in range(2):
            e(f"v_add_u32 v{PV+10}, {4*i}, v{PV+8}")
            e(f"v_and_b32 v{PV+10}, 7, v{PV+10}")
            e(f"v_lshl_add_u32 v{PV+10}, v{PV+10}, 6, v{PV+9}")
            e(f"v_mad_u32_u24 v{PV+2*i}, v{PV+10}, s5, v{PV+11}")
            e(f"v_mad_u32_u24 v{PV+2*i+1}, v{PV+10}, s6, v{PV+13}")
            if i == 0:
                e(f"buffer_load_dword v{PV+12}, v{PV}, {sr(S_W1,4)}, 0 offen")
                e(f"buffer_load_dword v{PV+12}, v{PV+1}, {sr(S_QKV,4)}, 0 offen")
                e(f"buffer_load_dword v{PV+12}, v{PV}, {sr(S_W3,4)}, 0 offen")
    lab("K1_PRO_NODMA0")
    e("s_barrier")
    stamp(2)
    e(f"s_cmp_eq_u32 s{sDMA}, 1")
    e("s_cbranch_scc0 K1_PRO_NODMA1")
    dmaW()
    e("s_branch K1_PRO_DMA1")
    lab("K1_PRO_NODMA1")
    for d in (S_X, S_W1, S_W3, S_QKV): e(f"s_mov_b32 s{d+2}, 0")
    e(f"s_mov_b32 s{sDWs}, {NW*WSLOT}")
    e(f"s_mov_b32 s{sDXs}, {XBASE+NX*XSLOT}")
    e(f"s_mov_b32 s{sWPD}, {NW*WSLOT}")
    e(f"s_mov_b32 s{sWPX}, {XBASE+NX*XSLOT}")
    lab("K1_PRO_DMA1")
    e(f"s_mov_b32 s{S_HF}, s50")
    e(f"s_and_b32 s{S_HF+1}, s51, 0xffff")
    e(f"s_mov_b32 s{S_HF+2}, {HF_BYTES}")
    e(f"s_mov_b32 s{S_HF+3}, 0x00020000")
    e(f"s_add_u32 s{S_W2F}, s50, {W2F_OFF}")
    e(f"s_addc_u32 s{S_W2F+1}, s51, 0")
    e(f"s_and_b32 s{S_W2F+1}, s{S_W2F+1}, 0xffff")
    e(f"s_mov_b32 s{S_W2F+2}, {W2F_BYTES}")
    e(f"s_mov_b32 s{S_W2F+3}, 0x00020000")
    S_FL = 40
    if FUSE:
        e(f"s_add_u32 s{S_FL}, s50, {FLG}")
        e(f"s_addc_u32 s{S_FL+1}, s51, 0")
        e(f"s_and_b32 s{S_FL+1}, s{S_FL+1}, 0xffff")
        e(f"s_mov_b32 s{S_FL+2}, 8192")
        e(f"s_mov_b32 s{S_FL+3}, 0x00020000")
    for i in range(4): e(f"v_mov_b32 v{T+8+i}, 0x3f803f80")
    e(f"v_mov_b32 v{T+4}, {ONES}")
    e(f"ds_write_b128 v{T+4}, {vr(T+8,4)}")
    for o in (768, 3072, 3840):
        e(f"ds_write_b64 v{T+4}, {vr(T+8,2)} offset:{o}")
    e(f"v_and_b32 v{T}, 31, v{vLane}")
    e(f"v_lshrrev_b32 v{T+1}, 5, v{vLane}")
    e(f"v_bfe_u32 v{T+2}, v{vLane}, 1, 3")
    e(f"v_xor_b32 v{T+2}, v{T+2}, v{T+1}")
    e(f"v_lshlrev_b32 v{T+2}, 4, v{T+2}")
    e(f"v_lshl_add_u32 v{T+2}, v{T}, 7, v{T+2}")
    e(f"s_and_b32 s3, s{sG}, 1")
    e(f"s_lshl_b32 s4, s{sMH}, 1")
    e(f"s_add_u32 s{sMT0}, s4, s3")
    e(f"s_xor_b32 s{sMT1}, s{sMT0}, 1")
    e(f"s_lshl_b32 s3, s{sMT0}, 12")
    e(f"s_add_u32 s3, s3, {16*128}")
    e(f"v_add_u32 v{vXa0}, s3, v{T+2}")
    e(f"s_lshl_b32 s3, s{sMT1}, 12")
    e(f"s_add_u32 s3, s3, {16*128}")
    e(f"v_add_u32 v{vXa1}, s3, v{T+2}")
    e(f"v_bfe_u32 v{T}, v{vLane}, 4, 1")
    e(f"v_bfe_u32 v{T+2}, v{vLane}, 2, 2")
    e(f"v_lshl_add_u32 v{T+2}, v{T+1}, 3, v{T+2}")
    e(f"v_mul_u32_u24 v{T+2}, 192, v{T+2}")
    e(f"v_and_b32 v{T+3}, 3, v{vLane}")
    e(f"v_lshl_add_u32 v{T+4}, v{T+3}, 3, v{T+2}")
    e(f"v_lshl_add_u32 v{T+5}, v{T}, 5, v{T+4}")
    e(f"v_add_u32 v{T+5}, {QKVOFF}, v{T+5}")
    e(f"v_mul_u32_u24 v{T+7}, {W3OFF}, v{T}")
    e(f"v_add_u32 v{T+7}, v{T+7}, v{T+4}")
    e(f"v_add_u32 v{T+7}, s{sOF}, v{T+7}")
    for slot, dst in ((0, vWA), (1, vWB)):
        e(f"s_lshl_b32 s3, s{sG}, 1")
        e(f"s_add_u32 s3, s3, {slot}")
        e("s_lshl_b32 s4, s3, 6")
        e("s_sub_u32 s5, s3, 3")
        e("s_lshl_b32 s5, s5, 5")
        e("s_cmp_lt_u32 s3, 3")
        e("s_cselect_b32 s4, s4, s5")
        e(f"s_cselect_b64 {sr(sMK,2)}, -1, 0")
        e(f"v_cndmask_b32 v{dst}, v{T+7}, v{T+5}, {sr(sMK,2)}")
        e(f"v_add_u32 v{dst}, s4, v{dst}")
    e(f"v_lshrrev_b32 v{T+8}, 1, v{T+3}")
    e(f"v_mul_u32_u24 v{T+8}, {W3OFF}, v{T+8}")
    e(f"v_and_b32 v{T+9}, 1, v{T+3}")
    e(f"v_lshl_add_u32 v{T+8}, v{T+9}, 3, v{T+8}")
    e(f"v_add_u32 v{T+8}, v{T+8}, v{T+2}")
    e(f"v_add_u32 v{T+8}, s{sOH}, v{T+8}")
    e(f"v_mov_b32 v{T+9}, {ONES}")
    e(f"v_cmp_eq_u32 vcc, 1, v{T}")
    e(f"v_xor_b32 v{vM9}, 1, v{T}")
    e("s_nop 0")
    e(f"v_cndmask_b32 v{vB9}, v{T+8}, v{T+9}, vcc")
    stamp(3)
    e(f"v_and_b32 v{T}, 15, v{vLane}")
    e(f"v_lshrrev_b32 v{T+1}, 4, v{vLane}")
    e(f"v_bfe_u32 v{T+2}, v{vLane}, 1, 3")
    e(f"v_xor_b32 v{T+2}, v{T+2}, v{T+1}")
    e(f"v_lshlrev_b32 v{T+2}, 4, v{T+2}")
    e(f"v_lshl_add_u32 v{vHXa}, v{T}, 7, v{T+2}")
    e(f"s_lshl_b32 s3, s{sW}, 11")
    e(f"s_add_u32 s3, s3, 2048")
    e(f"v_add_u32 v{vSQa}, s3, v{vHXa}")
    e(f"v_cmp_eq_u32 vcc, 0, v{T}")
    e(f"v_mov_b32 v{T+4}, 0")
    e(f"v_mov_b32 v{T+5}, 1")
    e(f"v_cndmask_b32 v{vCH1}, v{T+4}, v{T+9}, vcc")
    e(f"v_cndmask_b32 v{vMH1}, v{T+5}, v{T+4}, vcc")
    e(f"v_and_b32 v{T+5}, 1, v{T+1}")
    e(f"v_cmp_eq_u32 vcc, v{T+5}, v{T}")
    e(f"v_mov_b32 v{T+5}, 0x3f803f80")
    e("s_nop 0")
    for i in range(4): e(f"v_cndmask_b32 v{SEL+i}, v{T+4}, v{T+5}, vcc")
    e(f"v_bfe_u32 v{T+2}, v{vLane}, 2, 2")
    e(f"v_lshl_add_u32 v{T+2}, v{T+1}, 3, v{T+2}")
    e(f"v_mul_u32_u24 v{T+2}, 192, v{T+2}")
    e(f"v_lshl_add_u32 v{T+2}, v{T+3}, 3, v{T+2}")
    e(f"s_lshl_b32 s3, s{sG}, 5")
    e(f"s_add_u32 s3, s3, {QKVOFF+64}")
    e(f"v_add_u32 v{vHWa}, s3, v{T+2}")
    e(f"v_bfe_u32 v{T}, v{vLane}, 4, 1")
    e(f"v_lshrrev_b32 v{T+1}, 5, v{vLane}")
    e(f"v_bfe_u32 v{T+2}, v{vLane}, 2, 2")
    e(f"s_cmp_eq_u32 s{sT0}, 1")
    e("s_cselect_b32 s3, 3, 2")
    e("s_movk_i32 s4, 512")
    e("s_cselect_b32 s4, 256, s4")
    e(f"v_lshlrev_b32 v{T+1}, s3, v{T+1}")
    e(f"v_add_u32 v{T+1}, v{T+1}, v{T+2}")
    e(f"v_lshlrev_b32 v{T+1}, 6, v{T+1}")
    e(f"v_lshl_add_u32 v{T+1}, v{T}, 5, v{T+1}")
    e(f"v_lshl_add_u32 v{T+1}, v{T+3}, 3, v{T+1}")
    e(f"s_add_u32 s5, s{sWPW}, {TS}")
    e(f"v_add_u32 v{vTA1}, s5, v{T+1}")
    e(f"v_add_u32 v{vTA2}, s4, v{vTA1}")
    for i in range(4): e(f"v_mov_b32 v{96+i}, 0")
    e("s_nop 1")
    for r in (0, 16, 32, 48, 64, 80, 100, 116, 132):
        e(f"v_mfma_f32_32x32x16_bf16 {vr(r,16)}, {vr(96,4)}, {vr(96,4)}, 0")
    e(f"s_mov_b32 s{sRWA}, 0")
    e(f"s_mov_b32 s{sRWB}, {WSLOT}")
    e(f"s_mov_b32 s{sRX}, {XBASE}")
    e(f"s_mov_b32 s{sIT}, 1")
    e(f"s_lshr_b32 s3, s{sG}, 1")
    e(f"s_cmp_eq_u32 s3, s{sMH}")
    e("s_cbranch_scc0 K1_ROLEH")

    uid = [0]
    DL = 6 if LA == 4 else 7
    def adv(sreg, step, lim):
        e(f"s_add_u32 s{sreg}, s{sreg}, {step}")
        e(f"s_sub_u32 s{sT1}, s{sreg}, {lim}")
        e(f"s_cmp_ge_u32 s{sreg}, {lim}")
        e(f"s_cselect_b32 s{sreg}, s{sT1}, s{sreg}")
    def dma_loop(even, role9):
        uid[0] += 1
        lb = f"K1_ND{uid[0]}"
        lim = {4: (6, 6), 3: (7, 6), 2: (7, 7)}[LA][0 if even else 1]
        e(f"s_cmp_{'gt' if lim == DL else 'ge'}_u32 s{sIT}, s{sDMA}")
        e(f"s_cbranch_scc1 {lb}")
        dmaW()
        if even: dmaX()
        lab(lb)
        if even and role9 and PF == 1:
            e(f"s_lshl_b32 s{sT2}, s{sIT}, 3")
            e(f"s_add_u32 s{sT2}, s{sT2}, s{sW}")
            e(f"s_cmp_eq_u32 s{sT2}, {8*PFB+7}")
            e(f"s_cbranch_scc0 {lb}x")
            e(f"buffer_load_dword v{PV+12}, v{PV+2}, {sr(S_X,4)}, 0 offen")
            e(f"buffer_load_dword v{PV+12}, v{PV+3}, {sr(S_X,4)}, 0 offen")
            lab(lb + "x")
            e(f"s_cmp_eq_u32 s{sT2}, {8*PFB+6}")
            e(f"s_cbranch_scc0 {lb}w")
            e(f"buffer_load_dword v{PV+12}, v{PV+2}, {sr(S_W1,4)}, 0 offen")
            e(f"buffer_load_dword v{PV+12}, v{PV+3}, {sr(S_QKV,4)}, 0 offen")
            e(f"buffer_load_dword v{PV+12}, v{PV+2}, {sr(S_W3,4)}, 0 offen")
            lab(lb + "w")
    def vwait(steady, th, n, last0):
        uid[0] += 1
        lb = f"K1_VW{uid[0]}"
        e(f"s_waitcnt vmcnt({steady})")
        e(f"s_cmp_le_u32 s{sIT}, {th}")
        e(f"s_cbranch_scc1 {lb}")
        e(f"s_waitcnt vmcnt({n})")
        if last0:
            e(f"s_cmp_lt_u32 s{sIT}, 8")
            e(f"s_cbranch_scc1 {lb}")
            e("s_waitcnt vmcnt(0)")
        lab(lb)
    def x_addrs():
        r = [f"v_add_u32 v{aX}, s{sRX}, v{vXa0}", f"v_add_u32 v{aX+4}, s{sRX}, v{vXa1}"]
        for ks in range(1, 4):
            r.append(f"v_xor_b32 v{aX+ks}, {32*ks}, v{aX}")
            r.append(f"v_xor_b32 v{aX+4+ks}, {32*ks}, v{aX+4}")
        return r
    def chunk_addrs(srw, c2, role9):
        r = [f"v_add_u32 v{aWA}, s{srw}, v{vWA}", f"v_add_u32 v{aWB}, s{srw}, v{vWB}"]
        if role9:
            r.append(f"v_mad_u32_u24 v{a9}, v{vM9}, s{srw}, v{vB9}")
        else:
            r.append(f"v_add_u32 v{aHW}, s{srw}, v{vHWa}")
            r.append(f"v_add_u32 v{aHX}, s{sRX}, v{vHXa}")
            if c2: r.append(f"v_xor_b32 v{aHX}, 64, v{aHX}")
            r.append(f"v_mad_u32_u24 v{aHX1}, v{vMH1}, v{aHX}, v{vCH1}")
        r.append(f"v_add_u32 v{aSQ}, s{sRX}, v{vSQa}")
        if c2: r.append(f"v_xor_b32 v{aSQ}, 64, v{aSQ}")
        return r
    def reads(st, ks4, role9):
        ks = ks4 & 1
        o = 3072 * ks
        r = [f"ds_read_b128 {vr(FX[st],4)}, v{aX+ks4}",
             f"ds_read_b64_tr_b16 {vr(FW[st],2)}, v{aWA} offset:{o}",
             f"ds_read_b64_tr_b16 {vr(FW[st]+2,2)}, v{aWA} offset:{o+768}",
             f"ds_read_b128 {vr(FX[st]+4,4)}, v{aX+4+ks4}",
             f"ds_read_b64_tr_b16 {vr(FW[st]+4,2)}, v{aWB} offset:{o}",
             f"ds_read_b64_tr_b16 {vr(FW[st]+6,2)}, v{aWB} offset:{o+768}"]
        if role9:
            r += [f"ds_read_b64_tr_b16 {vr(FW[st]+8,2)}, v{a9} offset:{o}",
                  f"ds_read_b64_tr_b16 {vr(FW[st]+10,2)}, v{a9} offset:{o+768}"]
        return r
    def side_reads(role9):
        r = [f"ds_read_b128 {vr(FSQ,4)}, v{aSQ}"]
        if not role9:
            r += [f"ds_read_b128 {vr(FHX,4)}, v{aHX}", f"ds_read_b128 {vr(FHX1,4)}, v{aHX1}",
                  f"ds_read_b64_tr_b16 {vr(FHW,2)}, v{aHW}", f"ds_read_b64_tr_b16 {vr(FHW+2,2)}, v{aHW} offset:768"]
        return r
    def mfma_list(st, ks4, role9):
        mf = [f"v_mfma_f32_32x32x16_bf16 {vr(ACC,16)}, {vr(FW[st],4)}, {vr(FX[st],4)}, {vr(ACC,16)}",
              f"v_mfma_f32_32x32x16_bf16 {vr(ACC+16,16)}, {vr(FW[st],4)}, {vr(FX[st]+4,4)}, {vr(ACC+16,16)}",
              f"v_mfma_f32_32x32x16_bf16 {vr(ACC+32,16)}, {vr(FW[st]+4,4)}, {vr(FX[st],4)}, {vr(ACC+32,16)}",
              f"v_mfma_f32_32x32x16_bf16 {vr(ACC+48,16)}, {vr(FW[st]+4,4)}, {vr(FX[st]+4,4)}, {vr(ACC+48,16)}"]
        small = []
        if role9:
            mf.append(f"v_mfma_f32_32x32x16_bf16 {vr(ACC9,16)}, {vr(FW[st]+8,4)}, {vr(FX[st],4)}, {vr(ACC9,16)}")
            small.append(f"v_mfma_f32_16x16x32_bf16 {vr(CSA,4)}, {vr(FW[st],4)}, {vr(SEL,4)}, {vr(CSA,4)}")
        else:
            small.append(f"v_mfma_f32_16x16x32_bf16 {vr(CSA,4)}, {vr(FW[st]+4,4)}, {vr(SEL,4)}, {vr(CSA,4)}")
        if ks4 & 1:
            small.append(f"v_mfma_f32_16x16x32_bf16 {vr(SQA,4)}, {vr(FSQ,4)}, {vr(FSQ,4)}, {vr(SQA,4)}")
            if not role9:
                small.append(f"v_mfma_f32_16x16x32_bf16 {vr(ACC9,4)}, {vr(FHW,4)}, {vr(FHX,4)}, {vr(ACC9,4)}")
                small.append(f"v_mfma_f32_16x16x32_bf16 {vr(HST,4)}, {vr(FHX1,4)}, {vr(FHX,4)}, {vr(HST,4)}")
        return small, mf
    def group(st, ks4, role9, fill):
        small, mf = mfma_list(st, ks4, role9)
        MODE = os.environ.get("GMODE", "w21")
        def c9():
            if role9:
                uid[0] += 1
                lb = f"K1_C9{uid[0]}"
                e(f"s_cmp_eq_u32 s{sG}, {ks4}")
                e(f"s_cbranch_scc0 {lb}")
                e(f"v_mfma_f32_16x16x32_bf16 {vr(CS9A,4)}, {vr(FW[st]+8,4)}, {vr(SEL,4)}, {vr(CS9A,4)}")
                lab(lb)
        if MODE == "weave":
            for m in small: e(m)
            c9()
            n = len(mf) - 1
            per = [len(fill) * (i + 1) // n - len(fill) * i // n for i in range(n)] + [0]
            k = 0
            for i, m in enumerate(mf):
                e(m)
                for f in fill[k:k + per[i]]: e(f)
                k += per[i]
        elif MODE.startswith("w2"):
            seq = [(mf[0], 2), (mf[1], 2)]
            rest = mf[2:]; sm = list(small)
            while rest or sm:
                if sm: seq.append((sm.pop(0), 1))
                if rest: seq.append((rest.pop(0), 2))
            c9()
            last = int(MODE[2:] or 1)
            wts = [w_ for _, w_ in seq]
            for i in range(last): wts[-1 - i] = 0
            tot = sum(wts); acc = 0; k = 0
            for (m, _), w_ in zip(seq, wts):
                e(m)
                acc += w_
                k2 = len(fill) * acc // tot
                for f in fill[k:k2]: e(f)
                k = k2
        elif MODE == "first":
            for f in fill: e(f)
            for m in mf: e(m)
            for m in small: e(m)
            c9()
        elif MODE == "one":
            e(mf[0])
            for f in fill: e(f)
            for m in mf[1:]: e(m)
            for m in small: e(m)
            c9()
        elif MODE == "two":
            e(mf[0])
            h = len(fill) // 2
            for f in fill[:h]: e(f)
            e(mf[1])
            for f in fill[h:]: e(f)
            for m in mf[2:]: e(m)
            for m in small: e(m)
            c9()

    def mainloop(role9):
        nm = "9" if role9 else "H"
        uid[0] += 1
        lb = f"K1_TJ{uid[0]}"
        e("s_waitcnt vmcnt(9)")
        e(f"s_cmp_eq_u32 s{sDMA}, 1")
        e(f"s_cbranch_scc1 {lb}")
        e(f"s_waitcnt vmcnt({2 if PF else 0})")
        lab(lb)
        e(f"s_mul_i32 s{sDMA}, s{sDMA}, {DL}")
        e(f"v_lshlrev_b32 v{T+10}, 4, v{vLane}")
        e(f"s_add_u32 s3, s{sWPW}, {TS}")
        e(f"v_add_u32 v{T+11}, s3, v{T+10}")
        e(f"ds_write_b128 v{T+11}, {vr(WT,4)}")
        e("s_waitcnt lgkmcnt(0)")
        e(f"ds_read_b64_tr_b16 {vr(WT,2)}, v{vTA1}")
        e(f"ds_read_b64_tr_b16 {vr(WT+2,2)}, v{vTA2}")
        e(f"s_lshl_b32 s3, s{sID}, 10")
        e("s_waitcnt lgkmcnt(0)")
        e(f"buffer_store_dwordx4 {vr(WT,4)}, v{T+10}, {sr(S_W2F,4)}, s3 offen{SC}")
        PB = int(os.environ.get("PB", "1"))
        if LA == 4:
            e("s_barrier")
            e(f"s_cmp_eq_u32 s{sDMA}, 0")
            e(f"s_cbranch_scc1 K1_PND{nm}")
            dmaW(); dmaX()
            lab(f"K1_PND{nm}")
        if LA >= 3:
            e("s_barrier")
            e(f"s_cmp_eq_u32 s{sDMA}, 0")
            e(f"s_cbranch_scc1 K1_PNE{nm}")
            dmaW()
            lab(f"K1_PNE{nm}")
        stamp(1)
        for a_ in x_addrs() + chunk_addrs(sRWA, 0, role9): e(a_)
        lab(f"K1_LOOP{nm}")
        INLOOP[0] = True
        e("s_waitcnt vmcnt(3) lgkmcnt(0)")
        e("s_barrier")
        if STAMP == 2:
            e("s_memtime s[92:93]")
            e(f"s_lshl_b32 s94, s{sIT}, 1")
            e("s_add_u32 m0, s94, 38")
            e("s_waitcnt lgkmcnt(0)")
            e(f"v_writelane_b32 v{STV}, s92, m0")
        DW = os.environ.get("DW", "AB")
        dE = capture(lambda: (dmaW(), dmaX())); dO = capture(dmaW)
        def split(d):
            if DW == "A": return d, []
            if DW == "B": return [], d
            k = 13 if len(d) > 13 else 8
            return d[:k], d[k:]
        d1, d2 = split(dE)
        group(1, 3, role9, reads(0, 0, role9) + d1)
        e("s_waitcnt lgkmcnt(0)")
        group(0, 0, role9, reads(1, 1, role9) + side_reads(role9) + d2 + chunk_addrs(sRWB, 1, role9))
        e("s_waitcnt vmcnt(6) lgkmcnt(0)")
        e("s_barrier")
        if STAMP == 2:
            e("s_memtime s[92:93]")
            e(f"s_lshl_b32 s94, s{sIT}, 1")
            e("s_add_u32 m0, s94, 39")
            e("s_waitcnt lgkmcnt(0)")
            e(f"v_writelane_b32 v{STV}, s92, m0")
        if FUSE and role9:
            e(f"s_lshl_b32 s{sT2}, s{sIT}, 3")
            e(f"s_add_u32 s{sT2}, s{sT2}, s{sW}")
            e(f"s_cmp_eq_u32 s{sT2}, {8*1+7}")
            e("s_cbranch_scc0 K1_S10")
            e("buffer_load_dword v250, v251, s[44:47], 0 offen sc1")
            lab("K1_S10")
            e(f"s_cmp_eq_u32 s{sT2}, {8*2+7}")
            e("s_cbranch_scc0 K1_S1A")
            e("s_mov_b32 s3, 0")
            lab("K1_S1T")
            e("v_readfirstlane_b32 s100, v250")
            e("s_add_u32 s3, s3, 1")
            e("s_cmp_gt_u32 s3, 0x20000")
            e("s_cbranch_scc1 K1_S1U")
            e("s_cmp_lg_u32 s100, 0")
            e("s_cbranch_scc1 K1_S1U")
            e("s_sleep 4")
            e("buffer_load_dword v250, v251, s[44:47], 0 offen sc1")
            e("s_waitcnt vmcnt(0)")
            e("s_branch K1_S1T")
            lab("K1_S1U")
            e(f"v_mov_b32 v251, {TAGL}")
            e("s_mov_b64 exec, 1")
            e("ds_write_b32 v251, v250")
            e(f"buffer_store_dword v250, v244, {sr(S_FL,4)}, 0 offen sc1")
            e("s_mov_b64 exec, -1")
            lab("K1_S1A")
            e(f"s_cmp_eq_u32 s{sT2}, {8*8+7}")
            e("s_cbranch_scc0 K1_S1B")
            e(f"buffer_load_dwordx4 v[246:249], v245, {sr(S_FL,4)}, 0 offen sc1")
            lab("K1_S1B")
        d1, d2 = split(dO)
        group(1, 1, role9, reads(0, 2, role9) + d1)
        e("s_waitcnt lgkmcnt(0)")
        tail = [f"s_cmp_eq_u32 s{sIT}, 7"] + [f"s_cselect_b32 s{d+2}, 0, s{d+2}" for d in (S_X, S_W1, S_W3, S_QKV)]
        def advs():
            adv(sRWA, 2 * WSLOT, NW * WSLOT)
            adv(sRWB, 2 * WSLOT, NW * WSLOT)
            e(f"s_add_u32 s{sRX}, s{sRX}, {XSLOT}")
            e(f"s_cmp_ge_u32 s{sRX}, {XBASE+NX*XSLOT}")
            e(f"s_cselect_b32 s{sRX}, {XBASE}, s{sRX}")
        group(0, 2, role9, reads(1, 3, role9) + side_reads(role9) + d2 + tail + capture(advs) + x_addrs() + chunk_addrs(sRWA, 0, role9))
        INLOOP[0] = False
        if STAMP:
            e("s_memtime s[92:93]")
            e(f"s_add_u32 m0, s{sIT}, 31")
            e("s_waitcnt lgkmcnt(0)")
            e(f"v_writelane_b32 v{STV}, s92, m0")
        e(f"s_add_u32 s{sIT}, s{sIT}, 1")
        e(f"s_cmp_lt_u32 s{sIT}, 9")
        e(f"s_cbranch_scc1 K1_LOOP{nm}")
        e("s_waitcnt lgkmcnt(0)")
        group(1, 3, role9, [])
        stamp(4)
        e(f"v_and_b32 v{T}, 15, v{vLane}")
        e(f"v_lshrrev_b32 v{T+1}, 4, v{vLane}")
        e(f"v_lshlrev_b32 v{T+2}, 6, v{T}")
        e(f"v_lshl_add_u32 v{T+2}, v{T+1}, 4, v{T+2}")
        e(f"s_lshl_b32 s3, s{sG}, 8")
        e(f"s_add_u32 s3, s3, {CS + (0 if role9 else 128)}")
        e(f"v_add_u32 v{T+3}, s3, v{T+2}")
        e(f"s_lshl_b32 s3, s{sG}, 7")
        e(f"s_add_u32 s3, s3, {CS9}")
        e(f"v_add_u32 v{T+4}, s3, v{T+2}")
        e(f"v_and_b32 v{T+5}, 3, v{vLane}")
        e(f"v_lshlrev_b32 v{T+6}, 2, v{vLane}")
        e(f"s_lshl_b32 s3, s{sW}, 8")
        e(f"s_add_u32 s3, s3, {SQ}")
        e(f"v_add_u32 v{T+7}, s3, v{T+6}")
        def diag(dst, src):
            e(f"v_cmp_eq_u32 vcc, 1, v{T+5}")
            e(f"v_cmp_eq_u32 {sr(sMK,2)}, 2, v{T+5}")
            e(f"v_cmp_eq_u32 s[4:5], 3, v{T+5}")
            e(f"v_cndmask_b32 v{dst}, v{src}, v{src+1}, vcc")
            e(f"v_cndmask_b32 v{dst}, v{dst}, v{src+2}, {sr(sMK,2)}")
            e(f"v_cndmask_b32 v{dst}, v{dst}, v{src+3}, s[4:5]")
        diag(T + 8, SQA)
        e(f"ds_write_b32 v{T+7}, v{T+8}")
        if not role9:
            diag(T + 9, HST)
            e(f"s_lshl_b32 s3, s{sG}, 9")
            e(f"s_add_u32 s3, s3, {HSC}")
            e(f"v_add_u32 v{T+10}, s3, v{T+6}")
            e(f"ds_write_b32 v{T+10}, v{T+9}")
            e(f"ds_write_b32 v{T+10}, v{HST} offset:256")
        e(f"v_cmp_gt_u32 vcc, 2, v{T}")
        e("s_and_saveexec_b64 s[4:5], vcc")
        e(f"ds_write_b128 v{T+3}, {vr(CSA,4)}")
        if role9:
            e(f"ds_write_b128 v{T+4}, {vr(CS9A,4)}")
        e("s_mov_b64 exec, s[4:5]")
        e(f"v_and_b32 v{T}, 31, v{vLane}")
        e(f"v_lshlrev_b32 v{T}, 2, v{T}")
        e(f"s_lshl_b32 s3, s{sMT0}, 7")
        e(f"s_lshl_b32 s4, s{sMT1}, 7")
        e(f"v_add_u32 v{T+2}, s3, v{T}")
        e(f"v_add_u32 v{T+3}, s4, v{T}")
        if role9:
            e(f"v_add_u32 v{T+6}, {RS}, v{T+2}")
            e(f"ds_write_b32 v{T+6}, v{ACC9+8}")
        e(f"s_mov_b32 s{sT3}, {1 if role9 else 0}")
        e("s_waitcnt vmcnt(0)")
        if FUSE and role9:
            e(f"s_cmp_eq_u32 s{sW}, 7")
            e("s_cbranch_scc0 K1_EPI")
            e("s_mov_b32 s3, 0")
            lab("K1_S1P")
            e("v_xor_b32 v246, s100, v246")
            e("v_xor_b32 v247, s100, v247")
            e("v_xor_b32 v248, s100, v248")
            e("v_xor_b32 v249, s100, v249")
            e("v_or3_b32 v246, v246, v247, v248")
            e("v_or_b32 v246, v246, v249")
            e("v_cmp_ne_u32 vcc, 0, v246")
            e("s_add_u32 s3, s3, 1")
            e("s_cmp_gt_u32 s3, 0x20000")
            e("s_cbranch_scc1 K1_EPI")
            e("s_cbranch_vccz K1_EPI")
            e("s_sleep 4")
            e(f"buffer_load_dwordx4 v[246:249], v245, {sr(S_FL,4)}, 0 offen sc1")
            e("s_waitcnt vmcnt(0)")
            e("s_branch K1_S1P")
        e("s_branch K1_EPI")

    mainloop(True)
    lab("K1_ROLEH")
    mainloop(False)

    lab("K1_EPI")
    sROLE = sT3
    CA, CB = 80, 96
    C9 = 112
    ST = 120
    RAW = 132
    e("s_waitcnt lgkmcnt(0)")
    e("s_barrier")
    stamp(5)
    if FUSE:
        e(f"s_cmp_lg_u32 s{sW}, 0")
        e("s_cbranch_scc1 K1_FL1")
        e(f"v_mov_b32 v{T+13}, {TAGL}")
        e(f"ds_read_b32 v{T+12}, v{T+13}")
        e("s_waitcnt lgkmcnt(0)")
        e(f"v_readfirstlane_b32 s100, v{T+12}")
        lab("K1_FL1")
        p2_setup(sW, vLane)
        p2_dma(PD[0], S_W2F)
    e(f"v_add_u32 v{T+4}, {RS}, v{T+2}")
    e(f"v_add_u32 v{T+5}, {RS}, v{T+3}")
    e(f"ds_read_b32 v{RAW}, v{T+4}")
    e(f"ds_read_b32 v{RAW+1}, v{T+5}")
    e(f"v_and_b32 v{T+6}, 15, v{vLane}")
    e(f"v_lshrrev_b32 v{T+7}, 2, v{T+6}")
    e(f"v_lshl_add_u32 v{T+6}, v{T+7}, 4, v{T+6}")
    e(f"v_lshlrev_b32 v{T+6}, 2, v{T+6}")
    e(f"v_bfe_u32 v{T+7}, v{vLane}, 4, 1")
    e(f"v_lshl_add_u32 v{T+7}, v{T+7}, 8, v{T+6}")
    e(f"s_lshl_b32 s3, s{sMT0}, 9")
    e(f"s_add_u32 s3, s3, {SQ}")
    e(f"s_lshl_b32 s4, s{sMT1}, 9")
    e(f"s_add_u32 s4, s4, {SQ}")
    e(f"v_add_u32 v{T+8}, s3, v{T+7}")
    e(f"v_add_u32 v{T+7}, s4, v{T+7}")
    e(f"ds_read_b32 v{RAW+2}, v{T+8}")
    e(f"ds_read_b32 v{RAW+3}, v{T+7}")
    e(f"s_lshl_b32 s3, s{sG}, 9")
    e(f"s_add_u32 s3, s3, {HSC}")
    e(f"v_add_u32 v{T+6}, s3, v{T+6}")
    e(f"v_and_b32 v{T+8}, 15, v{vLane}")
    e(f"v_lshlrev_b32 v{T+8}, 2, v{T+8}")
    e(f"v_add_u32 v{T+8}, s3, v{T+8}")
    e(f"ds_read_b32 v{RAW+4}, v{T+8} offset:256")
    e(f"ds_read_b32 v{RAW+5}, v{T+6}")
    e(f"v_lshrrev_b32 v{T+9}, 5, v{vLane}")
    e(f"v_lshlrev_b32 v{T+10}, 4, v{T+9}")
    e(f"s_lshl_b32 s3, s{sG}, 8")
    e(f"s_add_u32 s3, s3, {CS}")
    e(f"v_add_u32 v{T+11}, s3, v{T+10}")
    for q in range(4):
        e(f"ds_read_b128 {vr(CA+4*q,4)}, v{T+11} offset:{32*q}")
    for q in range(4):
        e(f"ds_read_b128 {vr(CB+4*q,4)}, v{T+11} offset:{128+32*q}")
    e("s_waitcnt lgkmcnt(8)")
    e(f"s_cmp_eq_u32 s{sROLE}, 1")
    e("s_cbranch_scc0 K1_E_CH")
    e(f"v_add_u32 v{T+12}, {CS9}, v{T+10}")
    for p in range(4):
        e(f"ds_read_b128 {vr(vTMP+8+8*p,4)}, v{T+12} offset:{128*p}")
        e(f"ds_read_b128 {vr(vTMP+12+8*p,4)}, v{T+12} offset:{128*p+32}")
    e("s_waitcnt lgkmcnt(0)")
    for i in range(8):
        e(f"v_add_f32 v{C9+i}, v{vTMP+8+i}, v{vTMP+16+i}")
        e(f"v_add_f32 v{vTMP+24+i}, v{vTMP+24+i}, v{vTMP+32+i}")
    for i in range(8):
        e(f"v_add_f32 v{C9+i}, v{C9+i}, v{vTMP+24+i}")
    e("s_branch K1_E_CD")
    lab("K1_E_CH")
    e(f"v_lshrrev_b32 v{T+13}, 4, v{vLane}")
    e(f"v_lshlrev_b32 v{T+13}, 4, v{T+13}")
    e(f"s_lshl_b32 s3, s{sG}, 6")
    e(f"s_add_u32 s3, s3, {CS+128}")
    e(f"v_add_u32 v{T+13}, s3, v{T+13}")
    e(f"ds_read_b128 {vr(C9,4)}, v{T+13}")
    lab("K1_E_CD")
    def stats(rs, sq, o):
        t = vTMP
        e(f"v_mul_f32 v{t}, {f2u(1/512):#x}, v{rs}")
        e(f"v_mul_f32 v{t+1}, {f2u(1/512):#x}, v{sq}")
        e(f"v_fma_f32 v{t+1}, -v{t}, v{t}, v{t+1}")
        e(f"v_max_f32 v{t+1}, 0, v{t+1}")
        e(f"v_cvt_pk_bf16_f32 v{t+2}, v{t}, v{t+1}")
        e(f"v_lshlrev_b32 v{t}, 16, v{t+2}")
        e(f"v_and_b32 v{t+1}, 0xffff0000, v{t+2}")
        e(f"v_add_f32 v{t+1}, {f2u(1e-5):#x}, v{t+1}")
        e(f"v_cvt_pk_bf16_f32 v{t+2}, v{t+1}, v{t+1}")
        e(f"v_and_b32 v{t+1}, 0xffff0000, v{t+2}")
        e(f"v_sqrt_f32 v{t+1}, v{t+1}")
        e(f"v_xor_b32 v{o+1}, 0x80000000, v{t}")
        e(f"v_cvt_pk_bf16_f32 v{t+2}, v{t+1}, v{t+1}")
        e(f"v_and_b32 v{t+1}, 0xffff0000, v{t+2}")
        e(f"v_rcp_f32 v{o}, v{t+1}")
        e(f"v_mul_f32 v{o+3}, v{t+1}, v{t+1}")
        e(f"v_mul_f32 v{o+2}, {f2u(-LOG2E):#x}, v{o}")
    stats(RAW, RAW + 2, ST)
    stats(RAW + 1, RAW + 3, ST + 4)
    e(f"v_and_b32 v{T}, 31, v{vLane}")
    e(f"v_mul_u32_u24 v{T}, {SPITCH}, v{T}")
    e(f"v_lshl_add_u32 v{T+1}, v{T+9}, 3, v{T}")
    e(f"v_lshl_add_u32 v{T+2}, v{T+9}, 4, v{T}")
    e(f"s_mul_i32 s3, s{sMT0}, {32*SPITCH}")
    e(f"s_add_u32 s3, s3, {STG+16*SPITCH}")
    e(f"s_mul_i32 s4, s{sMT1}, {32*SPITCH}")
    e(f"s_add_u32 s4, s4, {STG+16*SPITCH}")
    e(f"v_add_u32 v{T+3}, s3, v{T+1}")
    e(f"v_add_u32 v{T+4}, s4, v{T+1}")
    e(f"v_add_u32 v{T+5}, s3, v{T+2}")
    e(f"v_add_u32 v{T+6}, s4, v{T+2}")
    e(f"v_lshlrev_b32 v{T+7}, 4, v{vLane}")
    e(f"s_lshl_b32 s5, s{sRB}, 2")
    e(f"s_add_u32 s{sT1}, s5, s{sMT0}")
    e(f"s_add_u32 s{sT2}, s5, s{sMT1}")
    e("s_waitcnt lgkmcnt(0)")
    def bc(r):
        return (vr(r & ~1, 2), r & 1)
    def pkfma(d, a, b, c, bsel=None, csel=None):
        A = vr(a, 2)
        B, bs = (vr(b, 2), None) if bsel is None else bc(b)
        Cc, cs = (vr(c, 2), None) if csel is None else bc(c)
        lo = [0, bs or 0, cs or 0]; hi = [1, 1 if bs is None else bs, 1 if cs is None else cs]
        e(f"v_pk_fma_f32 {vr(d,2)}, {A}, {B}, {Cc} op_sel:[{lo[0]},{lo[1]},{lo[2]}] op_sel_hi:[{hi[0]},{hi[1]},{hi[2]}]")
    def pkmul(d, a, b, bsel=None):
        B, bs = (vr(b, 2), None) if bsel is None else bc(b)
        e(f"v_pk_mul_f32 {vr(d,2)}, {vr(a,2)}, {B} op_sel:[0,{bs or 0}] op_sel_hi:[1,{1 if bs is None else bs}]")
    def ln16(R, C, st, n, dst):
        for i in range(0, n, 2): pkfma(dst + i, C + i, st + 1, R + i, bsel=1)
        for i in range(0, n, 2): pkmul(dst + i, dst + i, st, bsel=1)
    def tile_qk(R, C, st, addr, sec):
        t = vTMP
        ln16(R, C, st, 16, t)
        for q in range(4):
            e(f"v_cvt_pk_bf16_f32 v{t+16+2*q}, v{t+4*q}, v{t+4*q+1}")
            e(f"v_cvt_pk_bf16_f32 v{t+17+2*q}, v{t+4*q+2}, v{t+4*q+3}")
        for q in range(4):
            e(f"ds_write_b64 v{addr}, {vr(t+16+2*q,2)} offset:{sec*64+16*q}")
    def tile_v(R, C, st, addr):
        t = vTMP + 24
        ln16(R, C, st, 16, t)
        for q in range(4):
            e(f"ds_write_b128 v{addr}, {vr(t+4*q,4)} offset:{128+32*q}")
    def silu(R, C, st, n, goff, uoff, t):
        for i in range(0, n, 2): pkfma(t + i, C + goff + i, st + 1, R + goff + i, bsel=1)
        for i in range(0, n, 2): pkmul(t + n + i, t + i, st + 2, bsel=1)
        for i in range(n):
            e(f"v_exp_f32 v{t+n+i}, v{t+n+i}")
        for i in range(0, n, 2): pkfma(t + 2*n + i, C + uoff + i, st + 1, R + uoff + i, bsel=1)
        for i in range(0, n, 2): pkfma(t + n + i, t + n + i, st + 3, st + 3, bsel=1, csel=1)
        for i in range(n):
            e(f"v_rcp_f32 v{t+n+i}, v{t+n+i}")
        for i in range(0, n, 2): pkmul(t + i, t + i, t + 2*n + i)
        for i in range(0, n, 2): pkmul(t + i, t + i, t + n + i)
        for i in range(n // 2):
            e(f"v_cvt_pk_bf16_f32 v{t+3*n+i}, v{t+2*i}, v{t+2*i+1}")
    def tile_ffn(R, C, st, smt, tau_s, tbase):
        silu(R, C, st, 8, 0, 8, tbase)
        e(f"s_add_u32 s3, s{tau_s}, s{smt}")
        e("s_lshl_b32 s3, s3, 10")
        e(f"buffer_store_dwordx4 {vr(tbase+24,4)}, v{T+7}, {sr(S_HF,4)}, s3 offen{SC}")
    e(f"s_lshl_b32 s6, s{sG}, 1")
    e(f"s_add_u32 s6, s6, s{sTF}")
    e("s_add_u32 s6, s6, 29")
    e("s_lshl_b32 s6, s6, 6")
    e("s_add_u32 s7, s6, 64")
    e(f"s_cmp_eq_u32 s{sROLE}, 1")
    e("s_cbranch_scc1 K1_E_T")
    stats(RAW + 4, RAW + 5, ST + 8)
    t = vTMP + 40
    ln16(ACC9, C9, ST + 8, 4, t)
    e(f"v_and_b32 v{T}, 15, v{vLane}")
    e(f"v_mul_u32_u24 v{T}, {SPITCH}, v{T}")
    e(f"v_lshrrev_b32 v{T+1}, 4, v{vLane}")
    e(f"s_cmp_lt_u32 s{sG}, 2")
    e("s_cbranch_scc0 K1_E_HV")
    e(f"v_cvt_pk_bf16_f32 v{t+4}, v{t}, v{t+1}")
    e(f"v_cvt_pk_bf16_f32 v{t+5}, v{t+2}, v{t+3}")
    e(f"v_lshl_add_u32 v{T}, v{T+1}, 3, v{T}")
    e(f"s_lshl_b32 s3, s{sG}, 5")
    e(f"s_add_u32 s3, s3, {STG+64}")
    e(f"v_add_u32 v{T}, s3, v{T}")
    e(f"ds_write_b64 v{T}, {vr(t+4,2)}")
    e("s_branch K1_E_T")
    lab("K1_E_HV")
    e(f"v_lshl_add_u32 v{T}, v{T+1}, 4, v{T}")
    e(f"s_lshl_b32 s3, s{sG}, 6")
    e(f"s_add_u32 s3, s3, {STG+128-128}")
    e(f"v_add_u32 v{T}, s3, v{T}")
    e(f"ds_write_b128 v{T}, {vr(t,4)}")
    lab("K1_E_T")
    if FUSE: p2_dma(PD[1], S_W2F)
    e(f"s_cmp_eq_u32 s{sG}, 0")
    e("s_cbranch_scc1 K1_E_G0")
    e(f"s_cmp_eq_u32 s{sG}, 1")
    e("s_cbranch_scc1 K1_E_G1")
    tile_ffn(ACC, CA, ST, sT1, 6, vTMP)
    e("s_waitcnt lgkmcnt(0)")
    e("s_barrier")
    tile_ffn(ACC + 16, CA, ST + 4, sT2, 6, vTMP - 54)
    e("s_branch K1_E_B")
    lab("K1_E_G0")
    tile_qk(ACC, CA, ST, T + 3, 0)
    tile_qk(ACC + 16, CA, ST + 4, T + 4, 0)
    tile_qk(ACC + 32, CB, ST, T + 3, 1)
    tile_qk(ACC + 48, CB, ST + 4, T + 4, 1)
    e("s_waitcnt lgkmcnt(0)")
    e("s_barrier")
    e("s_branch K1_E_C")
    lab("K1_E_G1")
    tile_v(ACC, CA, ST, T + 5)
    e("s_nop 1")
    tile_v(ACC + 16, CA, ST + 4, T + 6)
    e("s_waitcnt lgkmcnt(0)")
    e("s_barrier")
    lab("K1_E_B")
    tile_ffn(ACC + 32, CB, ST, sT1, 7, vTMP)
    tile_ffn(ACC + 48, CB, ST + 4, sT2, 7, vTMP - 54)
    lab("K1_E_C")
    if FUSE: p2_dma(PD[2], S_W2F)
    stamp(6)
    e(f"s_and_b32 s3, s{sROLE}, s{sHAS}")
    e("s_cbranch_scc0 K1_E_D")
    silu(ACC9, C9, ST, 4, 0, 4, vTMP + 32)
    e(f"s_add_u32 s3, s{sTH}, 32")
    e("s_lshl_b32 s3, s3, 6")
    e(f"s_add_u32 s3, s3, s{sT1}")
    e("s_lshl_b32 s3, s3, 10")
    e(f"s_lshl_b32 s4, s{sHSEL}, 3")
    e("s_add_u32 s3, s3, s4")
    e(f"buffer_store_dwordx2 {vr(vTMP+44,2)}, v{T+7}, {sr(S_HF,4)}, s3 offen{SC}")
    lab("K1_E_D")
    if FUSE: p2_dma(8, S_W2F)
    sU, sN = sRWA, sRWB
    e(f"s_lshl_b32 s3, s{sW}, 2")
    e(f"s_lshr_b32 s{sU}, {os.environ.get('AU', '0x3527640')}, s3")
    e(f"s_and_b32 s{sU}, s{sU}, 7")
    e(f"s_lshr_b32 s{sN}, {os.environ.get('AN', '0x1111112')}, s3")
    e(f"s_and_b32 s{sN}, s{sN}, 3")
    e("s_cbranch_scc0 K1_ATT_END")
    lab("K1_ATT")
    Q = 0; KK = 4; VV = 36; P = 100; O = 112; A2 = 120
    e(f"v_lshrrev_b32 v{T+8}, 4, v{T+7}")
    e(f"v_and_b32 v{T}, 31, v{T+8}")
    e(f"v_lshrrev_b32 v{T+1}, 5, v{T+8}")
    e(f"s_lshr_b32 s3, s{sU}, 1")
    e(f"s_and_b32 s4, s{sU}, 1")
    e(f"v_mul_u32_u24 v{T+2}, {SPITCH}, v{T}")
    e(f"s_mul_i32 s5, s3, {32*SPITCH}")
    e(f"s_add_u32 s5, s5, {STG+2*SPITCH}")
    e("s_lshl_b32 s6, s4, 5")
    e("s_add_u32 s6, s6, s5")
    e(f"v_lshl_add_u32 v{T+3}, v{T+1}, 4, v{T+2}")
    e(f"v_add_u32 v{T+3}, s6, v{T+3}")
    e("s_lshl_b32 s6, s4, 6")
    e("s_add_u32 s6, s6, s5")
    e(f"v_lshl_add_u32 v{T+4}, v{T+1}, 5, v{T+2}")
    e(f"v_add_u32 v{T+4}, s6, v{T+4}")
    e("s_lshl_b32 s5, s3, 5")
    e(f"s_add_u32 s5, s5, s{sM0}")
    e(f"v_add_u32 v{T+5}, s5, v{T}")
    e(f"v_lshlrev_b32 v{T+6}, 1, v{T+1}")
    e(f"v_sub_u32 v{T+5}, v{T+5}, v{T+6}")
    e(f"s_lshl_b32 s5, s{sCG}, 1")
    e("s_add_u32 s5, s5, s4")
    e("s_lshl_b32 s5, s5, 6")
    e(f"s_lshl_b32 s6, s{sRB}, 2")
    e("s_add_u32 s5, s5, s6")
    e("s_add_u32 s5, s5, s3")
    e(f"s_lshl_b32 s{sT1}, s5, 10")
    e(f"ds_read_b128 {vr(Q,4)}, v{T+3} offset:{14*SPITCH}")
    for w in range(8):
        e(f"ds_read_b128 {vr(KK+4*w,4)}, v{T+3} offset:{(14-2*w)*SPITCH+64}")
    for w in range(3):
        e(f"ds_read_b128 {vr(VV+8*w,4)}, v{T+4} offset:{(14-2*w)*SPITCH+128}")
        e(f"ds_read_b128 {vr(VV+8*w+4,4)}, v{T+4} offset:{(14-2*w)*SPITCH+144}")
    for w in range(8):
        e(f"s_waitcnt lgkmcnt({min(15, 13-w)})")
        e(f"v_dot2_f32_bf16 v{P+w}, v{Q}, v{KK+4*w}, 0")
        for i in range(1, 4):
            e(f"v_dot2_f32_bf16 v{P+w}, v{Q+i}, v{KK+4*w+i}, v{P+w}")
    for w in range(3, 8):
        e(f"ds_read_b128 {vr(VV+8*w,4)}, v{T+4} offset:{(14-2*w)*SPITCH+128}")
        e(f"ds_read_b128 {vr(VV+8*w+4,4)}, v{T+4} offset:{(14-2*w)*SPITCH+144}")
    e("s_nop 2")
    for i in range(4):
        e(f"v_permlane32_swap_b32 v{P+2*i}, v{P+2*i+1}")
    e(f"v_mov_b32 v{T+9}, {f2u(-1e9):#x}")
    for i in range(4):
        e(f"v_add_f32 v{P+2*i}, v{P+2*i}, v{P+2*i+1}")
    for i in range(4):
        e(f"v_cmp_le_i32 vcc, {4*i}, v{T+5}")
        e(f"v_mul_f32 v{P+2*i}, 0.25, v{P+2*i}") if False else e(f"v_mul_f32 v{P+2*i}, {f2u(0.25):#x}, v{P+2*i}")
        e("s_nop 0")
        e(f"v_cndmask_b32 v{P+2*i}, v{T+9}, v{P+2*i}, vcc")
    e(f"v_max3_f32 v{P+1}, v{P}, v{P+2}, v{P+4}")
    e(f"v_max_f32 v{P+1}, v{P+1}, v{P+6}")
    e(f"v_mov_b32 v{P+3}, v{P+1}")
    e("s_nop 1")
    e(f"v_permlane32_swap_b32 v{P+1}, v{P+3}")
    e("s_nop 0")
    e(f"v_max_f32 v{P+1}, v{P+1}, v{P+3}")
    for i in range(4):
        e(f"v_sub_f32 v{P+2*i}, v{P+2*i}, v{P+1}")
    for i in range(4):
        e(f"v_mul_f32 v{P+2*i}, {f2u(LOG2E):#x}, v{P+2*i}")
    for i in range(4):
        e(f"v_exp_f32 v{P+2*i}, v{P+2*i}")
    e("s_nop 0")
    e(f"v_add_f32 v{P+1}, v{P}, v{P+2}")
    e(f"v_add_f32 v{P+3}, v{P+4}, v{P+6}")
    e(f"v_add_f32 v{P+1}, v{P+1}, v{P+3}")
    e(f"v_mov_b32 v{P+3}, v{P+1}")
    e("s_nop 1")
    e(f"v_permlane32_swap_b32 v{P+1}, v{P+3}")
    e("s_nop 0")
    e(f"v_add_f32 v{P+8}, v{P+1}, v{P+3}")
    e(f"v_rcp_f32 v{P+8}, v{P+8}")
    e("s_nop 0")
    for i in range(4):
        e(f"v_mul_f32 v{P+2*i}, v{P+2*i}, v{P+8}")
    for i in range(4):
        e(f"v_mov_b32 v{P+2*i+1}, v{P+2*i}")
    e("s_nop 1")
    for i in range(4):
        e(f"v_permlane32_swap_b32 v{P+2*i}, v{P+2*i+1}")
    e("s_nop 0")
    for w in range(8):
        e(f"s_waitcnt lgkmcnt({14-2*w})")
        for d in range(0, 8, 2):
            if w == 0: pkmul(O + d, VV + d, P, bsel=1)
            else: pkfma(O + d, VV + 8*w + d, P + w, O + d, bsel=1)
    for i in range(4):
        e(f"v_cvt_pk_bf16_f32 v{A2+i}, v{O+2*i}, v{O+2*i+1}")
    e(f"buffer_store_dwordx4 {vr(A2,4)}, v{T+7}, {sr(S_HF,4)}, s{sT1} offen{SC}")
    e(f"s_add_u32 s{sU}, s{sU}, 1")
    e(f"s_sub_u32 s{sN}, s{sN}, 1")
    e(f"s_cmp_lg_u32 s{sN}, 0")
    e("s_cbranch_scc1 K1_ATT")
    lab("K1_ATT_END")
    if os.environ.get("TWICE"):
        e(f"s_cmp_eq_u32 s{sIT}, 77")
        e("s_cbranch_scc1 K1_TW")
        e(f"s_mov_b32 s{sIT}, 77")
        stamp(7)
        e(f"v_lshrrev_b32 v{vLane}, 4, v{T+7}")
        e(f"v_and_b32 v{T}, 31, v{vLane}")
        e(f"v_lshlrev_b32 v{T}, 2, v{T}")
        e(f"s_lshl_b32 s3, s{sMT0}, 7")
        e(f"s_lshl_b32 s4, s{sMT1}, 7")
        e(f"v_add_u32 v{T+2}, s3, v{T}")
        e(f"v_add_u32 v{T+3}, s4, v{T}")
        e("s_waitcnt vmcnt(0)")
        e("s_branch K1_EPI")
        lab("K1_TW")
    stamp(8)
    if STAMP and not FUSE: e("s_waitcnt vmcnt(0)")
    stamp(9)
    stamp_flush(50, 0x1000000, sW)
    if FUSE:
        phase2(sW, sRB, sCG, S_HF, S_W2F, S_FL, T + 7)
    lab("K1_END")
    e("s_endpgm")

def kernel2():
    S_HF, S_W2F, S_X, S_O = 8, 12, 16, 20
    sW, sMB, sNB, sKH, sKW = 30, 31, 32, 33, 34
    ACC = 0
    vLane, vH0, vH1, vW0, vW1, vXO = 64, 65, 66, 67, 68, 69
    XR = 72
    T = 80
    RD = 96
    NK = 30; D = int(os.environ.get('K2D', '15')); ROT = int(os.environ.get('K2ROT', '0'))
    fr = (lambda b, n: vr(128 + b, n)) if FUSE else ar
    if FUSE:
        stamp(0)
        e(f"v_mbcnt_lo_u32_b32 v{vLane}, -1, 0")
        e(f"v_mbcnt_hi_u32_b32 v{vLane}, -1, v{vLane}")
        e("s_and_b32 s3, s2, 7")
    else:
        L.append(".globl k2_kernel\n.p2align 8\n.type k2_kernel,@function\nk2_kernel:")
        e("s_cmp_ge_u32 s2, 256")
        e("s_cbranch_scc1 K2_END")
        e("s_load_dwordx2 s[36:37], s[0:1], 0")
        e("s_load_dwordx2 s[38:39], s[0:1], 56")
        e("s_load_dwordx2 s[40:41], s[0:1], 72")
        stamp(0)
        e(f"v_and_b32 v{vLane}, 63, v0")
        e(f"v_lshrrev_b32 v{T}, 6, v0")
        e("s_and_b32 s3, s2, 7")
        e(f"v_readfirstlane_b32 s{sW}, v{T}")
    e("s_lshr_b32 s4, s2, 3")
    e("s_and_b32 s5, s3, 1")
    e("s_lshl_b32 s5, s5, 1")
    e("s_bfe_u32 s6, s3, 0x10001")
    e("s_add_u32 s5, s5, s6")
    e("s_lshl_b32 s5, s5, 3")
    e("s_and_b32 s6, s4, 7")
    e(f"s_add_u32 s{sMB}, s5, s6")
    e("s_lshr_b32 s5, s3, 2")
    e("s_lshl_b32 s5, s5, 2")
    e("s_lshr_b32 s6, s4, 3")
    e(f"s_add_u32 s{sNB}, s5, s6")
    e(f"v_lshlrev_b32 v{T}, 4, v{vLane}")
    e(f"s_lshr_b32 s3, s{sW}, 1")
    e(f"s_and_b32 s4, s{sW}, 1")
    e(f"s_lshl_b32 s5, s{sMB}, 1")
    e("s_add_u32 s5, s5, s3")
    e("s_lshl_b32 s6, s5, 10")
    e(f"v_add_u32 v{vH0}, s6, v{T}")
    e("s_xor_b32 s6, s6, 1024")
    e(f"v_add_u32 v{vH1}, s6, v{T}")
    e(f"s_lshl_b32 s7, s{sNB}, 1")
    e("s_add_u32 s7, s7, s4")
    e("s_lshl_b32 s6, s7, 10")
    e(f"v_add_u32 v{vW0}, s6, v{T}")
    e("s_xor_b32 s6, s6, 1024")
    e(f"v_add_u32 v{vW1}, s6, v{T}")
    e(f"v_and_b32 v{T+1}, 31, v{vLane}")
    e(f"v_lshrrev_b32 v{T+2}, 5, v{vLane}")
    e(f"v_lshlrev_b32 v{T+1}, 10, v{T+1}")
    e(f"v_lshl_add_u32 v{T+1}, v{T+2}, 3, v{T+1}")
    e("s_lshl_b32 s5, s5, 15")
    e("s_lshl_b32 s7, s7, 6")
    e("s_add_u32 s5, s5, s7")
    e(f"v_add_u32 v{vXO}, s5, v{T+1}")
    e("s_lshr_b32 s4, s2, 3")
    e("s_lshr_b32 s5, s4, 3")
    e("s_lshl_b32 s5, s5, 1")
    e("s_add_u32 s4, s4, s5")
    e("s_and_b32 s4, s4, 7")
    e(f"s_mul_i32 s4, s4, {4*ROT}")
    e(f"s_add_u32 s4, s4, s{sW}")
    e(f"s_lshl_b32 s{sKH}, s4, 16")
    e(f"s_lshl_b32 s{sKW}, s4, 14")
    LEAD = int(os.environ.get("K2L", "12")); P2 = int(os.environ.get("K2P", "0")); PG = int(os.environ.get("K2G", "4"))
    sGJ, sPH, sPW, vPF = 42, 43, 44, 70
    if P2:
        e("s_lshr_b32 s4, s2, 3")
        e(f"s_lshl_b32 s5, s4, 2")
        e(f"s_add_u32 s5, s5, s{sW}")
        e(f"s_and_b32 s6, s{sMB}, 24")
        e("s_lshl_b32 s6, s6, 11")
        e(f"s_lshl_b32 s{sPH}, s5, 16")
        e(f"s_add_u32 s{sPH}, s{sPH}, s6")
        e(f"s_and_b32 s6, s{sNB}, 4")
        e("s_lshl_b32 s6, s6, 11")
        e(f"s_lshl_b32 s{sPW}, s5, 14")
        e(f"s_add_u32 s{sPW}, s{sPW}, s6")
        e(f"s_max_u32 s5, s4, {LEAD}")
        e(f"s_sub_u32 s5, s5, {LEAD}")
        e(f"s_lshr_b32 s{sGJ}, s5, {PG.bit_length()-1}")
        e(f"s_cmp_lt_u32 s4, {D}")
        e(f"s_cselect_b32 s{sGJ}, 99, s{sGJ}")
        e(f"v_lshlrev_b32 v{vPF}, 7, v{vLane}")
    def prefetch(c):
        if not P2: return
        e(f"s_cmp_eq_u32 s{sGJ}, {c}")
        e(f"s_cbranch_scc0 K2_PF{c}")
        e(f"buffer_load_dword v{vPF+1}, v{vPF}, {sr(S_HF,4)}, s{sPH} offen")
        e(f"s_add_u32 s{sPH}, s{sPH}, 8192")
        e(f"buffer_load_dword v{vPF+1}, v{vPF}, {sr(S_W2F,4)}, s{sPW} offen")
        e(f"buffer_load_dword v{vPF+1}, v{vPF}, {sr(S_HF,4)}, s{sPH} offen")
        lab(f"K2_PF{c}")
    e("s_waitcnt lgkmcnt(0)")
    e(f"s_mov_b32 s{S_HF}, s40")
    e(f"s_and_b32 s{S_HF+1}, s41, 0xffff")
    e(f"s_mov_b32 s{S_HF+2}, {HF_BYTES}")
    e(f"s_mov_b32 s{S_HF+3}, 0x00020000")
    e(f"s_add_u32 s{S_W2F}, s40, {W2F_OFF}")
    e(f"s_addc_u32 s{S_W2F+1}, s41, 0")
    e(f"s_and_b32 s{S_W2F+1}, s{S_W2F+1}, 0xffff")
    e(f"s_mov_b32 s{S_W2F+2}, {W2F_BYTES}")
    e(f"s_mov_b32 s{S_W2F+3}, 0x00020000")
    srd(S_X, 36, 2048 * 1024)
    srd(S_O, 38, 2048 * 1024)
    def loads(i):
        b = 16 * (i % D)
        e(f"buffer_load_dwordx4 {fr(b,4)}, v{vW0}, {sr(S_W2F,4)}, s{sKW} offen{SC}")
        e(f"buffer_load_dwordx4 {fr(b+4,4)}, v{vH0}, {sr(S_HF,4)}, s{sKH} offen{SC}")
        e(f"buffer_load_dwordx4 {fr(b+8,4)}, v{vH1}, {sr(S_HF,4)}, s{sKH} offen{SC}")
        e(f"buffer_load_dwordx4 {fr(b+12,4)}, v{vW1}, {sr(S_W2F,4)}, s{sKW} offen{SC}")
        e(f"s_add_u32 s{sKW}, s{sKW}, {4*16384}")
        if ROT:
            e(f"s_sub_u32 s3, s{sKW}, {120*16384}")
            e(f"s_cmp_ge_u32 s{sKW}, {120*16384}")
            e(f"s_cselect_b32 s{sKW}, s3, s{sKW}")
        e(f"s_lshl_b32 s{sKH}, s{sKW}, 2")
    for q in range(4):
        e(f"buffer_load_dwordx2 {vr(XR+2*q,2)}, v{vXO}, {sr(S_X,4)}, 0 offen offset:{16*q}")
    if FUSE:
        e(f"s_cmp_lg_u32 s{sW}, 0")
        e("s_cbranch_scc1 K2_GO")
        e(f"v_lshlrev_b32 v{T+1}, 2, v{vLane}")
        e(f"v_and_b32 v{T+1}, 63, v{T+1}")
        e(f"s_lshr_b32 s4, s{sMB}, 1")
        e("s_lshl_b32 s4, s4, 7")
        e("s_add_u32 s4, s4, 4096")
        e("s_mov_b32 s3, 0")
        lab("K2_POLL")
        e(f"buffer_load_dword v{T+3}, v{T+1}, s[44:47], s4 offen sc1")
        e("s_add_u32 s3, s3, 1")
        e("s_waitcnt vmcnt(0)")
        e(f"v_cmp_ne_u32 vcc, s100, v{T+3}")
        e("s_cmp_gt_u32 s3, 0x20000")
        e("s_cbranch_scc1 K2_GO")
        e("s_cbranch_vccz K2_GO")
        e("s_sleep 1")
        e("s_branch K2_POLL")
        lab("K2_GO")
        e("s_barrier")
    PPOS = int(os.environ.get("K2Q", "2"))
    for i in range(D):
        loads(i)
        if i == PPOS - 1: prefetch(0)
    issued = D
    stamp(1)
    for i in range(NK):
        b = 16 * (i % D)
        out = 4 * (issued - i - 1)
        if i == NK - 6:
            pass
        e(f"s_waitcnt vmcnt({min(63, out + 2)})")
        c = (lambda r: "0") if i == 0 else (lambda r: vr(r, 16))
        e(f"v_mfma_f32_32x32x16_bf16 {vr(ACC,16)}, {fr(b,4)}, {fr(b+4,4)}, {c(ACC)}")
        e(f"s_waitcnt vmcnt({min(63, out + 1)})")
        e(f"v_mfma_f32_32x32x16_bf16 {vr(ACC+32,16)}, {fr(b,4)}, {fr(b+8,4)}, {c(ACC+32)}")
        e(f"s_waitcnt vmcnt({out})")
        e(f"v_mfma_f32_32x32x16_bf16 {vr(ACC+16,16)}, {fr(b+12,4)}, {fr(b+4,4)}, {c(ACC+16)}")
        e(f"v_mfma_f32_32x32x16_bf16 {vr(ACC+48,16)}, {fr(b+12,4)}, {fr(b+8,4)}, {c(ACC+48)}")
        if i in (0, 7, 14, 22): stamp(2 + (0, 7, 14, 22).index(i))
        if issued < NK:
            loads(issued); issued += 1
        if i % PG == PG - 1 and (i + 1) // PG <= (31 - LEAD) // PG: prefetch((i + 1) // PG)
    stamp(6)
    for a in range(1, 4):
        e(f"s_xor_b32 s3, s{sW}, {a}")
        e("s_mul_i32 s3, s3, 12288")
        e(f"s_add_u32 s3, s3, {(a-1)*4096}")
        e(f"v_add_u32 v{T+a}, s3, v{T}")
    e(f"s_mul_i32 s3, s{sW}, 12288")
    e(f"v_add_u32 v{T+4}, s3, v{T}")
    e("s_nop 7")
    for a in (2, 1, 3):
        for q in range(4):
            e(f"ds_write_b128 v{T+a}, {vr(ACC+16*a+4*q,4)} offset:{1024*q}")
    e("s_waitcnt lgkmcnt(0)")
    e("s_barrier")
    for s in range(3):
        for q in range(4):
            e(f"ds_read_b128 {vr(RD+16*s+4*q,4)}, v{T+4} offset:{4096*s+1024*q}")
    e("s_waitcnt vmcnt(0)")
    for q in range(4):
        for i in range(2):
            e(f"v_lshlrev_b32 v{T+8}, 16, v{XR+2*q+i}")
            e(f"v_and_b32 v{T+9}, 0xffff0000, v{XR+2*q+i}")
            e(f"v_add_f32 v{ACC+4*q+2*i}, v{ACC+4*q+2*i}, v{T+8}")
            e(f"v_add_f32 v{ACC+4*q+2*i+1}, v{ACC+4*q+2*i+1}, v{T+9}")
    for s in range(3):
        e(f"s_waitcnt lgkmcnt({8-4*s})")
        for r in range(16):
            e(f"v_add_f32 v{ACC+r}, v{ACC+r}, v{RD+16*s+r}")
    for q in range(4):
        e(f"v_cvt_pk_bf16_f32 v{XR+2*q}, v{ACC+4*q}, v{ACC+4*q+1}")
        e(f"v_cvt_pk_bf16_f32 v{XR+2*q+1}, v{ACC+4*q+2}, v{ACC+4*q+3}")
    for q in range(4):
        e(f"buffer_store_dwordx2 {vr(XR+2*q,2)}, v{vXO}, {sr(S_O,4)}, 0 offen offset:{16*q}")
    stamp(7)
    if STAMP: e("s_waitcnt vmcnt(0)")
    stamp(8)
    stamp_flush(40, 0x1100000, sW)
    if not FUSE:
        lab("K2_END")
        e("s_endpgm")


NL = int(os.environ.get("P2NL", "6")); LB2 = 40960
P2K = [0]
def p2_setup(sW, vLane):
    sMB, sNB, sKH, sKW = 16, 17, 18, 19
    vW = 254
    e(f"v_lshlrev_b32 v{vW}, 4, v{vLane}")
    e("s_and_b32 s3, s2, 7")
    e("s_lshr_b32 s4, s2, 3")
    if os.environ.get("P2MAP", "1") == "1":
        e("s_lshl_b32 s5, s3, 2")
        e("s_and_b32 s6, s4, 3")
        e(f"s_add_u32 s{sMB}, s5, s6")
        e(f"s_lshr_b32 s{sNB}, s4, 2")
    else:
        e("s_and_b32 s5, s3, 1")
        e("s_lshl_b32 s5, s5, 1")
        e("s_bfe_u32 s6, s3, 0x10001")
        e("s_add_u32 s5, s5, s6")
        e("s_lshl_b32 s5, s5, 3")
        e("s_and_b32 s6, s4, 7")
        e(f"s_add_u32 s{sMB}, s5, s6")
        e("s_lshr_b32 s5, s3, 2")
        e("s_lshl_b32 s5, s5, 2")
        e("s_lshr_b32 s6, s4, 3")
        e(f"s_add_u32 s{sNB}, s5, s6")
    e(f"s_lshl_b32 s6, s{sNB}, 11")
    e(f"v_add_u32 v{vW}, s6, v{vW}")
    e(f"s_lshl_b32 s{sKW}, s{sW}, 14")
    e(f"s_mul_i32 s{sKH}, s{sW}, {NL*2048}")
    e(f"s_add_u32 s{sKH}, s{sKH}, {LB2}")
def p2_dma(n, S_W2F):
    sKH, sKW, vW = 18, 19, 254
    for _ in range(n):
        if P2K[0] >= NL: return
        e(f"s_add_u32 m0, s{sKH}, {P2K[0]*2048}")
        e("s_nop 0")
        e(f"buffer_load_dwordx4 v{vW}, {sr(S_W2F,4)}, s{sKW} offen sc1 lds")
        e(f"s_add_u32 m0, s{sKH}, {P2K[0]*2048+1024}")
        e(f"s_add_u32 s{sKW}, s{sKW}, 1024")
        e(f"buffer_load_dwordx4 v{vW}, {sr(S_W2F,4)}, s{sKW} offen sc1 lds")
        e(f"s_add_u32 s{sKW}, s{sKW}, {8*16384-1024}")
        P2K[0] += 1

def phase2(sW, sRB, sCG, S_HF, S_W2F, S_FL, vL16src):
    S_X, S_O = 8, 12
    sMB, sNB, sKH, sKW = 16, 17, 18, 19
    ACC, WF, HR, XR = 0, 64, 184, 240
    vL16, vH, vW, vXO, P1, P2_ = 248, 249, 254, 251, 252, 253
    NK = 15; D = int(os.environ.get("P2D", "7")); PRE = int(os.environ.get("P2PRE", "2"))
    e(f"v_mov_b32 v{vL16}, v{vL16src}")
    def wl(i):
        e(f"buffer_load_dwordx4 {vr(WF+8*i,4)}, v{vW}, {sr(S_W2F,4)}, s{sKW} offen sc1")
        e(f"buffer_load_dwordx4 {vr(WF+8*i+4,4)}, v{vW}, {sr(S_W2F,4)}, s{sKW} offen offset:1024 sc1")
        e(f"s_add_u32 s{sKW}, s{sKW}, {8*16384}")
    e("s_nop 1")
    for i in range(NL, NL + PRE): wl(i)
    e(f"v_add_u32 v{vH}, s{sKH}, v{vL16}")
    e(f"s_waitcnt vmcnt({2*PRE})")
    e("s_barrier")
    stamp(0)
    e(f"s_cmp_lg_u32 s{sW}, 0")
    e("s_cbranch_scc1 P2_NF")
    e(f"s_lshl_b32 s3, s{sRB}, 7")
    e(f"s_lshl_b32 s4, s{sCG}, 2")
    e("s_add_u32 s3, s3, s4")
    e("s_add_u32 s3, s3, 4096")
    e(f"v_mov_b32 v{P1}, s3")
    e(f"v_mov_b32 v{P2_}, s100")
    e("s_mov_b64 exec, 1")
    e(f"buffer_store_dword v{P2_}, v{P1}, {sr(S_FL,4)}, 0 offen sc1")
    e("s_mov_b64 exec, -1")
    lab("P2_NF")
    for i in range(2 * NL):
        e(f"ds_read_b128 {vr(WF+4*i,4)}, v{vH} offset:{1024*i}")
    for i in range(NL + PRE, NK): wl(i)
    srd(S_X, 36, 2048 * 1024)
    srd(S_O, 96, 2048 * 1024)
    e(f"s_lshl_b32 s6, s{sMB}, 11")
    e(f"v_add_u32 v{vH}, s6, v{vL16}")
    e(f"s_lshl_b32 s{sKH}, s{sW}, 16")
    e(f"v_bfe_u32 v{P1}, v{vL16}, 4, 5")
    e(f"v_lshrrev_b32 v{vXO}, 9, v{vL16}")
    e(f"v_lshlrev_b32 v{P1}, 10, v{P1}")
    e(f"v_lshl_add_u32 v{vXO}, v{vXO}, 3, v{P1}")
    e(f"s_lshl_b32 s3, s{sMB}, 16")
    e(f"s_lshr_b32 s4, s{sW}, 2")
    e("s_lshl_b32 s4, s4, 15")
    e("s_add_u32 s3, s3, s4")
    e(f"s_lshl_b32 s4, s{sNB}, 7")
    e("s_add_u32 s3, s3, s4")
    e(f"s_and_b32 s4, s{sW}, 3")
    e("s_lshl_b32 s4, s4, 5")
    e("s_add_u32 s3, s3, s4")
    e(f"v_add_u32 v{vXO}, s3, v{vXO}")
    for q in range(2):
        e(f"buffer_load_dwordx2 {vr(XR+2*q,2)}, v{vXO}, {sr(S_X,4)}, 0 offen offset:{16*q}")
    stamp(1)
    e(f"s_cmp_lg_u32 s{sW}, 0")
    e("s_cbranch_scc1 P2_GO")
    e(f"v_bfe_u32 v{P1}, v{vL16}, 2, 6")
    e(f"s_lshr_b32 s4, s{sMB}, 1")
    e("s_lshl_b32 s4, s4, 7")
    e("s_add_u32 s4, s4, 4096")
    e("s_mov_b32 s3, 0")
    lab("P2_POLL")
    e(f"buffer_load_dword v{P2_}, v{P1}, {sr(S_FL,4)}, s4 offen sc1")
    e("s_add_u32 s3, s3, 1")
    e("s_waitcnt vmcnt(0)")
    e(f"v_cmp_ne_u32 vcc, s100, v{P2_}")
    e("s_cmp_gt_u32 s3, 0x20000")
    e("s_cbranch_scc1 P2_GO")
    e("s_cbranch_vccz P2_GO")
    e("s_sleep 1")
    e("s_branch P2_POLL")
    lab("P2_GO")
    e("s_waitcnt lgkmcnt(0)")
    e("s_barrier")
    stamp(2)
    def hl(i):
        b = HR + 8 * (i % D)
        e(f"buffer_load_dwordx4 {vr(b,4)}, v{vH}, {sr(S_HF,4)}, s{sKH} offen sc1")
        e(f"buffer_load_dwordx4 {vr(b+4,4)}, v{vH}, {sr(S_HF,4)}, s{sKH} offen offset:1024 sc1")
        e(f"s_add_u32 s{sKH}, s{sKH}, {8*65536}")
    for i in range(D): hl(i)
    issued = D
    stamp(3)
    for i in range(NK):
        b = HR + 8 * (i % D); w = WF + 8 * i
        out = 2 * (issued - i - 1)
        c = (lambda r: "0") if i == 0 else (lambda r: vr(r, 16))
        e(f"s_waitcnt vmcnt({out + 1})")
        e(f"v_mfma_f32_32x32x16_bf16 {vr(ACC,16)}, {vr(w,4)}, {vr(b,4)}, {c(ACC)}")
        e(f"v_mfma_f32_32x32x16_bf16 {vr(ACC+16,16)}, {vr(w+4,4)}, {vr(b,4)}, {c(ACC+16)}")
        e(f"s_waitcnt vmcnt({out})")
        e(f"v_mfma_f32_32x32x16_bf16 {vr(ACC+32,16)}, {vr(w,4)}, {vr(b+4,4)}, {c(ACC+32)}")
        e(f"v_mfma_f32_32x32x16_bf16 {vr(ACC+48,16)}, {vr(w+4,4)}, {vr(b+4,4)}, {c(ACC+48)}")
        if i == 7: stamp(4)
        if issued < NK:
            hl(issued); issued += 1
    stamp(6)
    e(f"s_lshl_b32 s3, s{sW}, 10")
    e(f"v_add_u32 v{P1}, s3, v{vL16}")
    e(f"v_add_u32 v{vW}, 0x10000, v{P1}")
    e(f"s_lshl_b32 s3, s{sW}, 14")
    e(f"v_add_u32 v{P2_}, s3, v{vL16}")
    e("s_nop 7")
    for g in range(16):
        e(f"ds_write_b128 v{P1 if g < 8 else vW}, {vr(ACC+4*g,4)} offset:{(g % 8)*8192}")
    e("s_waitcnt lgkmcnt(0)")
    e("s_barrier")
    RD = 64
    for sidx in range(8):
        for q in range(2):
            e(f"ds_read_b128 {vr(RD+8*sidx+4*q,4)}, v{P2_} offset:{8192*q+1024*sidx}")
    for i in range(4):
        e(f"v_lshlrev_b32 v{2*i}, 16, v{XR+i}")
        e(f"v_and_b32 v{2*i+1}, 0xffff0000, v{XR+i}")
    for sidx in range(8):
        e(f"s_waitcnt lgkmcnt({14-2*sidx})")
        for r in range(0, 8, 2):
            e(f"v_pk_add_f32 {vr(r,2)}, {vr(r,2)}, {vr(RD+8*sidx+r,2)}")
    for i in range(4):
        e(f"v_cvt_pk_bf16_f32 v{XR+i}, v{2*i}, v{2*i+1}")
    for q in range(2):
        e(f"buffer_store_dwordx2 {vr(XR+2*q,2)}, v{vXO}, {sr(S_O,4)}, 0 offen offset:{16*q}")
    stamp(7)
    if STAMP: e("s_waitcnt vmcnt(0)")
    stamp(8)
    stamp_flush(50, 0x1100000, sW)

def desc(name, nv, acc):
    L.append(f""".amdhsa_kernel {name}
  .amdhsa_next_free_vgpr {nv}
  .amdhsa_next_free_sgpr 102
  .amdhsa_accum_offset {acc}
  .amdhsa_group_segment_fixed_size 0
  .amdhsa_kernarg_size 80
  .amdhsa_user_sgpr_count 2
  .amdhsa_user_sgpr_kernarg_segment_ptr 1
  .amdhsa_system_sgpr_workgroup_id_x 1
.end_amdhsa_kernel""")

L.append(HEADER.rstrip())
L.append("; @launch kernel=k1_kernel grid=(256,1,1) block=(512,1,1) lds=163840")
if not FUSE: L.append("; @launch kernel=k2_kernel grid=(256,1,1) block=(256,1,1) lds=49152")
L.append('.amdgcn_target "amdgcn-amd-amdhsa--gfx950"\n.text')
kernel1()
if not FUSE: kernel2()
L.append('.section .rodata,"a"\n.p2align 6')
desc("k1_kernel", 256, 256)
if not FUSE:
    L.append(".p2align 6")
    desc("k2_kernel", 496, 256)
open(OUT, "w").write("\n".join(x for x in L if x is not None) + "\n")
print("wrote", OUT, len(L), "lines")
```
